```python
import torch

def _softmax(x, axis=-1):
    return torch.softmax(x, dim=axis)
def _gelu(x):
    return torch.nn.functional.gelu(x, approximate="tanh")
def _silu(x):
    return torch.nn.functional.silu(x)
def _sigmoid(x):
    return torch.sigmoid(x)
def _layernorm(x, axis=-1, eps=1e-5):
    m = x.mean(dim=axis, keepdim=True)
    v = x.var(dim=axis, keepdim=True, unbiased=False)
    return (x - m) / torch.sqrt(v + eps)
def _scatter_add(tgt, idx, src, axis=0):
    return tgt.clone().index_add_(axis, idx, src)
def _segment_sum(src, seg, n):
    out = torch.zeros((n,) + src.shape[1:], dtype=src.dtype)
    return out.index_add_(0, seg, src)
def _pad(x, pw):
    flat = tuple(v for pair in reversed(pw) for v in pair)
    return torch.nn.functional.pad(x, flat)

kernel_name = 'parallel_sum__grouped_kv_mqa__glu_gated_swiglu__prompt'

def setup_inputs():

    _w = (lambda a: (lambda t: t.to(torch.bfloat16) if t.is_floating_point() else t)(torch.as_tensor(a)))
    def _A_setup():
        B, S, D, H = 1, 2048, 640, 32
        Dh = D // H
        return {
            "x": _w((lambda *s: torch.randn(*s, dtype=torch.bfloat16) * 0.05)(B, S, D)),
            "wq": _w((lambda *s: torch.randn(*s, dtype=torch.bfloat16) * 0.05)(D, H * Dh)),
            "wk": _w((lambda *s: torch.randn(*s, dtype=torch.bfloat16) * 0.05)(D, Dh)),
            "wv": _w((lambda *s: torch.randn(*s, dtype=torch.bfloat16) * 0.05)(D, Dh)),
            "wo": _w((lambda *s: torch.randn(*s, dtype=torch.bfloat16) * 0.05)(H * Dh, D)),
        }
    _A_in = _A_setup()

    def _B_setup():
        B, S, D, F = 1, 2048, 640, 1536
        return {
            "x": _w((lambda *s: torch.randn(*s, dtype=torch.bfloat16) * 0.05)(B, S, D)),
            "w1": _w((lambda *s: torch.randn(*s, dtype=torch.bfloat16) * 0.4)(D, F) * (2.0 / D) ** 0.5),
            "w3": _w((lambda *s: torch.randn(*s, dtype=torch.bfloat16) * 0.4)(D, F) * (2.0 / D) ** 0.5),
            "w2": _w((lambda *s: torch.randn(*s, dtype=torch.bfloat16) * 0.4)(F, D) * (2.0 / F) ** 0.5),
        }
    _B_in = _B_setup()

    return {
        "A_x": _A_in["x"],
        "A_wq": _A_in["wq"],
        "A_wk": _A_in["wk"],
        "A_wv": _A_in["wv"],
        "A_wo": _A_in["wo"],
        "B_x": _B_in["x"],
        "B_w1": _B_in["w1"],
        "B_w3": _B_in["w3"],
        "B_w2": _B_in["w2"],
    }

def reference(A_x, A_wq, A_wk, A_wv, A_wo, B_x, B_w1, B_w3, B_w2):
    def _A_ref(x, wq, wk, wv, wo):
        B, S, D = x.shape
        H = 32
        Dh = D // H
        q = (lambda x, *d: x.permute(*d))((x @ wq).reshape(B, S, H, Dh), 0, 2, 1, 3)
        k = x @ wk
        v = x @ wv
        scores = torch.einsum("bhqd,bkd->bhqk", q, k) * (Dh ** -0.5)
        p = _softmax(scores, axis=-1)
        o = torch.einsum("bhqk,bkd->bhqd", p, v)
        return (lambda x, *d: x.permute(*d))(o, 0, 2, 1, 3).reshape(B, S, H * Dh) @ wo

    def _B_ref(x, w1, w3, w2):
        gate = torch.einsum("bsd,df->bsf", x, w1)
        up = torch.einsum("bsd,df->bsf", x, w3)
        h = _silu(gate) * up
        out = torch.einsum("bsf,fd->bsd", h, w2)
        return out

    x = A_x
    xn = _layernorm(x, axis=-1)
    return x + _A_ref(xn, A_wq, A_wk, A_wv, A_wo) + _B_ref(xn, B_w1, B_w3, B_w2)
```

```python
import re, copy

REG_RE = re.compile(r'^(-|abs\()?(v|a|s)(?:(\d+)|\[(\d+):(\d+)\])\)?$')
TRANS = ('v_exp_f32','v_log_f32','v_rcp_f32','v_rsq_f32','v_sqrt_f32','v_sin_f32','v_cos_f32')

def parse_reg(tok):
    tok = tok.strip()
    if tok in ('vcc',): return [('s',106),('s',107)]
    if tok == 'vcc_lo': return [('s',106)]
    if tok == 'exec': return [('s',126),('s',127)]
    if tok == 'm0': return [('s',124)]
    m = REG_RE.match(tok)
    if not m: return []
    k = m.group(2)
    if m.group(3) is not None: return [(k,int(m.group(3)))]
    return [(k,i) for i in range(int(m.group(4)), int(m.group(5))+1)]

def mfma_passes(op):
    if '32x32x16' in op or '32x32x8' in op: return 8
    if '16x16x32' in op or '16x16x16' in op: return 4
    if '32x32x4_2b' in op or '32x32x4' in op: return 16
    raise ValueError(op)

class Inst:
    __slots__=('text','op','dst','src','srcC','cls','ops')
    def __init__(self, text):
        self.text = text
        t = text.split(';')[0].strip()
        parts = t.split(None,1)
        self.op = op = parts[0]
        rest = parts[1] if len(parts)>1 else ''
        rest_main = re.sub(r'\b(op_sel|op_sel_hi|neg_lo|neg_hi):\[[^\]]*\]', '', rest)
        toks = [x.strip() for x in rest_main.split(',')] if rest_main.strip() else []
        ops=[]
        for x in toks:
            ops.append(x.split()[0] if x else x)
        self.ops = ops
        regs = [parse_reg(x) for x in ops]
        self.dst=[]; self.src=[]; self.srcC=[]
        flat = lambda L: [r for l in L for r in l]
        if op.startswith('v_mfma'):
            self.cls='mfma'; self.dst=regs[0]; self.src=regs[1]+regs[2]; self.srcC=regs[3]
        elif op.startswith('v_permlane'):
            self.cls='valu'; self.dst=regs[0]+regs[1]; self.src=regs[0]+regs[1]
        elif op.startswith('v_cmp'):
            self.cls='valu'; self.dst=regs[0]; self.src=flat(regs[1:])
        elif op.startswith('v_'):
            self.cls='valu'; self.dst=regs[0]; self.src=flat(regs[1:])
            if op.startswith('v_fmac') or op.startswith('v_dot2c') or op.startswith('v_pk_fmac'): self.src = self.src+regs[0]
            if op.startswith('v_add_co') or op.startswith('v_addc_co') or op.startswith('v_sub_co'):
                self.dst = regs[0]+regs[1]; self.src=flat(regs[2:])
            if op.startswith('v_cndmask') and len(ops)==3: self.src = self.src+parse_reg('vcc')
        elif op.startswith('ds_read') or op.startswith('ds_bpermute') or op.startswith('ds_swizzle') or op.startswith('ds_permute'):
            self.cls='ds'; self.dst=regs[0]; self.src=flat(regs[1:])
        elif op.startswith('ds_'):
            self.cls='ds'; self.src=flat(regs)
        elif op.startswith('buffer_load') or op.startswith('global_load'):
            self.cls='vmem'
            if re.search(r'\blds\b', t) or '_lds_' in op:
                self.src=flat(regs)+parse_reg('m0'); self.cls='vmem_lds'
            else:
                self.dst=regs[0]; self.src=flat(regs[1:])
        elif op.startswith('buffer_') or op.startswith('global_'):
            self.cls='vmem_st'; self.src=flat(regs)
        elif op.startswith('s_load') or op.startswith('s_memtime') or op.startswith('s_buffer_load'):
            self.cls='smem'; self.dst=regs[0]; self.src=flat(regs[1:])
        elif op.startswith('s_'):
            self.cls='salu'
            if op.startswith('s_cmp') or op.startswith('s_cbranch') or op in ('s_branch','s_barrier','s_waitcnt','s_nop','s_endpgm','s_setprio','s_sleep'):
                self.src=flat(regs)
            else:
                self.dst=regs[0] if regs else []; self.src=flat(regs[1:])
                if 'saveexec' in op: self.dst = self.dst+parse_reg('exec')
        else:
            raise ValueError('unknown op '+text)

class Asm:
    def __init__(self):
        self.lines=[]
        self.t=0
        self.ev={}
        self.vm=[]
        self.lg=[]
        self.nops=0
    def raw(self, s): self.lines.append(s)
    def comment(self, s): self.lines.append('    ; '+s)
    def label(self, l): self.lines.append(l+':')
    def _need(self, kind, reg, dist):
        e = self.ev.get((kind,reg))
        if e is None: return 0
        tt = e[0] if isinstance(e,tuple) else e
        return max(0, dist - (self.t - tt - 1))
    def _calc(self, I):
        n=0
        rd = I.src + I.srcC
        if I.cls=='mfma':
            for r in rd: n=max(n,self._need('valu_w',r,2))
            same = None
            for r in I.srcC:
                e=self.ev.get(('mfma_w',r))
                if e:
                    tt,p,dst,op = e
                    if tuple(dst)==tuple(I.srcC) and op==I.op: d = 2 if p==2 else 0
                    else: d = p+2
                    n=max(n, d-(self.t-tt-1))
            for r in I.src:
                e=self.ev.get(('mfma_w',r))
                if e: n=max(n, (e[1]+4)-(self.t-e[0]-1))
            for r in I.dst:
                e=self.ev.get(('mfma_w',r))
                if e and r not in I.srcC: n=max(n, (e[1]+2)-(self.t-e[0]-1))
            for r in rd: n=max(n,self._need('dot_w',r,3))
        else:
            touch = rd + I.dst
            if I.cls in ('valu','ds','vmem','vmem_lds','vmem_st'):
                for r in touch:
                    e=self.ev.get(('mfma_w',r))
                    if e: n=max(n,(e[1]+4)-(self.t-e[0]-1))
            if I.cls=='valu':
                for r in I.dst:
                    e=self.ev.get(('mfma_c',r))
                    if e: n=max(n,(e[1]-1)-(self.t-e[0]-1))
                    n=max(n,self._need('st_data',r,2))
                if I.op not in TRANS:
                    for r in touch: n=max(n,self._need('trans_w',r,1))
                else:
                    for r in touch: n=max(n,self._need('trans_w',r,1))
                if I.op.startswith('v_permlane') or 'dpp' in I.text or 'row_' in I.text or 'quad_perm' in I.text:
                    for r in rd: n=max(n,self._need('valu_w',r,2))
                if I.op.startswith('v_readfirstlane') or I.op.startswith('v_readlane'):
                    for r in rd:
                        if r[0]=='v': n=max(n,self._need('valu_w',r,1))
                        else: n=max(n,self._need('valu_w',r,4))
                for r in rd:
                    if r[0]=='s': n=max(n,self._need('valu_w',r,2))
                if I.op.startswith('v_dot2'):
                    for r in I.src:
                        e=self.ev.get(('dot_w',r))
                        if e:
                            isC = (r in parse_reg(I.ops[-1])) and e[1]==I.op and r not in parse_reg(I.ops[1])+parse_reg(I.ops[2])
                            if not isC: n=max(n,3-(self.t-e[0]-1))
                    for r in I.dst:
                        e=self.ev.get(('dot_w',r))
                        if e and e[1]!=I.op: n=max(n,3-(self.t-e[0]-1))
                else:
                    for r in touch: n=max(n,self._need('dot_w',r,3))
            if I.cls in ('vmem','vmem_lds','vmem_st'):
                for r in rd:
                    if r[0]=='s': n=max(n,self._need('valu_w',r,5))
                    n=max(n,self._need('dot_w',r,3)); n=max(n,self._need('trans_w',r,1))
                for r in I.dst: n=max(n,self._need('st_data',r,1))
            if I.cls=='ds':
                for r in rd:
                    n=max(n,self._need('dot_w',r,3)); n=max(n,self._need('trans_w',r,1))
                for r in I.dst: n=max(n,self._need('st_data',r,1))
            if I.cls=='vmem_lds': n=max(n,self._need('salu_w',('s',124),1))
            if I.cls=='salu':
                for r in rd: n=max(n,self._need('valu_w',r,1))
        return n
    def _record(self, I):
        t=self.t
        if I.cls=='mfma':
            p=mfma_passes(I.op)
            for r in I.dst:
                self.ev[('mfma_w',r)]=(t,p,list(I.dst),I.op)
                for k in ('valu_w','trans_w','dot_w'): self.ev.pop((k,r),None)
            for r in I.srcC: self.ev[('mfma_c',r)]=(t,p)
        elif I.cls=='valu':
            for r in I.dst:
                self.ev[('valu_w',r)]=t
                self.ev.pop(('mfma_w',r),None)
                if I.op in TRANS: self.ev[('trans_w',r)]=t
                else: self.ev.pop(('trans_w',r),None)
                if I.op.startswith('v_dot2'): self.ev[('dot_w',r)]=(t,I.op)
                else: self.ev.pop(('dot_w',r),None)
        elif I.cls=='salu':
            for r in I.dst:
                self.ev[('salu_w',r)]=t
                self.ev.pop(('valu_w',r),None)
        elif I.cls=='vmem_st':
            if 'x4' in I.op or 'x3' in I.op:
                data = parse_reg(I.ops[0]) if I.op.startswith('buffer') else parse_reg(I.ops[1])
                for r in data: self.ev[('st_data',r)]=t
        elif I.cls in ('vmem','ds'):
            for r in I.dst:
                for k in ('valu_w','trans_w','dot_w','mfma_w'): self.ev.pop((k,r),None)
    def nop(self, n):
        while n>0:
            k=min(n,16)
            self.lines.append(f'    s_nop {k-1}')
            self.t+=k; n-=k; self.nops+=k
    def __call__(self, text, tag=None):
        I=Inst(text)
        if I.op=='s_nop':
            k=int(I.ops[0])+1
            self.lines.append('    '+text); self.t+=k; return
        n=self._calc(I)
        if n>0: self.nop(n)
        self.lines.append('    '+text)
        self._record(I)
        self.t+=1
        if I.cls in ('vmem','vmem_lds','vmem_st'): self.vm.append(tag)
        if I.cls=='ds': self.lg.append(tag)
    def wait_vm(self, tag):
        idx=[i for i,x in enumerate(self.vm) if x==tag]
        if not idx: return
        n=len(self.vm)-1-idx[-1]
        assert n<=63, n
        self(f's_waitcnt vmcnt({n})')
        self.vm=self.vm[idx[-1]+1:]
    def wait_lg(self, tag):
        idx=[i for i,x in enumerate(self.lg) if x==tag]
        if not idx: return
        n=len(self.lg)-1-idx[-1]
        if n>15: n=15;
        self(f's_waitcnt lgkmcnt({n})')
        self.lg=self.lg[len(self.lg)-n:] if n>0 else []
    def wait_vm0(self):
        self('s_waitcnt vmcnt(0)'); self.vm=[]
    def wait_lg0(self):
        self('s_waitcnt lgkmcnt(0)'); self.lg=[]
    def wait_all(self):
        self('s_waitcnt vmcnt(0) lgkmcnt(0)'); self.vm=[]; self.lg=[]
    def settle(self, n=20):
        worst=0
        for (k,r),e in self.ev.items():
            tt=e[0] if isinstance(e,tuple) else e
            d={'mfma_w':(e[1]+4) if k=='mfma_w' else 0,'mfma_c':(e[1]-1) if k=='mfma_c' else 0,'valu_w':5 if r[0]=='s' else 2,'trans_w':2,'dot_w':3,'salu_w':1,'st_data':2}[k]
            worst=max(worst,d-(self.t-tt-1))
        if worst>0: self.nop(worst)
        self.ev={}
    def hz_get(self):
        out={}
        for k,e in self.ev.items():
            if isinstance(e,tuple): out[k]=(self.t-e[0],)+tuple(e[1:])
            else: out[k]=(self.t-e,)
        return out
    def hz_set(self, st):
        self.ev={}
        for k,e in st.items():
            self.ev[k]=(self.t-e[0],)+tuple(e[1:]) if len(e)>1 else self.t-e[0]
    @staticmethod
    def hz_merge(a,b):
        out=dict(a)
        for k,e in b.items():
            if k not in out or e[0]<out[k][0]: out[k]=e
        return out
    def loop(self, label, body, tail):
        entry_hz=self.hz_get(); vm0=list(self.vm); lg0=list(self.lg)
        st=entry_hz
        for it in range(6):
            tmp=Asm(); tmp.t=1000; tmp.hz_set(st); tmp.vm=list(vm0); tmp.lg=list(lg0)
            body(tmp); tail(tmp)
            ex=tmp.hz_get()
            new=Asm.hz_merge(entry_hz,ex)
            f=lambda d:{k:v[0] for k,v in d.items() if v[0]<24}
            if f(new)==f(st) and it>0: break
            st=new
        else:
            raise RuntimeError('loop hazards did not converge')
        assert tmp.vm==vm0, (tmp.vm, vm0)
        assert tmp.lg==lg0, (tmp.lg, lg0)
        self.label(label)
        self.lines+=tmp.lines
        self.nops+=tmp.nops
        self.t+= (tmp.t-1000)
        self.hz_set(tmp.hz_get())
        self.vm=tmp.vm; self.lg=tmp.lg
    def cond_block(self, branch_text, label, fn):
        self(branch_text)
        skip=self.hz_get(); vm0=list(self.vm); lg0=list(self.lg)
        fn(self)
        assert self.vm==vm0 and self.lg==lg0
        ex=self.hz_get()
        self.label(label)
        self.hz_set(Asm.hz_merge(skip,ex))
    def text(self): return '\n'.join(self.lines)+'\n'
```

```python
from asmlib import Asm
import layout as L
import math, struct
def f2u(x): return struct.unpack('<I',struct.pack('<f',x))[0]
LOG2E=math.log2(math.e)

SLOT=49152
STATS=147456
CSP=149504
KV_WK=98304; KV_WV=126976; KV_ST=155648

def srd(a, d, lo, size, add=0):
    if add:
        a(f"s_add_u32 s{d}, s{lo}, {add}"); a(f"s_addc_u32 s{d+1}, s{lo+1}, 0")
    else:
        a(f"s_mov_b32 s{d}, s{lo}"); a(f"s_mov_b32 s{d+1}, s{lo+1}")
    a(f"s_mov_b32 s{d+2}, {size}"); a(f"s_mov_b32 s{d+3}, 0x00020000")

XF=24
WF=40
ACC=64
def xf(st,ts): b=XF+st*8+ts*4; return f"v[{b}:{b+3}]"
def wf(st,m): b=WF+st*8+m*4; return f"v[{b}:{b+3}]"
def acc(ts,m): b=ACC+(ts*2+m)*16; return f"v[{b}:{b+15}]"

def x_dma_setup(a):
    a("v_lshrrev_b32 v1, 3, v0")
    a("s_lshl_b32 s63, s55, 8"); a("s_lshl_b32 s67, s52, 5"); a("s_add_u32 s63, s63, s67")
    a("v_add_u32 v1, s63, v1")
    a("v_mul_u32_u24 v1, 1280, v1")
    a("v_and_b32 v2, 7, v0"); a("v_lshrrev_b32 v3, 4, v0")
    a("v_xor_b32 v2, v2, v3")
    a("v_xor_b32 v4, 4, v2")
    a("v_lshl_add_u32 v5, v2, 4, v1")
    a("v_lshl_add_u32 v6, v4, 4, v1")
    a("v_mov_b32 v1, v5")
    a(f"v_add_u32 v2, {9216}, v6")
    a(f"v_add_u32 v3, {2*9216}, v5")
    a(f"v_add_u32 v4, {3*9216}, v6")

def x_dma(a, tag, lds_sgpr):
    a(f"s_add_u32 m0, {lds_sgpr}, s64")
    for e in range(4):
        a(f"buffer_load_dwordx4 v{1+e}, s[36:39], s57 offen offset:{1024*e} lds", tag)

def xread_setup(a, rowbase_sgpr):
    a("v_and_b32 v10, 31, v0")
    a("v_lshrrev_b32 v11, 1, v10"); a("v_and_b32 v11, 7, v11")
    a("v_lshrrev_b32 v12, 5, v0")
    a(f"v_add_u32 v10, {rowbase_sgpr}, v10"); a("v_lshlrev_b32 v10, 7, v10")
    for ks in range(4):
        a(f"v_add_u32 v13, {2*ks}, v12"); a("v_xor_b32 v13, v13, v11")
        a(f"v_lshl_add_u32 v{6+ks}, v13, 4, v10")

def stats_final(a, s0,s1,q0,q1, t0,t1, negm, rinv):
    a(f"v_add_f32 {s0}, {s0}, {s1}"); a(f"v_add_f32 {q0}, {q0}, {q1}")
    a(f"v_mov_b32 {t0}, {s0}"); a(f"v_mov_b32 {t1}, {q0}")
    a(f"v_permlane32_swap_b32 {s0}, {t0}"); a(f"v_permlane32_swap_b32 {q0}, {t1}")
    a(f"v_add_f32 {s0}, {s0}, {t0}"); a(f"v_add_f32 {q0}, {q0}, {t1}")
    c=f2u(1.0/640)
    a(f"v_mul_f32 {s0}, 0x{c:08x}, {s0}"); a(f"v_mul_f32 {q0}, 0x{c:08x}, {q0}")
    a(f"v_fma_f32 {q0}, -{s0}, {s0}, {q0}"); a(f"v_max_f32 {q0}, 0, {q0}")
    a(f"v_cvt_pk_bf16_f32 {negm}, {s0}, {s0}"); a(f"v_xor_b32 {negm}, 0x80008000, {negm}")
    a(f"v_cvt_pk_bf16_f32 {q0}, {q0}, {q0}"); a(f"v_lshlrev_b32 {q0}, 16, {q0}")
    a(f"v_add_f32 {q0}, 0x{f2u(1e-5):08x}, {q0}")
    a(f"v_cvt_pk_bf16_f32 {q0}, {q0}, {q0}"); a(f"v_lshlrev_b32 {q0}, 16, {q0}")
    a(f"v_sqrt_f32 {q0}, {q0}")
    a(f"v_cvt_pk_bf16_f32 {q0}, {q0}, {q0}"); a(f"v_lshlrev_b32 {q0}, 16, {q0}")
    a(f"v_rcp_f32 {rinv}, {q0}")

def aug_w(a, cs, d, t0, t1):
    a(f"v_cvt_pk_bf16_f32 {t0}, {cs}, {cs}"); a(f"v_lshlrev_b32 {t1}, 16, {t0}")
    a(f"v_sub_f32 {cs}, {cs}, {t1}")
    a(f"v_cvt_pk_bf16_f32 v{d}, {cs}, {cs}"); a(f"v_lshlrev_b32 {t1}, 16, v{d}")
    a(f"v_sub_f32 {cs}, {cs}, {t1}")
    a(f"v_and_b32 {t0}, 0xffff, {t0}"); a(f"v_or_b32 v{d}, {t0}, {t1}")
    a(f"v_cvt_pk_bf16_f32 v{d+1}, {cs}, 0")
    a(f"v_mov_b32 v{d+2}, 0"); a(f"v_mov_b32 v{d+3}, 0")

def aug_x(a, negm, d):
    a(f"v_cndmask_b32 v{d}, 0, {negm}, vcc")
    a(f"v_and_b32 v{d+1}, 0xffff, v{d}")
    a(f"v_mov_b32 v{d+2}, 0"); a(f"v_mov_b32 v{d+3}, 0")

def k1():
    a=Asm()
    a.raw(".globl k1_kernel\n.p2align 8\n.type k1_kernel,@function\nk1_kernel:")
    a("s_cmp_ge_u32 s2, 256"); a("s_cbranch_scc1 K1_END")
    a("s_load_dwordx16 s[16:31], s[0:1], 0")
    a("s_load_dwordx2 s[32:33], s[0:1], 64")
    a("s_load_dwordx2 s[34:35], s[0:1], 88")
    a("v_lshrrev_b32 v1, 6, v0"); a("v_readfirstlane_b32 s52, v1"); a("v_and_b32 v0, 63, v0")
    a("s_and_b32 s53, s52, 3"); a("s_lshr_b32 s54, s52, 2")
    a("s_and_b32 s63, s2, 7"); a("s_lshr_b32 s67, s2, 3")
    a("s_lshr_b32 s56, s63, 1"); a("s_lshl_b32 s56, s56, 3"); a("s_lshr_b32 s68, s67, 2"); a("s_add_u32 s56, s56, s68")
    a("s_and_b32 s55, s63, 1"); a("s_lshl_b32 s55, s55, 2"); a("s_and_b32 s68, s67, 3"); a("s_add_u32 s55, s55, s68")
    a("s_mov_b32 s66, 0x3f803f80")
    a("s_lshl_b32 s64, s52, 12")
    a("v_lshlrev_b32 v16, 4, v0")
    a("s_waitcnt lgkmcnt(0)")
    srd(a,48,34,L.WS_END)
    a("s_cmp_ge_u32 s56, 30"); a("s_cbranch_scc1 K1_RELAY")
    srd(a,36,16,2048*1280)
    x_dma_setup(a)
    a("s_mov_b32 s57, 0")
    a("s_cmp_eq_u32 s56, 29"); a("s_cbranch_scc1 K1_KV")
    a("s_cmp_ge_u32 s56, 24"); a("s_cbranch_scc1 K1_QSET")
    srd(a,40,28,640*3072); srd(a,44,30,640*3072)
    a("s_mov_b32 s69, 3072"); a("s_lshl_b32 s70, s56, 7")
    a("s_branch K1_SETDONE")
    a.label("K1_QSET")
    srd(a,40,18,640*1280); srd(a,44,18,640*1280-128,add=128)
    a("s_mov_b32 s69, 1280"); a("s_sub_u32 s70, s56, 24"); a("s_lshl_b32 s70, s70, 8")
    a.label("K1_SETDONE")
    a.settle()
    a("v_lshrrev_b32 v5, 3, v0"); a("s_lshl_b32 s63, s52, 3"); a("v_add_u32 v5, s63, v5")
    a("v_mul_lo_u32 v5, v5, s69")
    a("v_lshrrev_b32 v10, 4, v0"); a("v_and_b32 v10, 1, v10"); a("v_lshlrev_b32 v10, 2, v10")
    a("v_and_b32 v11, 7, v0"); a("v_xor_b32 v10, v10, v11")
    a("v_lshl_add_u32 v5, v10, 4, v5"); a("v_add_u32 v5, s70, v5")
    a("s_mov_b32 s58, 0"); a("s_lshl_b32 s59, s69, 6")
    a("s_lshl_b32 s65, s52, 10"); a("s_add_u32 s65, s65, 32768")
    def dma(a, tag):
        x_dma(a, tag, "s60")
        a("s_add_u32 m0, s60, s65")
        a("s_add_u32 s63, s65, 8192")
        a("buffer_load_dwordx4 v5, s[40:43], s58 offen lds", tag)
        a("s_add_u32 m0, s60, s63")
        a("s_add_u32 s57, s57, 128")
        a("buffer_load_dwordx4 v5, s[44:47], s58 offen lds", tag)
        a("s_add_u32 s58, s58, s59")
        a(f"s_add_u32 s60, s60, {SLOT}"); a(f"s_cmp_eq_u32 s60, {3*SLOT}"); a("s_cselect_b32 s60, 0, s60")
    a("s_mov_b32 s60, 0")
    for s in range(3): dma(a, f"d{s}")
    a("s_lshl_b32 s63, s53, 6"); a("s_lshl_b32 s67, s54, 5"); a("s_add_u32 s63, s63, s67")
    xread_setup(a, "s63")
    a("s_lshl_b32 s67, s54, 13"); a("s_sub_u32 s71, 4096, s67")
    a("v_lshrrev_b32 v11, 5, v0")
    a("v_and_b32 v12, 15, v0"); a("v_lshrrev_b32 v13, 2, v12")
    a("v_and_b32 v12, 3, v12")
    a("v_lshl_add_u32 v14, v11, 3, v13")
    a("v_lshlrev_b32 v14, 7, v14")
    a("v_lshrrev_b32 v15, 4, v0"); a("v_and_b32 v15, 1, v15"); a("v_lshlrev_b32 v15, 1, v15")
    a("v_lshrrev_b32 v11, 1, v12"); a("v_add_u32 v15, v15, v11")
    a("s_lshl_b32 s67, s54, 2"); a("v_add_u32 v15, s67, v15")
    a("v_lshrrev_b32 v13, 1, v13"); a("v_lshlrev_b32 v13, 2, v13"); a("v_xor_b32 v15, v15, v13")
    a("v_lshl_add_u32 v14, v15, 4, v14")
    a("v_and_b32 v12, 1, v12"); a("v_lshl_add_u32 v14, v12, 3, v14")
    a("v_add_u32 v10, 32768, v14")
    for r in range(17,23): a(f"v_mov_b32 v{r}, 0")
    def set_read_addrs(a):
        for ks in range(4):
            a(f"v_add_u32 v{11+ks}, s61, v{6+ks}")
            a(f"v_add_u32 v{56+ks}, s71, v{11+ks}")
        a("v_add_u32 v15, s61, v10")
        a(f"s_add_u32 s61, s61, {SLOT}"); a(f"s_cmp_eq_u32 s61, {3*SLOT}"); a("s_cselect_b32 s61, 0, s61")
    def reads(ks):
        st=ks&1
        R=[]
        R.append((f"ds_read_b128 {xf(st,0)}, v{11+ks}", f"f{st}"))
        for m in range(2):
            b=WF+st*8+m*4
            for jj in range(2):
                R.append((f"ds_read_b64_tr_b16 v[{b+2*jj}:{b+2*jj+1}], v15 offset:{m*8192+(16*ks+4*jj)*128}", f"f{st}"))
        R.insert(3,(f"ds_read_b128 {xf(st,1)}, v{56+ks}", f"f{st}"))
        return R
    a("s_mov_b32 s61, 0")
    a.wait_vm("d0"); a("s_barrier")
    set_read_addrs(a)
    for t,tag in reads(0): a(t,tag)
    uid=[0]
    def stage(a, first, dma_tag, wait_tag, nxt):
        for ks in range(4):
            st=ks&1
            if ks==3:
                a.wait_lg0()
                if nxt:
                    a.wait_vm(wait_tag); a("s_barrier")
                    if dma_tag: dma(a, dma_tag)
                    set_read_addrs(a)
                R = reads(0) if nxt else []
            else:
                a.wait_lg(f"f{st}")
                R = reads(ks+1)
            xb=XF+st*8
            dots=[]
            for i in range(4):
                dots.append(f"v_dot2_f32_bf16 v{17+(i&1)}, v{xb+i}, s66, v{17+(i&1)}")
                dots.append(f"v_dot2_f32_bf16 v{19+(i&1)}, v{xb+i}, v{xb+i}, v{19+(i&1)}")
            k=0
            for ts,m in ((0,0),(0,1),(1,0),(1,1)):
                c = "0" if (first and ks==0) else acc(ts,m)
                a(f"v_mfma_f32_32x32x16_bf16 {acc(ts,m)}, {wf(st,m)}, {xf(st,ts)}, {c}")
                for t,tag in R[(0,2,4,6)[k]:(2,4,6,6)[k]] : a(t,tag)
                for d in dots[2*k:2*k+2]: a(d)
                k+=1
            uid[0]+=1
            lab=f"K1_CS{uid[0]}"
            def cs(a):
                for i in range(4):
                    for m in range(2):
                        a(f"v_dot2_f32_bf16 v{21+m}, v{WF+st*8+m*4+i}, s66, v{21+m}")
            a(f"s_cmp_eq_u32 s53, {ks}")
            a.cond_block(f"s_cbranch_scc0 {lab}", lab, cs)
    a.vm=["A"]*6+["B"]*6
    def rel_stage(a, first=False):
        stage(a, first, "C", "A", True)
        a.vm=[{"B":"A","C":"B"}[x] for x in a.vm]
    rel_stage(a, True)
    a("s_mov_b32 s62, 6")
    def body(t): rel_stage(t)
    def tail(t):
        t("s_sub_u32 s62, s62, 1"); t("s_cmp_lg_u32 s62, 0"); t("s_cbranch_scc1 K1_LOOP")
    a.loop("K1_LOOP", body, tail)
    stage(a, False, None, "A", True)
    stage(a, False, None, "B", True)
    stage(a, False, None, None, False)
    stats_final(a,"v17","v18","v19","v20","v24","v25","v60","v61")
    a("v_and_b32 v24, 31, v0"); a("s_lshl_b32 s63, s53, 6"); a("s_lshl_b32 s67, s54, 5"); a("s_add_u32 s63, s63, s67")
    a("v_add_u32 v25, s63, v24"); a("v_lshlrev_b32 v25, 3, v25"); a(f"v_add_u32 v25, {STATS}, v25")
    a(f"ds_write_b64 v25, v[60:61]")
    a("v_xor_b32 v25, 256, v25")
    a("v_lshlrev_b32 v26, 5, v24"); a("s_lshl_b32 s63, s54, 11"); a(f"s_add_u32 s63, s63, {CSP}"); a("v_add_u32 v26, s63, v26")
    a("v_lshrrev_b32 v27, 5, v0"); a("s_lshl_b32 s63, s53, 1"); a("v_add_u32 v27, s63, v27")
    a("v_lshl_add_u32 v27, v27, 2, v26")
    a(f"ds_write_b32 v27, v21"); a(f"ds_write_b32 v27, v22 offset:1024")
    a.wait_lg0(); a("s_barrier")
    a(f"ds_read_b64 v[62:63], v25")
    for m in range(2):
        a(f"ds_read_b128 v[{28+8*m}:{31+8*m}], v26 offset:{1024*m}")
        a(f"ds_read_b128 v[{32+8*m}:{35+8*m}], v26 offset:{1024*m+16}")
    a("v_cmp_gt_u32 vcc, 32, v0")
    aug_x(a,"v60",44)
    a.wait_lg0()
    aug_x(a,"v62",48)
    for m in range(2):
        b=28+8*m
        for i in (0,2,4,6): a(f"v_add_f32 v{b+i}, v{b+i}, v{b+i+1}")
        a(f"v_add_f32 v{b}, v{b}, v{b+2}"); a(f"v_add_f32 v{b+4}, v{b+4}, v{b+6}"); a(f"v_add_f32 v{b}, v{b}, v{b+4}")
        aug_w(a, f"v{b}", 52+4*m if m==0 else 56, f"v{b+1}", f"v{b+2}")
    for ts in range(2):
        for m in range(2):
            a(f"v_mfma_f32_32x32x16_bf16 {acc(ts,m)}, v[{52+4*m}:{55+4*m}], v[{44+4*ts}:{47+4*ts}], {acc(ts,m)}")
    a("s_lshl_b32 s72, s55, 3"); a("s_lshl_b32 s63, s53, 1"); a("s_add_u32 s72, s72, s63"); a("s_add_u32 s72, s72, s54")
    a("s_xor_b32 s73, s72, 1")
    a("s_cmp_ge_u32 s56, 24"); a("s_cbranch_scc1 K1_QEPI")
    hz=a.hz_get()
    a("s_lshl_b32 s63, s56, 1"); a("s_add_u32 s63, s63, s54"); a("s_lshl_b32 s63, s63, 11")
    a(f"s_add_u32 s63, s63, {L.HF}")
    for ts in range(2):
        a(f"s_mul_i32 s{74+ts}, s{72+ts}, {96*1024}"); a(f"s_add_u32 s{74+ts}, s{74+ts}, s63")
    for ts in range(2):
        rv = "v61" if ts==0 else "v63"
        a(f"v_mul_f32 v24, 0x{f2u(-LOG2E):08x}, {rv}"); a(f"v_mul_f32 v25, {rv}, {rv}")
        G=ACC+ts*32; U=G+16
        for half in range(2):
            idx=range(8*half,8*half+8)
            for i in idx: a(f"v_mul_f32 v{28+i%8}, v24, v{G+i}")
            for i in idx: a(f"v_exp_f32 v{28+i%8}, v{28+i%8}")
            for i in idx: a(f"v_mul_f32 v{G+i}, v{G+i}, v{U+i}")
            for i in idx: a(f"v_add_f32 v{28+i%8}, 1.0, v{28+i%8}")
            for i in idx: a(f"v_rcp_f32 v{28+i%8}, v{28+i%8}")
            for i in idx: a(f"v_mul_f32 v{G+i}, v25, v{G+i}")
            for i in idx: a(f"v_mul_f32 v{G+i}, v{G+i}, v{28+i%8}")
            d=36+4*((2*ts+half)&3)
            for i in range(4): a(f"v_cvt_pk_bf16_f32 v{d+i}, v{G+8*half+2*i}, v{G+8*half+2*i+1}")
            a(f"buffer_store_dwordx4 v[{d}:{d+3}], v16, s[48:51], s{74+ts} offen offset:{1024*half}")
    a("s_branch K1_END")
    a.label("K1_QEPI")
    a.hz_set(hz)
    a("s_sub_u32 s63, s56, 24"); a("s_lshl_b32 s63, s63, 2"); a("s_add_u32 s63, s63, s54"); a("s_lshl_b32 s63, s63, 11")
    for ts in range(2):
        a(f"s_mul_i32 s{74+ts}, s{72+ts}, {40*1024}"); a(f"s_add_u32 s{74+ts}, s{74+ts}, s63")
        a(f"s_add_u32 s{76+ts}, s{74+ts}, 4096")
    qs=(20**-0.5)*LOG2E
    n=0
    for ts in range(2):
        rv = "v61" if ts==0 else "v63"
        a(f"v_mul_f32 v24, 0x{f2u(qs):08x}, {rv}")
        for m in range(2):
            B=ACC+(ts*2+m)*16
            for half in range(2):
                for i in range(8): a(f"v_mul_f32 v{B+8*half+i}, v24, v{B+8*half+i}")
                d=28+4*(n&7); n+=1
                for i in range(4): a(f"v_cvt_pk_bf16_f32 v{d+i}, v{B+8*half+2*i}, v{B+8*half+2*i+1}")
                a(f"buffer_store_dwordx4 v[{d}:{d+3}], v16, s[48:51], s{74+2*m+ts} offen offset:{1024*half}")
    a("s_branch K1_END")

    a.label("K1_KV")
    a.ev={}; a.vm=[]; a.lg=[]
    srd(a,40,20,25600); srd(a,44,22,25600)
    a("s_lshl_b32 s63, s52, 10")
    for m in range(4):
        if m==3:
            a("s_cmp_ge_u32 s52, 4"); a("s_cbranch_scc1 K1_KV_W3")
        a(f"s_add_u32 s67, s63, {8192*m}")
        a(f"s_add_u32 m0, s67, {KV_WK}")
        a("s_nop 0")
        a("buffer_load_dwordx4 v16, s[40:43], s67 offen lds", "w")
        a(f"s_add_u32 m0, s67, {KV_WV}")
        a("s_nop 0")
        a("buffer_load_dwordx4 v16, s[44:47], s67 offen lds", "w")
    a.label("K1_KV_W3")
    def dmak(a, tag):
        x_dma(a, tag, "s60")
        a("s_add_u32 s57, s57, 128")
        a("s_add_u32 s60, s60, 32768"); a(f"s_cmp_eq_u32 s60, {3*32768}"); a("s_cselect_b32 s60, 0, s60")
    a("s_mov_b32 s60, 0")
    for s in range(3): dmak(a, f"d{s}")
    a("s_lshl_b32 s63, s52, 5")
    xread_setup(a, "s63")
    a("v_lshrrev_b32 v11, 5, v0"); a("v_and_b32 v12, 15, v0"); a("v_lshrrev_b32 v13, 2, v12"); a("v_and_b32 v12, 3, v12")
    a("v_lshl_add_u32 v14, v11, 3, v13"); a("v_mul_u32_u24 v14, 40, v14")
    a("v_lshrrev_b32 v15, 4, v0"); a("v_and_b32 v15, 1, v15"); a("v_lshl_add_u32 v14, v15, 5, v14")
    a("v_lshl_add_u32 v14, v12, 3, v14"); a(f"v_add_u32 v15, {KV_WK}, v14")
    for r in range(17,23): a(f"v_mov_b32 v{r}, 0")
    for r in range(64,96): a(f"v_mov_b32 v{r}, 0")
    a("s_mov_b32 s61, 0")
    a.vm=["w"]*8+["d0"]*4+["d1"]*4+["d2"]*4
    a.wait_vm("d0"); a("s_barrier")
    def set_ra(a):
        for ks in range(4): a(f"v_add_u32 v{11+ks}, s61, v{6+ks}")
        a("s_add_u32 s61, s61, 32768"); a(f"s_cmp_eq_u32 s61, {3*32768}"); a("s_cselect_b32 s61, 0, s61")
    def kreads(ks, adv=0):
        st=ks&1; R=[(f"ds_read_b128 {xf(st,0)}, v{11+ks}", f"f{st}")]
        for m in range(2):
            b=WF+st*8+m*4
            for jj in range(2):
                R.append((f"ds_read_b64_tr_b16 v[{b+2*jj}:{b+2*jj+1}], v15 offset:{m*(KV_WV-KV_WK)+(16*ks+4*jj)*40+adv}", f"f{st}"))
        return R
    set_ra(a)
    for t,tag in kreads(0): a(t,tag)
    def kstage(a, dma_tag, wait_tag, nxt):
        for ks in range(4):
            st=ks&1
            if ks==3:
                a.wait_lg0()
                if nxt:
                    a.wait_vm(wait_tag)
                    if dma_tag: dmak(a, dma_tag)
                    set_ra(a)
                    a("v_add_u32 v15, 2560, v15")
                R = kreads(0) if nxt else []
            else:
                a.wait_lg(f"f{st}"); R=kreads(ks+1)
            xb=XF+st*8
            a(f"v_mfma_f32_32x32x16_bf16 v[64:79], {wf(st,0)}, {xf(st,0)}, v[64:79]")
            for t,tag in R[:3]: a(t,tag)
            a(f"v_mfma_f32_32x32x16_bf16 v[80:95], {xf(st,0)}, {wf(st,1)}, v[80:95]")
            for t,tag in R[3:]: a(t,tag)
            for i in range(4):
                a(f"v_dot2_f32_bf16 v{17+(i&1)}, v{xb+i}, s66, v{17+(i&1)}")
                a(f"v_dot2_f32_bf16 v{19+(i&1)}, v{xb+i}, v{xb+i}, v{19+(i&1)}")
                for m in range(2): a(f"v_dot2_f32_bf16 v{21+m}, v{WF+st*8+m*4+i}, s66, v{21+m}")
    a.vm=["A"]*4+["B"]*4
    def kbody(t):
        kstage(t,"C","A",True); t.vm=[{"B":"A","C":"B"}[x] for x in t.vm]
    def ktail(t):
        t("s_sub_u32 s62, s62, 1"); t("s_cmp_lg_u32 s62, 0"); t("s_cbranch_scc1 K1_KVLOOP")
    a("s_mov_b32 s62, 7")
    a.loop("K1_KVLOOP", kbody, ktail)
    kstage(a,None,"A",True); kstage(a,None,"B",True); kstage(a,None,None,False)
    stats_final(a,"v17","v18","v19","v20","v24","v25","v60","v61")
    a("v_and_b32 v24, 31, v0"); a("s_lshl_b32 s63, s52, 7"); a(f"s_add_u32 s63, s63, {KV_ST}"); a("v_lshlrev_b32 v25, 2, v24"); a("v_add_u32 v25, s63, v25")
    a(f"ds_write_b32 v25, v61")
    for m in range(2):
        a(f"v_mov_b32 v{26+m}, v{21+m}")
    for m in range(2):
        a(f"v_permlane32_swap_b32 v{21+m}, v{26+m}")
    for m in range(2):
        a(f"v_add_f32 v{21+m}, v{21+m}, v{26+m}")
    a("v_cmp_gt_u32 vcc, 32, v0")
    aug_x(a,"v60",44)
    aug_w(a,"v21",48,"v26","v27"); aug_w(a,"v22",52,"v26","v27")
    a("v_mfma_f32_32x32x16_bf16 v[64:79], v[48:51], v[44:47], v[64:79]")
    a("v_mfma_f32_32x32x16_bf16 v[80:95], v[44:47], v[52:55], v[80:95]")
    a("v_lshrrev_b32 v26, 5, v0"); a("v_lshlrev_b32 v26, 4, v26"); a("v_add_u32 v26, s63, v26")
    a.wait_lg0()
    for g in range(4): a(f"ds_read_b128 v[{28+4*g}:{31+4*g}], v26 offset:{32*g}")
    a("s_lshl_b32 s72, s55, 3"); a("s_add_u32 s72, s72, s52"); a("s_mul_i32 s73, s72, 2560"); a(f"s_add_u32 s73, s73, {L.KV}")
    for i in range(12): a(f"v_mul_f32 v{64+i}, v61, v{64+i}")
    for i in range(6): a(f"v_cvt_pk_bf16_f32 v{96+i}, v{64+2*i}, v{65+2*i}")
    a("buffer_store_dwordx4 v[96:99], v16, s[48:51], s73 offen")
    a("v_cndmask_b32 v100, 0, v100, vcc"); a("v_cndmask_b32 v101, 0, v101, vcc")
    a("v_mov_b32 v102, 0")
    for i in range(6): a(f"v_dot2_f32_bf16 v102, v{96+i}, v{96+i}, v102")
    a("v_lshlrev_b32 v27, 3, v0")
    a("s_and_saveexec_b64 s[78:79], vcc")
    a("buffer_store_dwordx2 v[100:101], v27, s[48:51], s73 offen offset:1024")
    a("s_mov_b64 exec, s[78:79]")
    a("v_mov_b32 v103, v102"); a("v_permlane32_swap_b32 v102, v103"); a("v_add_f32 v102, v102, v103")
    for x in (1,2,4,8,16):
        a(f"ds_swizzle_b32 v103, v102 offset:0x{(x<<10)|0x1f:04x}"); a.wait_lg0(); a("v_max_f32 v102, v102, v103")
    a("s_lshl_b32 s74, s72, 2"); a(f"s_add_u32 s74, s74, {L.KN}")
    a("v_mov_b32 v104, 0")
    a("v_cmp_eq_u32 vcc, 0, v0")
    a("s_and_saveexec_b64 s[78:79], vcc")
    a("buffer_store_dword v102, v104, s[48:51], s74 offen")
    a("s_mov_b64 exec, s[78:79]")
    for i in range(16): a(f"v_mul_f32 v{80+i}, v{28+i}, v{80+i}")
    for i in range(8): a(f"v_cvt_pk_bf16_f32 v{104+i}, v{80+2*i}, v{81+2*i}")
    a("v_lshrrev_b32 v26, 5, v0"); a("v_mul_u32_u24 v26, 320, v26"); a("v_lshl_add_u32 v26, v24, 4, v26")
    a("v_cmp_gt_u32 vcc, 20, v24")
    a("s_and_saveexec_b64 s[78:79], vcc")
    a("buffer_store_dwordx4 v[104:107], v26, s[48:51], s73 offen offset:1280")
    a("buffer_store_dwordx4 v[108:111], v26, s[48:51], s73 offen offset:1920")
    a("s_mov_b64 exec, s[78:79]")
    a("s_branch K1_END")

    a.label("K1_RELAY")
    a.ev={}; a.vm=[]; a.lg=[]
    a("s_sub_u32 s70, s56, 30"); a("s_lshl_b32 s70, s70, 3"); a("s_add_u32 s70, s70, s55")
    a("s_lshl_b32 s70, s70, 1"); a("s_add_u32 s70, s70, s54")
    a("s_mul_i32 s71, s53, 320")
    for i in range(5):
        a(f"v_add_u32 v10, {64*i}, v0"); a("v_mul_u32_u24 v11, 3277, v10"); a("v_lshrrev_b32 v11, 16, v11")
        a("v_mul_u32_u24 v12, 20, v11"); a("v_sub_u32 v12, v10, v12")
        a("v_lshlrev_b32 v12, 4, v12"); a("v_add_u32 v12, s71, v12")
        a("v_mul_u32_u24 v13, 1280, v11"); a(f"v_add_u32 v{20+i}, v13, v12")
        a("v_lshrrev_b32 v13, 3, v11"); a("v_mul_u32_u24 v13, 80, v13")
        a("v_bfe_u32 v14, v11, 2, 1"); a("v_mul_u32_u24 v14, 20, v14"); a("v_and_b32 v15, 3, v11")
        a("v_add3_u32 v13, v13, v14, v15"); a("v_mul_u32_u24 v13, 1280, v13"); a(f"v_add_u32 v{25+i}, v13, v12")
    a("s_mul_i32 s65, s52, 20480")
    a("v_lshrrev_b32 v11, 5, v0"); a("v_and_b32 v12, 15, v0"); a("v_lshrrev_b32 v13, 2, v12"); a("v_and_b32 v12, 3, v12")
    a("v_lshl_add_u32 v14, v11, 2, v13"); a("v_mul_u32_u24 v14, 320, v14")
    a("v_lshrrev_b32 v15, 4, v0"); a("v_and_b32 v15, 1, v15"); a("v_lshl_add_u32 v14, v15, 5, v14")
    a("v_lshl_add_u32 v14, v12, 3, v14"); a("v_add_u32 v30, s65, v14")
    def issue(a, r):
        a(f"s_add_u32 s72, s70, {32*r}")
        a(f"s_add_u32 s76, s65, {5120*(r&3)}")
        a("s_cmp_ge_u32 s72, 96"); a(f"s_cbranch_scc1 K1_RI_WO{r}")
        srd(a,40,32,1536*1280)
        a(f"s_mul_i32 s73, s72, {16*1280}")
        a(f"s_branch K1_RI_REG{r}")
        a.label(f"K1_RI_WO{r}")
        srd(a,40,24,640*1280)
        a("s_sub_u32 s72, s72, 96")
        a(f"s_mul_i32 s73, s72, {20*1280}")
        a("s_cmp_lt_u32 s72, 32"); a(f"s_cbranch_scc1 K1_RI_REG{r}")
        a("s_sub_u32 s72, s72, 32"); a("s_lshr_b32 s73, s72, 1"); a("s_lshl_b32 s73, s73, 3"); a("s_and_b32 s72, s72, 1"); a("s_lshl_b32 s72, s72, 1")
        a("s_add_u32 s73, s73, s72"); a("s_mul_i32 s73, s73, 20"); a("s_add_u32 s73, s73, 16"); a("s_mul_i32 s73, s73, 1280")
        for i in range(5):
            a(f"s_add_u32 m0, s76, {1024*i}"); a("s_nop 0")
            a.raw(f"    buffer_load_dwordx4 v{25+i}, s[40:43], s73 offen lds")
        a(f"s_branch K1_RI_DONE{r}")
        a.label(f"K1_RI_REG{r}")
        for i in range(5):
            a(f"s_add_u32 m0, s76, {1024*i}"); a("s_nop 0")
            a(f"buffer_load_dwordx4 v{20+i}, s[40:43], s73 offen lds", f"u{r}")
        a.label(f"K1_RI_DONE{r}")
    def process(a, r):
        a(f"s_add_u32 s72, s70, {32*r}"); a("s_mul_i32 s72, s72, 20480"); a("s_mul_i32 s73, s53, 5120")
        a("s_add_u32 s72, s72, s73"); a(f"s_add_u32 s72, s72, {L.W2F}"); a("s_add_u32 s73, s72, 4096")
        for c in range(5):
            for jj in range(2):
                a(f"ds_read_b64_tr_b16 v[{32+4*c+2*jj}:{33+4*c+2*jj}], v30 offset:{5120*(r&3)+2560*jj+64*c}", f"c{c}")
        for c in range(5):
            a.wait_lg(f"c{c}")
            a(f"buffer_store_dwordx4 v[{32+4*c}:{35+4*c}], v16, s[48:51], {'s72' if c<4 else 's73'} offen offset:{1024*(c&3)}", "st")
    assert L.W2F+96*20480==L.WOF
    for r in range(4): issue(a,r)
    a.wait_vm("u0"); process(a,0)
    a("s_cmp_ge_u32 s70, 8"); a("s_cbranch_scc1 K1_RI_NO5")
    sv=list(a.vm)
    issue(a,4)
    a.label("K1_RI_NO5")
    a.wait_vm0()
    for r in range(1,4): process(a,r)
    a("s_cmp_ge_u32 s70, 8"); a("s_cbranch_scc1 K1_END")
    a.settle()
    process(a,4)
    a.label("K1_END")
    a("s_endpgm")
    return a.text(), dict(vgpr=128, sgpr=96, lds=163840, block=512, grid=256)
if __name__=='__main__':
    t,_=k1(); print(t)
```

```python
from asmlib import Asm
import layout as L
from k1 import srd, f2u
THR=48.0

QA1,QA2,QB1,QB2=4,8,12,16
def K1b(p): return f"v[{20+8*p}:{23+8*p}]"
def K2b(p): return f"v[{24+8*p}:{27+8*p}]"
def K2lo(p): return f"v[{24+8*p}:{25+8*p}]"
def Vb(p,x): b=36+8*p+4*x; return f"v[{b}:{b+3}]"
PA,PB=52,60
SA,SB=68,84
OA,OB=100,116
CA,CB=132,148
def r16(b): return f"v[{b}:{b+15}]"
def r4(b): return f"v[{b}:{b+3}]"

def wg_decode(a):
    a("s_and_b32 s63, s2, 7"); a("s_lshr_b32 s67, s2, 3")
    a("s_lshl_b32 s55, s63, 3"); a("s_lshr_b32 s68, s67, 2"); a("s_add_u32 s55, s55, s68")
    a("s_and_b32 s56, s67, 3")

def k2():
    a=Asm()
    a.raw(".globl k2_kernel\n.p2align 8\n.type k2_kernel,@function\nk2_kernel:")
    a("s_cmp_ge_u32 s2, 256"); a("s_cbranch_scc1 K2_END")
    a("s_load_dwordx2 s[16:17], s[0:1], 0")
    a("s_load_dwordx2 s[34:35], s[0:1], 88")
    a("v_lshrrev_b32 v1, 6, v0"); a("v_readfirstlane_b32 s52, v1"); a("v_and_b32 v0, 63, v0")
    wg_decode(a)
    a("s_waitcnt lgkmcnt(0)")
    srd(a,48,34,L.WS_END)
    a("s_cmp_ge_u32 s52, 4"); a("s_cbranch_scc1 K2_GEMM")
    a("s_setprio 2")
    a("v_lshlrev_b32 v1, 4, v0")
    a("v_lshlrev_b32 v164, 2, v0"); a(f"s_mov_b32 s60, {L.KN}")
    a("buffer_load_dword v165, v164, s[48:51], s60 offen","kn")
    a("v_and_b32 v166, 7, v0"); a("s_lshl_b32 s63, s56, 3"); a("v_add_u32 v166, s63, v166")
    a("v_bfe_u32 v167, v0, 3, 2")
    a("v_lshrrev_b32 v168, 5, v0")
    a("s_lshl_b32 s63, s52, 3"); a("v_add_u32 v167, s63, v167")
    a("v_mul_u32_u24 v167, 5, v167")
    a(f"s_mul_i32 s61, s55, {40*1024}")
    def qaddr(dst, p):
        a(f"v_lshrrev_b32 v170, 2, {p}"); a("v_lshlrev_b32 v170, 10, v170")
        a(f"v_and_b32 v171, 1, {p}"); a("v_lshl_add_u32 v171, v171, 5, v166"); a("v_lshl_add_u32 v170, v171, 4, v170")
        a(f"v_bfe_u32 v171, {p}, 1, 1"); a(f"v_lshl_add_u32 {dst}, v171, 3, v170")
    for X,(q1,q2) in enumerate(((QA1,QA2),(QB1,QB2))):
        a(f"v_add_u32 v169, {20*X}, v167"); a("v_add_u32 v172, v169, v168")
        qaddr("v173","v172"); a(f"buffer_load_dwordx2 v[{q1}:{q1+1}], v173, s[48:51], s61 offen","q")
        a("v_add_u32 v172, 2, v172")
        qaddr("v174","v172"); a(f"buffer_load_dwordx2 v[{q1+2}:{q1+3}], v174, s[48:51], s61 offen","q")
        a("v_add_u32 v172, 4, v169")
        qaddr("v175","v172"); a(f"buffer_load_dwordx2 v[{q2}:{q2+1}], v175, s[48:51], s61 offen","q")
    a("s_lshl_b32 s62, s52, 10"); a(f"s_add_u32 s63, s62, {L.KV}")
    for m in range(40):
        a("s_mov_b32 m0, s62")
        a("s_add_u32 s62, s62, 4096")
        a("buffer_load_dwordx4 v1, s[48:51], s63 offen lds", "c0" if m<5 else "c1")
        a("s_add_u32 s63, s63, 4096")
    a("v_and_b32 v164, 31, v0")
    a("v_lshlrev_b32 v2, 3, v164"); a("v_add_u32 v2, 1024, v2")
    a("v_mul_u32_u24 v3, 320, v168"); a("v_lshl_add_u32 v3, v164, 4, v3"); a("v_add_u32 v3, 1280, v3")
    a("v_cmp_gt_u32 vcc, 20, v164"); a("s_mov_b64 s[70:71], vcc")
    a("v_and_b32 v169, 27, v164"); a("v_cmp_eq_u32 vcc, 24, v169")
    a("v_mov_b32 v169, 0x3f803f80"); a("v_cndmask_b32 v169, 0, v169, vcc")
    for r in range(36,52): a(f"v_mov_b32 v{r}, v169")
    for r in (26,27,34,35): a(f"v_mov_b32 v{r}, 0")
    for r in range(PA,PA+16): a(f"v_mov_b32 v{r}, 0")
    for r in range(OA,OA+32): a(f"v_mov_b32 v{r}, 0")
    a.wait_vm("kn")
    a("v_mov_b32 v169, v165"); a("v_permlane32_swap_b32 v165, v169"); a("v_max_f32 v165, v165, v169")
    for x in (1,2,4,8,16):
        a(f"ds_swizzle_b32 v169, v165 offset:0x{(x<<10)|0x1f:04x}"); a.wait_lg0(); a("v_max_f32 v165, v165, v169")
    a.wait_vm("q")
    a("v_cmp_gt_u32 vcc, 32, v0")
    for q2 in (QA2,QB2):
        a(f"v_cndmask_b32 v{q2}, 0, v{q2}, vcc"); a(f"v_cndmask_b32 v{q2+1}, 0, v{q2+1}, vcc")
        a(f"v_mov_b32 v{q2+2}, 0"); a(f"v_mov_b32 v{q2+3}, 0")
    for X,q in enumerate((QA1,QB1)):
        a(f"v_mov_b32 v{170+X}, 0")
        for i in range(6): a(f"v_dot2_f32_bf16 v{170+X}, v{q+i}, v{q+i}, v{170+X}")
    for X in range(2): a(f"v_mov_b32 v{172+X}, v{170+X}")
    for X in range(2): a(f"v_permlane32_swap_b32 v{170+X}, v{172+X}")
    for X in range(2):
        a(f"v_add_f32 v{170+X}, v{170+X}, v{172+X}"); a(f"v_mul_f32 v{170+X}, v{170+X}, v165")
        a(f"v_sqrt_f32 v{170+X}, v{170+X}"); a(f"v_mul_f32 v{170+X}, 0x{f2u(1.01):08x}, v{170+X}")
    a("v_max_f32 v172, v170, v171")
    a(f"v_cmp_ge_f32 vcc, 0x{f2u(THR):08x}, v172")
    a("s_mov_b32 s72, 0x881")
    a.wait_vm("c0"); a("s_barrier")
    a("s_cmp_eq_u64 vcc, exec"); a("s_cbranch_scc1 K2_FAST")
    a.wait_vm0(); a("s_barrier")
    a("s_mov_b32 s72, 0x880")
    a("v_mov_b32 v170, 0xff800000"); a("v_mov_b32 v171, 0xff800000")
    a("v_mov_b32 v174, v1"); a("v_mov_b32 v175, v2"); a("s_mov_b32 s73, 64")
    a.settle()
    a.label("K2_PRE")
    a(f"ds_read_b128 {K1b(0)}, v174"); a(f"ds_read_b64 {K2lo(0)}, v175")
    a("v_add_u32 v174, 2560, v174"); a("v_add_u32 v175, 2560, v175")
    a.wait_lg0()
    a(f"v_mfma_f32_32x32x16_bf16 {r16(SA)}, {K1b(0)}, {r4(QA1)}, 0")
    a(f"v_mfma_f32_32x32x16_bf16 {r16(SB)}, {K1b(0)}, {r4(QB1)}, 0")
    a(f"v_mfma_f32_32x32x16_bf16 {r16(SA)}, {K2b(0)}, {r4(QA2)}, {r16(SA)}")
    a(f"v_mfma_f32_32x32x16_bf16 {r16(SB)}, {K2b(0)}, {r4(QB2)}, {r16(SB)}")
    for i in range(0,16,2): a(f"v_max3_f32 v170, v{SA+i}, v{SA+i+1}, v170")
    for i in range(0,16,2): a(f"v_max3_f32 v171, v{SB+i}, v{SB+i+1}, v171")
    a("s_sub_u32 s73, s73, 1"); a("s_cmp_lg_u32 s73, 0")
    a.settle()
    a("s_cbranch_scc1 K2_PRE")
    for X in range(2): a(f"v_mov_b32 v{172+X}, v{170+X}")
    for X in range(2): a(f"v_permlane32_swap_b32 v{170+X}, v{172+X}")
    for X in range(2): a(f"v_max_f32 v{170+X}, v{170+X}, v{172+X}")
    a.settle()
    a.label("K2_FAST")
    a.vm=[];
    for i in range(16):
        a(f"v_sub_f32 v{CA+i}, 0, v170"); a(f"v_sub_f32 v{CB+i}, 0, v171")
    a(f"ds_read_b128 {K1b(0)}, v1"); a(f"ds_read_b64 {K2lo(0)}, v2")
    a(f"ds_read_b128 {K1b(1)}, v1 offset:2560"); a(f"ds_read_b64 {K2lo(1)}, v2 offset:2560")
    a("s_mov_b64 exec, s[70:71]")
    a(f"ds_read_b128 {Vb(0,0)}, v3"); a(f"ds_read_b128 {Vb(0,1)}, v3 offset:640")
    a("s_mov_b64 exec, -1")
    a.wait_lg0()
    a(f"v_mfma_f32_32x32x16_bf16 {r16(SA)}, {K1b(0)}, {r4(QA1)}, {r16(CA)}")
    a(f"v_mfma_f32_32x32x16_bf16 {r16(SA)}, {K2b(0)}, {r4(QA2)}, {r16(SA)}")
    def phase(t, mf, S, P, extra):
        valu=[]
        E=[f"v_exp_f32 v{S+i}, v{S+i}" for i in range(16)]
        C=[f"v_cvt_pk_bf16_f32 v{P+i}, v{S+2*i}, v{S+2*i+1}" for i in range(8)]
        groups=[E[0:4], [E[4],C[0],E[5],C[1],E[6],E[7]], [E[8],C[2],E[9],C[3],E[10],E[11]], [E[12],C[4],E[13],C[5],E[14],E[15],C[6],C[7]]]
        for k in range(4):
            t(mf[k])
            if k==1:
                for x in extra: t(x)
            for x in groups[k]: t(x)
    def tile(t, j):
        p=j&1
        mf=[f"v_mfma_f32_32x32x16_bf16 {r16(SB)}, {K1b(p)}, {r4(QB1)}, {r16(CB)}",
            f"v_mfma_f32_32x32x16_bf16 {r16(SB)}, {K2b(p)}, {r4(QB2)}, {r16(SB)}",
            f"v_mfma_f32_32x32x16_bf16 {r16(OB)}, {Vb(1-p,0)}, {r4(PB)}, {r16(OB)}",
            f"v_mfma_f32_32x32x16_bf16 {r16(OB)}, {Vb(1-p,1)}, {r4(PB+4)}, {r16(OB)}"]
        phase(t, mf, SA, PA, [])
        t.wait_lg0()
        mf=[f"v_mfma_f32_32x32x16_bf16 {r16(SA)}, {K1b(1-p)}, {r4(QA1)}, {r16(CA)}",
            f"v_mfma_f32_32x32x16_bf16 {r16(SA)}, {K2b(1-p)}, {r4(QA2)}, {r16(SA)}",
            f"v_mfma_f32_32x32x16_bf16 {r16(OA)}, {Vb(p,0)}, {r4(PA)}, {r16(OA)}",
            f"v_mfma_f32_32x32x16_bf16 {r16(OA)}, {Vb(p,1)}, {r4(PA+4)}, {r16(OA)}"]
        ex=[f"ds_read_b128 {K1b(p)}, v1 offset:{2560*(j+2)}", f"ds_read_b64 {K2lo(p)}, v2 offset:{2560*(j+2)}",
            "s_mov_b64 exec, s[70:71]",
            f"ds_read_b128 {Vb(1-p,0)}, v3 offset:{2560*(j+1)}", f"ds_read_b128 {Vb(1-p,1)}, v3 offset:{2560*(j+1)+640}",
            "s_mov_b64 exec, -1"]
        phase(t, mf, SB, PB, ex)
    a("s_mov_b32 s73, 0")
    a.lg=[None]*4
    def body(t):
        for j in range(4): tile(t,j)
    def tail(t):
        for r in (1,2,3): t(f"v_add_u32 v{r}, 10240, v{r}")
        t("s_bitcmp1_b32 s72, s73")
        def bar(t2):
            t2.raw("    s_waitcnt vmcnt(0)"); t2.raw("    s_barrier")
        t.cond_block("s_cbranch_scc0 K2_NOBAR","K2_NOBAR",bar)
        t("s_add_u32 s73, s73, 1"); t("s_cmp_lg_u32 s73, 16"); t("s_cbranch_scc1 K2_LOOP")
    a.loop("K2_LOOP", body, tail)
    a(f"v_mfma_f32_32x32x16_bf16 {r16(OB)}, {Vb(1,0)}, {r4(PB)}, {r16(OB)}")
    a(f"v_mfma_f32_32x32x16_bf16 {r16(OB)}, {Vb(1,1)}, {r4(PB+4)}, {r16(OB)}")
    a.wait_lg0()
    a("v_bfe_u32 v167, v0, 3, 2")
    a("v_lshlrev_b32 v169, 10, v167"); a("v_lshl_add_u32 v169, v168, 9, v169"); a("v_lshl_add_u32 v169, v166, 4, v169")
    a(f"s_mul_i32 s61, s55, {40*1024}"); a(f"s_add_u32 s61, s61, {L.OF}")
    a("s_lshl_b32 s63, s52, 13"); a("s_add_u32 s62, s61, s63"); a("s_add_u32 s63, s62, 4096")
    a("v_lshrrev_b32 v174, 1, v167"); a("v_lshlrev_b32 v174, 10, v174"); a("v_and_b32 v175, 1, v167")
    a("v_lshl_add_u32 v174, v175, 9, v174"); a("v_lshl_add_u32 v174, v166, 4, v174")
    a("s_lshl_b32 s64, s52, 11"); a("s_add_u32 s64, s64, s61"); a("s_add_u32 s64, s64, 32768")
    for X,O in enumerate((OA,OB)):
        a(f"v_rcp_f32 v170, v{O+12}")
        for i in range(12): a(f"v_mul_f32 v{O+i}, v170, v{O+i}")
        for i in range(4): a(f"v_cvt_pk_bf16_f32 v{176+4*X+i}, v{O+2*i}, v{O+2*i+1}")
        for i in range(2): a(f"v_cvt_pk_bf16_f32 v{184+2*X+i}, v{O+8+2*i}, v{O+9+2*i}")
        a(f"buffer_store_dwordx4 {r4(176+4*X)}, v169, s[48:51], s{62+X} offen")
    a("v_cmp_gt_u32 vcc, 32, v0")
    a("s_and_saveexec_b64 s[78:79], vcc")
    a("buffer_store_dwordx4 v[184:187], v174, s[48:51], s64 offen")
    a("s_branch K2_END")

    a.label("K2_GEMM")
    a.ev={}; a.vm=[]; a.lg=[]
    srd(a,36,16,2048*1280)
    a("s_sub_u32 s53, s52, 4")
    a("v_lshlrev_b32 v1, 4, v0"); a("v_add_u32 v2, 4096, v1")
    a(f"s_mul_i32 s60, s55, {96*1024}"); a(f"s_mul_i32 s63, s53, {24*1024}"); a("s_add_u32 s60, s60, s63"); a(f"s_add_u32 s60, s60, {L.HF}")
    a(f"s_mul_i32 s61, s53, {24*20480}"); a(f"s_mul_i32 s63, s56, 5120"); a("s_add_u32 s61, s61, s63"); a(f"s_add_u32 s61, s61, {L.W2F}")
    def ld(t, s):
        b=84+24*s
        t(f"buffer_load_dwordx4 {r4(b)}, v1, s[48:51], s60 offen", f"s{s}")
        for c in range(4): t(f"buffer_load_dwordx4 {r4(b+4+4*c)}, v1, s[48:51], s61 offen offset:{1024*c}", f"s{s}")
        t(f"buffer_load_dwordx4 {r4(b+20)}, v2, s[48:51], s61 offen", f"s{s}")
        t("s_add_u32 s60, s60, 1024"); t("s_add_u32 s61, s61, 20480")
    for s in range(4): ld(a,s)
    for r in range(4,84): a(f"v_mov_b32 v{r}, 0")
    a("s_barrier"); a("s_barrier")
    def mm(t, s):
        b=84+24*s
        t.wait_vm(f"s{s}")
        for c in range(5): t(f"v_mfma_f32_32x32x16_bf16 {r16(4+16*c)}, {r4(b+4+4*c)}, {r4(b)}, {r16(4+16*c)}")
    def gbody(t):
        for s in range(4): mm(t,s); ld(t,s)
    def gtail(t):
        t("s_sub_u32 s73, s73, 1"); t("s_cmp_lg_u32 s73, 0"); t("s_cbranch_scc1 K2_GLOOP")
    a("s_mov_b32 s73, 5")
    a.loop("K2_GLOOP", gbody, gtail)
    for s in range(4): mm(a,s)
    a("v_and_b32 v3, 31, v0"); a("s_lshl_b32 s63, s55, 5"); a("v_add_u32 v3, s63, v3"); a("v_mul_u32_u24 v3, 1280, v3")
    a("v_lshrrev_b32 v84, 5, v0"); a("v_lshl_add_u32 v3, v84, 3, v3")
    a("s_mul_i32 s62, s56, 320"); a("s_lshl_b32 s63, s53, 4"); a("s_add_u32 s62, s62, s63")
    for c in range(5): a(f"buffer_load_dwordx2 v[{180+2*c}:{181+2*c}], v3, s[36:39], s62 offen offset:{64*c}","x")
    a("s_mul_i32 s63, s53, 20480"); a("v_add_u32 v84, s63, v1")
    a("s_lshl_b32 s63, s53, 10"); a("v_add_u32 v85, s63, v1"); a("v_add_u32 v86, 40960, v85")
    a("s_barrier")
    for c in range(5):
        for g in range(4): a(f"ds_write_b128 v84, {r4(4+16*c+4*g)} offset:{(c*4+g)*1024}")
    a.wait_lg0(); a("s_barrier")
    for c in range(5):
        for s in range(4): a(f"ds_read_b128 {r4(88+16*c+4*s)}, v{85+(s>>1)} offset:{(s&1)*20480+c*4096}", f"r{c}")
    a("s_mul_i32 s62, s2, 20480"); a("s_lshl_b32 s63, s53, 10"); a("s_add_u32 s62, s62, s63"); a(f"s_add_u32 s62, s62, {L.Y0}")
    a.wait_vm("x")
    for c in range(5):
        a.wait_lg(f"r{c}")
        b=88+16*c
        a(f"v_lshlrev_b32 v4, 16, v{180+2*c}"); a(f"v_and_b32 v5, 0xffff0000, v{180+2*c}")
        a(f"v_lshlrev_b32 v6, 16, v{181+2*c}"); a(f"v_and_b32 v7, 0xffff0000, v{181+2*c}")
        for i in range(4):
            a(f"v_add_f32 v{b+i}, v{b+i}, v{b+4+i}"); a(f"v_add_f32 v{b+8+i}, v{b+8+i}, v{b+12+i}")
        for i in range(4):
            a(f"v_add_f32 v{b+i}, v{b+i}, v{b+8+i}")
        for i in range(4):
            a(f"v_add_f32 v{b+i}, v{b+i}, v{4+i}")
        a(f"buffer_store_dwordx4 {r4(b)}, v1, s[48:51], s62 offen")
        a("s_add_u32 s62, s62, 4096")
    a.label("K2_END")
    a("s_endpgm")
    return a.text(), dict(vgpr=192, sgpr=96, lds=163840, block=512, grid=256)

def k3():
    a=Asm()
    a.raw(".globl k3_kernel\n.p2align 8\n.type k3_kernel,@function\nk3_kernel:")
    a("s_cmp_ge_u32 s2, 256"); a("s_cbranch_scc1 K3_END")
    a("s_load_dwordx2 s[16:17], s[0:1], 72")
    a("s_load_dwordx2 s[34:35], s[0:1], 88")
    a("v_lshrrev_b32 v1, 6, v0"); a("v_readfirstlane_b32 s53, v1"); a("v_and_b32 v0, 63, v0")
    wg_decode(a)
    a("v_lshlrev_b32 v1, 4, v0"); a("v_add_u32 v2, 4096, v1")
    a(f"s_mul_i32 s60, s55, {40*1024}"); a(f"s_mul_i32 s63, s53, {10*1024}"); a("s_add_u32 s60, s60, s63"); a(f"s_add_u32 s60, s60, {L.OF}")
    a(f"s_mul_i32 s61, s53, {10*20480}"); a(f"s_mul_i32 s63, s56, 5120"); a("s_add_u32 s61, s61, s63"); a(f"s_add_u32 s61, s61, {L.WOF}")
    a("s_waitcnt lgkmcnt(0)")
    srd(a,48,34,L.WS_END); srd(a,36,16,2048*1280)
    for s in range(10):
        b=8+24*s
        a(f"buffer_load_dwordx4 {r4(b)}, v1, s[48:51], s60 offen", f"s{s}")
        for c in range(4): a(f"buffer_load_dwordx4 {r4(b+4+4*c)}, v1, s[48:51], s61 offen offset:{1024*c}", f"s{s}")
        a(f"buffer_load_dwordx4 {r4(b+20)}, v2, s[48:51], s61 offen", f"s{s}")
        a("s_add_u32 s60, s60, 1024"); a("s_add_u32 s61, s61, 20480")
    a("s_mul_i32 s62, s2, 20480"); a("s_lshl_b32 s63, s53, 10"); a("s_add_u32 s62, s62, s63"); a(f"s_add_u32 s62, s62, {L.Y0}")
    a("s_mul_i32 s63, s53, 20480"); a("v_add_u32 v4, s63, v1")
    a("s_lshl_b32 s63, s53, 10"); a("v_add_u32 v5, s63, v1"); a("v_add_u32 v6, 40960, v5")
    a("v_and_b32 v3, 31, v0"); a("s_lshl_b32 s63, s55, 5"); a("v_add_u32 v3, s63, v3"); a("v_mul_u32_u24 v3, 1280, v3")
    a("v_lshrrev_b32 v7, 5, v0"); a("v_lshl_add_u32 v3, v7, 3, v3")
    a("s_mul_i32 s64, s56, 320"); a("s_lshl_b32 s63, s53, 4"); a("s_add_u32 s64, s64, s63")
    for s in range(10):
        b=8+24*s
        a.wait_vm(f"s{s}")
        for c in range(5):
            C="0" if s==0 else f"a[{16*c}:{16*c+15}]"
            a(f"v_mfma_f32_32x32x16_bf16 a[{16*c}:{16*c+15}], {r4(b+4+4*c)}, {r4(b)}, {C}")
        if s==1:
            for c in range(5):
                a(f"buffer_load_dwordx4 {r4(8+4*c)}, v1, s[48:51], s62 offen", "y")
                a("s_add_u32 s62, s62, 4096")
    for c in range(5):
        for g in range(4): a(f"ds_write_b128 v4, a[{16*c+4*g}:{16*c+4*g+3}] offset:{(c*4+g)*1024}")
    a.wait_lg0(); a("s_barrier")
    for c in range(5):
        for s in range(4): a(f"ds_read_b128 {r4(88+16*c+4*s)}, v{5+(s>>1)} offset:{(s&1)*20480+c*4096}", f"r{c}")
    a.wait_vm("y")
    for c in range(5):
        a.wait_lg(f"r{c}")
        b=88+16*c
        for i in range(4):
            a(f"v_add_f32 v{b+i}, v{b+i}, v{b+4+i}"); a(f"v_add_f32 v{b+8+i}, v{b+8+i}, v{b+12+i}")
        for i in range(4): a(f"v_add_f32 v{b+i}, v{b+i}, v{b+8+i}")
        for i in range(4): a(f"v_add_f32 v{b+i}, v{b+i}, v{8+4*c+i}")
        a(f"v_cvt_pk_bf16_f32 v{b}, v{b}, v{b+1}"); a(f"v_cvt_pk_bf16_f32 v{b+1}, v{b+2}, v{b+3}")
        a(f"buffer_store_dwordx2 v[{b}:{b+1}], v3, s[36:39], s64 offen offset:{64*c}")
    a.label("K3_END")
    a("s_endpgm")
    return a.text(), dict(vgpr=256+80, accum=256, sgpr=96, lds=81920, block=256, grid=256)
```

```python
import numpy as np
T,D,H,DH,F=2048,640,32,20,1536
QF  = 0
HF  = QF + 64*40*1024
KV  = HF + 64*96*1024
KN  = KV + 64*2560
W2F = KN + 1024
WOF = W2F + 96*20*1024
OF  = WOF + 40*20*1024
Y0  = OF + 64*40*1024
STG = Y0 + 256*20*1024
WS_END = STG + 4*2048*8
def bf(u16): return (u16.astype(np.uint32)<<16).view(np.float32)
def slot_col(h,j): return 8*(j>>2)+4*h+(j&3)
def dec_frag32(ws,off,ncols):
    nks=ncols//16
    a=ws[off:off+64*nks*1024].view(np.uint16).reshape(64,nks,2,32,8)
    out=np.zeros((T,ncols),np.float32)
    o=out.reshape(64,32,nks,16)
    for h in range(2):
        for j in range(8):
            o[:,:,:,slot_col(h,j)]=bf(a[:,:,h,:,j]).transpose(0,2,1)
    return out
def dec_kv(ws):
    r=ws[KV:KV+64*2560].reshape(64,2560)
    K=np.zeros((T,20),np.float32); V=np.zeros((T,20),np.float32)
    k1=r[:,:1024].copy().view(np.uint16).reshape(64,2,32,8)
    k2=r[:,1024:1280].copy().view(np.uint16).reshape(64,32,4)
    Kr=K.reshape(64,32,20)
    for h in range(2):
        for j in range(8): Kr[:,:,slot_col(h,j)]=bf(k1[:,h,:,j])
    Kr[:,:,16:20]=bf(k2)
    v=r[:,1280:].copy().view(np.uint16).reshape(64,2,2,20,8)
    Vr=V.reshape(64,32,20)
    for a in range(2):
        for h in range(2):
            for j in range(8): Vr[:,16*a+slot_col(h,j),:]=bf(v[:,a,h,:,j])
    return K,V
def dec_wf(ws,off,nks,krow):
    a=ws[off:off+nks*20*1024].view(np.uint16).reshape(nks,20,2,32,8)
    W=np.zeros((nks*16,640),np.float32)
    for ks in range(nks):
        for h in range(2):
            for j in range(8):
                W[krow(ks,h,j),:]=bf(a[ks,:,h,:,j]).reshape(640)
    return W
def w2_row(ks,h,j): return 16*ks+slot_col(h,j)
def wo_row(ks,h,j):
    if ks<32: return 20*ks+slot_col(h,j)
    w=(ks-32)>>1; u=(ks-32)&1
    return (8*w+4*(j>>2)+2*u+h)*20+16+(j&3)
def dec_w2f(ws): return dec_wf(ws,W2F,96,w2_row)
def dec_wof(ws): return dec_wf(ws,WOF,40,wo_row)
def dec_of(ws):
    a=ws[OF:OF+64*40*1024].view(np.uint16).reshape(64,40,2,32,8)
    O=np.zeros((T,640),np.float32); Or=O.reshape(64,32,640)
    for ks in range(40):
        for h in range(2):
            for j in range(8): Or[:,:,wo_row(ks,h,j)]=bf(a[:,ks,h,:,j])
    return O
def wg_map(i):
    xc=i&7; li=i>>3
    return 8*xc+(li>>2), li&3
def dec_y0(ws):
    a=ws[Y0:Y0+256*20*1024].view(np.float32).reshape(256,5,4,2,32,4)
    Y=np.zeros((T,640),np.float32)
    for i in range(256):
        tg,sub=wg_map(i)
        for c in range(5):
            for g in range(4):
                for h in range(2):
                    col=160*sub+32*c+8*g+4*h
                    Y[32*tg:32*tg+32,col:col+4]=a[i,c,g,h]
    return Y
```

```python
import sys
from k1 import k1
from k2 import k2, k3
ref=open('parallel_sum__grouped_kv_mqa__glu_gated_swiglu__prompt.s.ref').read()
head=[l for l in ref.splitlines() if l.startswith(';') and '@launch' not in l]
ks=[('k1_kernel',)+k1(), ('k2_kernel',)+k2()]
out='\n'.join(head)+'\n'
for n,t,i in ks:
    out+=f"; @launch kernel={n} grid=({i['grid']},1,1) block=({i['block']},1,1) lds={i['lds']}\n"
out+='.amdgcn_target "amdgcn-amd-amdhsa--gfx950"\n.text\n'
for n,t,i in ks: out+=t
out+='.section .rodata,"a"\n'
for n,t,i in ks:
    acc=i.get('accum', (i['vgpr']+3)//4*4)
    out+=f""".p2align 6
.amdhsa_kernel {n}
  .amdhsa_next_free_vgpr {i['vgpr']}
  .amdhsa_next_free_sgpr {i['sgpr']}
  .amdhsa_accum_offset {acc}
  .amdhsa_group_segment_fixed_size 0
  .amdhsa_kernarg_size 96
  .amdhsa_user_sgpr_count 2
  .amdhsa_user_sgpr_kernarg_segment_ptr 1
  .amdhsa_system_sgpr_workgroup_id_x 1
.end_amdhsa_kernel
"""
dst = sys.argv[1] if len(sys.argv)>1 else 'parallel_sum__grouped_kv_mqa__glu_gated_swiglu__prompt.s'
open(dst,'w').write(out)
print('wrote',dst,len(out))
```

```python
import os
import layout as L
DIAG = os.environ.get('DIAG','0')=='1'
DBG_OFF = (L.WS_END + 4095)//4096*4096
def stamp(a, i, real=False):
    if not DIAG: return
    a.raw(f"    {'s_memrealtime' if real else 's_memtime'} s[{80+2*i}:{81+2*i}]")
def dump(a, kidx, wave_sgpr, n=10, vtmp=200, wmul=3):
    if not DIAG: return
    a.raw("    s_waitcnt vmcnt(0) lgkmcnt(0)")
    a.raw("    s_mov_b64 exec, 1")
    a.raw(f"    s_lshl_b32 s78, s2, {wmul}\n    s_add_u32 s78, s78, {wave_sgpr}\n    s_lshl_b32 s78, s78, 6\n    s_add_u32 s78, s78, {DBG_OFF+kidx*262144}")
    a.raw(f"    s_mov_b32 s50, {DBG_OFF+4*262144}")
    a.raw(f"    v_mov_b32 v{vtmp}, 0")
    for i in range(n):
        a.raw(f"    v_mov_b32 v{vtmp+1}, s{80+2*i}\n    s_nop 1\n    buffer_store_dword v{vtmp+1}, v{vtmp}, s[48:51], s78 offen offset:{4*i}\n    s_nop 1")
    a.raw("    s_waitcnt vmcnt(0)")
```

```python
from asmlib import Asm
import layout as L
from diag import stamp, dump, DIAG
import math, struct
def f2u(x): return struct.unpack('<I',struct.pack('<f',x))[0]
LOG2E=math.log2(math.e)

SLOT=49152
STATS=147456
CSP=149504
KV_WK=98304; KV_WV=126976; KV_ST=155648

def srd(a, d, lo, size, add=0):
    if add:
        a(f"s_add_u32 s{d}, s{lo}, {add}"); a(f"s_addc_u32 s{d+1}, s{lo+1}, 0")
    else:
        a(f"s_mov_b32 s{d}, s{lo}"); a(f"s_mov_b32 s{d+1}, s{lo+1}")
    a(f"s_mov_b32 s{d+2}, {size}"); a(f"s_mov_b32 s{d+3}, 0x00020000")

XF=24
WF=40
ACC=64
def xf(st,ts): b=XF+st*8+ts*4; return f"v[{b}:{b+3}]"
def wf(st,m): b=WF+st*8+m*4; return f"v[{b}:{b+3}]"
def acc(ts,m): b=ACC+(ts*2+m)*16; return f"v[{b}:{b+15}]"

def x_dma_setup(a):
    a("v_lshrrev_b32 v1, 3, v0")
    a("s_lshl_b32 s63, s55, 8"); a("s_lshl_b32 s67, s52, 5"); a("s_add_u32 s63, s63, s67")
    a("v_add_u32 v1, s63, v1")
    a("v_mul_u32_u24 v1, 1280, v1")
    a("v_and_b32 v2, 7, v0"); a("v_lshrrev_b32 v3, 4, v0")
    a("v_xor_b32 v2, v2, v3")
    a("v_xor_b32 v4, 4, v2")
    a("v_lshl_add_u32 v5, v2, 4, v1")
    a("v_lshl_add_u32 v6, v4, 4, v1")
    a("v_mov_b32 v1, v5")
    a(f"v_add_u32 v2, {9216}, v6")
    a(f"v_add_u32 v3, {2*9216}, v5")
    a(f"v_add_u32 v4, {3*9216}, v6")

def x_dma(a, tag, lds_sgpr):
    a(f"s_add_u32 m0, {lds_sgpr}, s64")
    for e in range(4):
        a(f"buffer_load_dwordx4 v{1+e}, s[36:39], s57 offen offset:{1024*e} lds", tag)

def xread_setup(a, rowbase_sgpr):
    a("v_and_b32 v10, 31, v0")
    a("v_lshrrev_b32 v11, 1, v10"); a("v_and_b32 v11, 7, v11")
    a("v_lshrrev_b32 v12, 5, v0")
    a(f"v_add_u32 v10, {rowbase_sgpr}, v10"); a("v_lshlrev_b32 v10, 7, v10")
    for ks in range(4):
        a(f"v_add_u32 v13, {2*ks}, v12"); a("v_xor_b32 v13, v13, v11")
        a(f"v_lshl_add_u32 v{6+ks}, v13, 4, v10")

def stats_final(a, s0,s1,q0,q1, t0,t1, negm, rinv):
    a(f"v_add_f32 {s0}, {s0}, {s1}"); a(f"v_add_f32 {q0}, {q0}, {q1}")
    a(f"v_mov_b32 {t0}, {s0}"); a(f"v_mov_b32 {t1}, {q0}")
    a(f"v_permlane32_swap_b32 {s0}, {t0}"); a(f"v_permlane32_swap_b32 {q0}, {t1}")
    a(f"v_add_f32 {s0}, {s0}, {t0}"); a(f"v_add_f32 {q0}, {q0}, {t1}")
    c=f2u(1.0/640)
    a(f"v_mul_f32 {s0}, 0x{c:08x}, {s0}"); a(f"v_mul_f32 {q0}, 0x{c:08x}, {q0}")
    a(f"v_fma_f32 {q0}, -{s0}, {s0}, {q0}"); a(f"v_max_f32 {q0}, 0, {q0}")
    a(f"v_cvt_pk_bf16_f32 {negm}, {s0}, {s0}"); a(f"v_xor_b32 {negm}, 0x80008000, {negm}")
    a(f"v_cvt_pk_bf16_f32 {q0}, {q0}, {q0}"); a(f"v_lshlrev_b32 {q0}, 16, {q0}")
    a(f"v_add_f32 {q0}, 0x{f2u(1e-5):08x}, {q0}")
    a(f"v_cvt_pk_bf16_f32 {q0}, {q0}, {q0}"); a(f"v_lshlrev_b32 {q0}, 16, {q0}")
    a(f"v_sqrt_f32 {q0}, {q0}")
    a(f"v_cvt_pk_bf16_f32 {q0}, {q0}, {q0}"); a(f"v_lshlrev_b32 {q0}, 16, {q0}")
    a(f"v_rcp_f32 {rinv}, {q0}")

def aug_w(a, cs, d, t0, t1):
    a(f"v_cvt_pk_bf16_f32 {t0}, {cs}, {cs}"); a(f"v_lshlrev_b32 {t1}, 16, {t0}")
    a(f"v_sub_f32 {cs}, {cs}, {t1}")
    a(f"v_cvt_pk_bf16_f32 v{d}, {cs}, {cs}"); a(f"v_lshlrev_b32 {t1}, 16, v{d}")
    a(f"v_sub_f32 {cs}, {cs}, {t1}")
    a(f"v_and_b32 {t0}, 0xffff, {t0}"); a(f"v_or_b32 v{d}, {t0}, {t1}")
    a(f"v_cvt_pk_bf16_f32 v{d+1}, {cs}, 0")
    a(f"v_mov_b32 v{d+2}, 0"); a(f"v_mov_b32 v{d+3}, 0")

def aug_x(a, negm, d):
    a(f"v_cndmask_b32 v{d}, 0, {negm}, vcc")
    a(f"v_and_b32 v{d+1}, 0xffff, v{d}")
    a(f"v_mov_b32 v{d+2}, 0"); a(f"v_mov_b32 v{d+3}, 0")

def k1():
    a=Asm()
    a.raw(".globl k1_kernel\n.p2align 8\n.type k1_kernel,@function\nk1_kernel:")
    a("s_cmp_ge_u32 s2, 256"); a("s_cbranch_scc1 K1_END")
    stamp(a,0); stamp(a,8,True)
    a("s_load_dwordx16 s[16:31], s[0:1], 0")
    a("s_load_dwordx2 s[32:33], s[0:1], 64")
    a("s_load_dwordx2 s[34:35], s[0:1], 88")
    a("v_lshrrev_b32 v1, 6, v0"); a("v_readfirstlane_b32 s52, v1"); a("v_and_b32 v0, 63, v0")
    a("s_and_b32 s53, s52, 3"); a("s_lshr_b32 s54, s52, 2")
    a("s_and_b32 s63, s2, 7"); a("s_lshr_b32 s67, s2, 3")
    a("s_lshr_b32 s56, s63, 1"); a("s_lshl_b32 s56, s56, 3"); a("s_lshr_b32 s68, s67, 2"); a("s_add_u32 s56, s56, s68")
    a("s_and_b32 s55, s63, 1"); a("s_lshl_b32 s55, s55, 2"); a("s_and_b32 s68, s67, 3"); a("s_add_u32 s55, s55, s68")
    a("s_mov_b32 s66, 0x3f803f80")
    a("s_lshl_b32 s64, s52, 12")
    a("v_lshlrev_b32 v16, 4, v0")
    a("s_waitcnt lgkmcnt(0)")
    srd(a,48,34,L.WS_END)
    a("s_cmp_ge_u32 s56, 30"); a("s_cbranch_scc1 K1_RELAY")
    srd(a,36,16,2048*1280)
    x_dma_setup(a)
    a("s_mov_b32 s57, 0")
    a("s_cmp_eq_u32 s56, 29"); a("s_cbranch_scc1 K1_KV")
    a("s_cmp_ge_u32 s56, 24"); a("s_cbranch_scc1 K1_QSET")
    srd(a,40,28,640*3072); srd(a,44,30,640*3072)
    a("s_mov_b32 s69, 3072"); a("s_lshl_b32 s70, s56, 7")
    a("s_branch K1_SETDONE")
    a.label("K1_QSET")
    srd(a,40,18,640*1280); srd(a,44,18,640*1280-128,add=128)
    a("s_mov_b32 s69, 1280"); a("s_sub_u32 s70, s56, 24"); a("s_lshl_b32 s70, s70, 8")
    a.label("K1_SETDONE")
    a.settle()
    a("v_lshrrev_b32 v5, 3, v0"); a("s_lshl_b32 s63, s52, 3"); a("v_add_u32 v5, s63, v5")
    a("v_mul_lo_u32 v5, v5, s69")
    a("v_lshrrev_b32 v10, 4, v0"); a("v_and_b32 v10, 1, v10"); a("v_lshlrev_b32 v10, 2, v10")
    a("v_and_b32 v11, 7, v0"); a("v_xor_b32 v10, v10, v11")
    a("v_lshl_add_u32 v5, v10, 4, v5"); a("v_add_u32 v5, s70, v5")
    a("s_mov_b32 s58, 0"); a("s_lshl_b32 s59, s69, 6")
    a("s_lshl_b32 s65, s52, 10"); a("s_add_u32 s65, s65, 32768")
    def dma(a, tag):
        x_dma(a, tag, "s60")
        a("s_add_u32 m0, s60, s65")
        a("s_add_u32 s63, s65, 8192")
        a("buffer_load_dwordx4 v5, s[40:43], s58 offen lds", tag)
        a("s_add_u32 m0, s60, s63")
        a("s_add_u32 s57, s57, 128")
        a("buffer_load_dwordx4 v5, s[44:47], s58 offen lds", tag)
        a("s_add_u32 s58, s58, s59")
        a(f"s_add_u32 s60, s60, {SLOT}"); a(f"s_cmp_eq_u32 s60, {3*SLOT}"); a("s_cselect_b32 s60, 0, s60")
    a("s_mov_b32 s60, 0")
    for s in range(3): dma(a, f"d{s}")
    a("s_lshl_b32 s63, s53, 6"); a("s_lshl_b32 s67, s54, 5"); a("s_add_u32 s63, s63, s67")
    xread_setup(a, "s63")
    a("s_lshl_b32 s67, s54, 13"); a("s_sub_u32 s71, 4096, s67")
    a("v_lshrrev_b32 v11, 5, v0")
    a("v_and_b32 v12, 15, v0"); a("v_lshrrev_b32 v13, 2, v12")
    a("v_and_b32 v12, 3, v12")
    a("v_lshl_add_u32 v14, v11, 3, v13")
    a("v_lshlrev_b32 v14, 7, v14")
    a("v_lshrrev_b32 v15, 4, v0"); a("v_and_b32 v15, 1, v15"); a("v_lshlrev_b32 v15, 1, v15")
    a("v_lshrrev_b32 v11, 1, v12"); a("v_add_u32 v15, v15, v11")
    a("s_lshl_b32 s67, s54, 2"); a("v_add_u32 v15, s67, v15")
    a("v_lshrrev_b32 v13, 1, v13"); a("v_lshlrev_b32 v13, 2, v13"); a("v_xor_b32 v15, v15, v13")
    a("v_lshl_add_u32 v14, v15, 4, v14")
    a("v_and_b32 v12, 1, v12"); a("v_lshl_add_u32 v14, v12, 3, v14")
    a("v_add_u32 v10, 32768, v14")
    for r in range(17,23): a(f"v_mov_b32 v{r}, 0")
    def set_read_addrs(a):
        for ks in range(4):
            a(f"v_add_u32 v{11+ks}, s61, v{6+ks}")
            a(f"v_add_u32 v{56+ks}, s71, v{11+ks}")
        a("v_add_u32 v15, s61, v10")
        a(f"s_add_u32 s61, s61, {SLOT}"); a(f"s_cmp_eq_u32 s61, {3*SLOT}"); a("s_cselect_b32 s61, 0, s61")
    def reads(ks):
        st=ks&1
        R=[]
        R.append((f"ds_read_b128 {xf(st,0)}, v{11+ks}", f"f{st}"))
        for m in range(2):
            b=WF+st*8+m*4
            for jj in range(2):
                R.append((f"ds_read_b64_tr_b16 v[{b+2*jj}:{b+2*jj+1}], v15 offset:{m*8192+(16*ks+4*jj)*128}", f"f{st}"))
        R.insert(3,(f"ds_read_b128 {xf(st,1)}, v{56+ks}", f"f{st}"))
        return R
    a("s_mov_b32 s61, 0")
    stamp(a,1)
    a.wait_vm("d0"); a("s_barrier")
    stamp(a,2)
    set_read_addrs(a)
    for t,tag in reads(0): a(t,tag)
    uid=[0]
    def stage(a, first, dma_tag, wait_tag, nxt):
        for ks in range(4):
            st=ks&1
            if ks==3:
                a.wait_lg0()
                if nxt:
                    a.wait_vm(wait_tag); a("s_barrier")
                    if dma_tag: dma(a, dma_tag)
                    set_read_addrs(a)
                R = reads(0) if nxt else []
            else:
                a.wait_lg(f"f{st}")
                R = reads(ks+1)
            xb=XF+st*8
            dots=[]
            for i in range(4):
                dots.append(f"v_dot2_f32_bf16 v{17+(i&1)}, v{xb+i}, s66, v{17+(i&1)}")
                dots.append(f"v_dot2_f32_bf16 v{19+(i&1)}, v{xb+i}, v{xb+i}, v{19+(i&1)}")
            k=0
            for ts,m in ((0,0),(0,1),(1,0),(1,1)):
                c = "0" if (first and ks==0) else acc(ts,m)
                a(f"v_mfma_f32_32x32x16_bf16 {acc(ts,m)}, {wf(st,m)}, {xf(st,ts)}, {c}")
                for t,tag in R[(0,2,4,6)[k]:(2,4,6,6)[k]] : a(t,tag)
                for d in dots[2*k:2*k+2]: a(d)
                k+=1
            uid[0]+=1
            lab=f"K1_CS{uid[0]}"
            def cs(a):
                for i in range(4):
                    for m in range(2):
                        a(f"v_dot2_f32_bf16 v{21+m}, v{WF+st*8+m*4+i}, s66, v{21+m}")
            a(f"s_cmp_eq_u32 s53, {ks}")
            a.cond_block(f"s_cbranch_scc0 {lab}", lab, cs)
    a.vm=["A"]*6+["B"]*6
    def rel_stage(a, first=False):
        stage(a, first, "C", "A", True)
        a.vm=[{"B":"A","C":"B"}[x] for x in a.vm]
    rel_stage(a, True)
    stamp(a,3)
    a("s_mov_b32 s62, 6")
    def body(t): rel_stage(t)
    def tail(t):
        t("s_sub_u32 s62, s62, 1"); t("s_cmp_lg_u32 s62, 0"); t("s_cbranch_scc1 K1_LOOP")
    a.loop("K1_LOOP", body, tail)
    stamp(a,4)
    stage(a, False, None, "A", True)
    stage(a, False, None, "B", True)
    stage(a, False, None, None, False)
    stamp(a,5)
    stats_final(a,"v17","v18","v19","v20","v24","v25","v60","v61")
    a("v_and_b32 v24, 31, v0"); a("s_lshl_b32 s63, s53, 6"); a("s_lshl_b32 s67, s54, 5"); a("s_add_u32 s63, s63, s67")
    a("v_add_u32 v25, s63, v24"); a("v_lshlrev_b32 v25, 3, v25"); a(f"v_add_u32 v25, {STATS}, v25")
    a(f"ds_write_b64 v25, v[60:61]")
    a("v_xor_b32 v25, 256, v25")
    a("v_lshlrev_b32 v26, 5, v24"); a("s_lshl_b32 s63, s54, 11"); a(f"s_add_u32 s63, s63, {CSP}"); a("v_add_u32 v26, s63, v26")
    a("v_lshrrev_b32 v27, 5, v0"); a("s_lshl_b32 s63, s53, 1"); a("v_add_u32 v27, s63, v27")
    a("v_lshl_add_u32 v27, v27, 2, v26")
    a(f"ds_write_b32 v27, v21"); a(f"ds_write_b32 v27, v22 offset:1024")
    a.wait_lg0(); a("s_barrier")
    a(f"ds_read_b64 v[62:63], v25")
    for m in range(2):
        a(f"ds_read_b128 v[{28+8*m}:{31+8*m}], v26 offset:{1024*m}")
        a(f"ds_read_b128 v[{32+8*m}:{35+8*m}], v26 offset:{1024*m+16}")
    a("v_cmp_gt_u32 vcc, 32, v0")
    aug_x(a,"v60",44)
    a.wait_lg0()
    aug_x(a,"v62",48)
    for m in range(2):
        b=28+8*m
        for i in (0,2,4,6): a(f"v_add_f32 v{b+i}, v{b+i}, v{b+i+1}")
        a(f"v_add_f32 v{b}, v{b}, v{b+2}"); a(f"v_add_f32 v{b+4}, v{b+4}, v{b+6}"); a(f"v_add_f32 v{b}, v{b}, v{b+4}")
        aug_w(a, f"v{b}", 52+4*m if m==0 else 56, f"v{b+1}", f"v{b+2}")
    for ts in range(2):
        for m in range(2):
            a(f"v_mfma_f32_32x32x16_bf16 {acc(ts,m)}, v[{52+4*m}:{55+4*m}], v[{44+4*ts}:{47+4*ts}], {acc(ts,m)}")
    stamp(a,6)
    a("s_lshl_b32 s72, s55, 3"); a("s_lshl_b32 s63, s53, 1"); a("s_add_u32 s72, s72, s63"); a("s_add_u32 s72, s72, s54")
    a("s_xor_b32 s73, s72, 1")
    a("s_cmp_ge_u32 s56, 24"); a("s_cbranch_scc1 K1_QEPI")
    hz=a.hz_get()
    a("s_lshl_b32 s63, s56, 1"); a("s_add_u32 s63, s63, s54"); a("s_lshl_b32 s63, s63, 11")
    a(f"s_add_u32 s63, s63, {L.HF}")
    for ts in range(2):
        a(f"s_mul_i32 s{74+ts}, s{72+ts}, {96*1024}"); a(f"s_add_u32 s{74+ts}, s{74+ts}, s63")
    for ts in range(2):
        rv = "v61" if ts==0 else "v63"
        a(f"v_mul_f32 v24, 0x{f2u(-LOG2E):08x}, {rv}"); a(f"v_mul_f32 v25, {rv}, {rv}")
        G=ACC+ts*32; U=G+16
        for half in range(2):
            idx=range(8*half,8*half+8)
            for i in idx: a(f"v_mul_f32 v{28+i%8}, v24, v{G+i}")
            for i in idx: a(f"v_exp_f32 v{28+i%8}, v{28+i%8}")
            for i in idx: a(f"v_mul_f32 v{G+i}, v{G+i}, v{U+i}")
            for i in idx: a(f"v_add_f32 v{28+i%8}, 1.0, v{28+i%8}")
            for i in idx: a(f"v_rcp_f32 v{28+i%8}, v{28+i%8}")
            for i in idx: a(f"v_mul_f32 v{G+i}, v25, v{G+i}")
            for i in idx: a(f"v_mul_f32 v{G+i}, v{G+i}, v{28+i%8}")
            d=36+4*((2*ts+half)&3)
            for i in range(4): a(f"v_cvt_pk_bf16_f32 v{d+i}, v{G+8*half+2*i}, v{G+8*half+2*i+1}")
            a(f"buffer_store_dwordx4 v[{d}:{d+3}], v16, s[48:51], s{74+ts} offen offset:{1024*half}")
    a("s_branch K1_END")
    a.label("K1_QEPI")
    a.hz_set(hz)
    a("s_sub_u32 s63, s56, 24"); a("s_lshl_b32 s63, s63, 2"); a("s_add_u32 s63, s63, s54"); a("s_lshl_b32 s63, s63, 11")
    for ts in range(2):
        a(f"s_mul_i32 s{74+ts}, s{72+ts}, {40*1024}"); a(f"s_add_u32 s{74+ts}, s{74+ts}, s63")
        a(f"s_add_u32 s{76+ts}, s{74+ts}, 4096")
    qs=(20**-0.5)*LOG2E
    n=0
    for ts in range(2):
        rv = "v61" if ts==0 else "v63"
        a(f"v_mul_f32 v24, 0x{f2u(qs):08x}, {rv}")
        for m in range(2):
            B=ACC+(ts*2+m)*16
            for half in range(2):
                for i in range(8): a(f"v_mul_f32 v{B+8*half+i}, v24, v{B+8*half+i}")
                d=28+4*(n&7); n+=1
                for i in range(4): a(f"v_cvt_pk_bf16_f32 v{d+i}, v{B+8*half+2*i}, v{B+8*half+2*i+1}")
                a(f"buffer_store_dwordx4 v[{d}:{d+3}], v16, s[48:51], s{74+2*m+ts} offen offset:{1024*half}")
    a("s_branch K1_END")

    a.label("K1_KV")
    a.ev={}; a.vm=[]; a.lg=[]
    srd(a,40,20,25600); srd(a,44,22,25600)
    a("s_lshl_b32 s63, s52, 10")
    for m in range(4):
        if m==3:
            a("s_cmp_ge_u32 s52, 4"); a("s_cbranch_scc1 K1_KV_W3")
        a(f"s_add_u32 s67, s63, {8192*m}")
        a(f"s_add_u32 m0, s67, {KV_WK}")
        a("s_nop 0")
        a("buffer_load_dwordx4 v16, s[40:43], s67 offen lds", "w")
        a(f"s_add_u32 m0, s67, {KV_WV}")
        a("s_nop 0")
        a("buffer_load_dwordx4 v16, s[44:47], s67 offen lds", "w")
    a.label("K1_KV_W3")
    def dmak(a, tag):
        x_dma(a, tag, "s60")
        a("s_add_u32 s57, s57, 128")
        a("s_add_u32 s60, s60, 32768"); a(f"s_cmp_eq_u32 s60, {3*32768}"); a("s_cselect_b32 s60, 0, s60")
    a("s_mov_b32 s60, 0")
    for s in range(3): dmak(a, f"d{s}")
    a("s_lshl_b32 s63, s52, 5")
    xread_setup(a, "s63")
    a("v_lshrrev_b32 v11, 5, v0"); a("v_and_b32 v12, 15, v0"); a("v_lshrrev_b32 v13, 2, v12"); a("v_and_b32 v12, 3, v12")
    a("v_lshl_add_u32 v14, v11, 3, v13"); a("v_mul_u32_u24 v14, 40, v14")
    a("v_lshrrev_b32 v15, 4, v0"); a("v_and_b32 v15, 1, v15"); a("v_lshl_add_u32 v14, v15, 5, v14")
    a("v_lshl_add_u32 v14, v12, 3, v14"); a(f"v_add_u32 v15, {KV_WK}, v14")
    for r in range(17,23): a(f"v_mov_b32 v{r}, 0")
    for r in range(64,96): a(f"v_mov_b32 v{r}, 0")
    a("s_mov_b32 s61, 0")
    a.vm=["w"]*8+["d0"]*4+["d1"]*4+["d2"]*4
    a.wait_vm("d0"); a("s_barrier")
    def set_ra(a):
        for ks in range(4): a(f"v_add_u32 v{11+ks}, s61, v{6+ks}")
        a("s_add_u32 s61, s61, 32768"); a(f"s_cmp_eq_u32 s61, {3*32768}"); a("s_cselect_b32 s61, 0, s61")
    def kreads(ks, adv=0):
        st=ks&1; R=[(f"ds_read_b128 {xf(st,0)}, v{11+ks}", f"f{st}")]
        for m in range(2):
            b=WF+st*8+m*4
            for jj in range(2):
                R.append((f"ds_read_b64_tr_b16 v[{b+2*jj}:{b+2*jj+1}], v15 offset:{m*(KV_WV-KV_WK)+(16*ks+4*jj)*40+adv}", f"f{st}"))
        return R
    set_ra(a)
    for t,tag in kreads(0): a(t,tag)
    def kstage(a, dma_tag, wait_tag, nxt):
        for ks in range(4):
            st=ks&1
            if ks==3:
                a.wait_lg0()
                if nxt:
                    a.wait_vm(wait_tag)
                    if dma_tag: dmak(a, dma_tag)
                    set_ra(a)
                    a("v_add_u32 v15, 2560, v15")
                R = kreads(0) if nxt else []
            else:
                a.wait_lg(f"f{st}"); R=kreads(ks+1)
            xb=XF+st*8
            a(f"v_mfma_f32_32x32x16_bf16 v[64:79], {wf(st,0)}, {xf(st,0)}, v[64:79]")
            for t,tag in R[:3]: a(t,tag)
            a(f"v_mfma_f32_32x32x16_bf16 v[80:95], {xf(st,0)}, {wf(st,1)}, v[80:95]")
            for t,tag in R[3:]: a(t,tag)
            for i in range(4):
                a(f"v_dot2_f32_bf16 v{17+(i&1)}, v{xb+i}, s66, v{17+(i&1)}")
                a(f"v_dot2_f32_bf16 v{19+(i&1)}, v{xb+i}, v{xb+i}, v{19+(i&1)}")
                for m in range(2): a(f"v_dot2_f32_bf16 v{21+m}, v{WF+st*8+m*4+i}, s66, v{21+m}")
    a.vm=["A"]*4+["B"]*4
    def kbody(t):
        kstage(t,"C","A",True); t.vm=[{"B":"A","C":"B"}[x] for x in t.vm]
    def ktail(t):
        t("s_sub_u32 s62, s62, 1"); t("s_cmp_lg_u32 s62, 0"); t("s_cbranch_scc1 K1_KVLOOP")
    a("s_mov_b32 s62, 7")
    a.loop("K1_KVLOOP", kbody, ktail)
    kstage(a,None,"A",True); kstage(a,None,"B",True); kstage(a,None,None,False)
    stats_final(a,"v17","v18","v19","v20","v24","v25","v60","v61")
    a("v_and_b32 v24, 31, v0"); a("s_lshl_b32 s63, s52, 7"); a(f"s_add_u32 s63, s63, {KV_ST}"); a("v_lshlrev_b32 v25, 2, v24"); a("v_add_u32 v25, s63, v25")
    a(f"ds_write_b32 v25, v61")
    for m in range(2):
        a(f"v_mov_b32 v{26+m}, v{21+m}")
    for m in range(2):
        a(f"v_permlane32_swap_b32 v{21+m}, v{26+m}")
    for m in range(2):
        a(f"v_add_f32 v{21+m}, v{21+m}, v{26+m}")
    a("v_cmp_gt_u32 vcc, 32, v0")
    aug_x(a,"v60",44)
    aug_w(a,"v21",48,"v26","v27"); aug_w(a,"v22",52,"v26","v27")
    a("v_mfma_f32_32x32x16_bf16 v[64:79], v[48:51], v[44:47], v[64:79]")
    a("v_mfma_f32_32x32x16_bf16 v[80:95], v[44:47], v[52:55], v[80:95]")
    a("v_lshrrev_b32 v26, 5, v0"); a("v_lshlrev_b32 v26, 4, v26"); a("v_add_u32 v26, s63, v26")
    a.wait_lg0()
    for g in range(4): a(f"ds_read_b128 v[{28+4*g}:{31+4*g}], v26 offset:{32*g}")
    a("s_lshl_b32 s72, s55, 3"); a("s_add_u32 s72, s72, s52"); a("s_mul_i32 s73, s72, 2560"); a(f"s_add_u32 s73, s73, {L.KV}")
    for i in range(12): a(f"v_mul_f32 v{64+i}, v61, v{64+i}")
    for i in range(6): a(f"v_cvt_pk_bf16_f32 v{96+i}, v{64+2*i}, v{65+2*i}")
    a("buffer_store_dwordx4 v[96:99], v16, s[48:51], s73 offen")
    a("v_cndmask_b32 v100, 0, v100, vcc"); a("v_cndmask_b32 v101, 0, v101, vcc")
    a("v_mov_b32 v102, 0")
    for i in range(6): a(f"v_dot2_f32_bf16 v102, v{96+i}, v{96+i}, v102")
    a("v_lshlrev_b32 v27, 3, v0")
    a("s_and_saveexec_b64 s[78:79], vcc")
    a("buffer_store_dwordx2 v[100:101], v27, s[48:51], s73 offen offset:1024")
    a("s_mov_b64 exec, s[78:79]")
    a("v_mov_b32 v103, v102"); a("v_permlane32_swap_b32 v102, v103"); a("v_add_f32 v102, v102, v103")
    for x in (1,2,4,8,16):
        a(f"ds_swizzle_b32 v103, v102 offset:0x{(x<<10)|0x1f:04x}"); a.wait_lg0(); a("v_max_f32 v102, v102, v103")
    a("s_lshl_b32 s74, s72, 2"); a(f"s_add_u32 s74, s74, {L.KN}")
    a("v_mov_b32 v104, 0")
    a("v_cmp_eq_u32 vcc, 0, v0")
    a("s_and_saveexec_b64 s[78:79], vcc")
    a("buffer_store_dword v102, v104, s[48:51], s74 offen")
    a("s_mov_b64 exec, s[78:79]")
    for i in range(16): a(f"v_mul_f32 v{80+i}, v{28+i}, v{80+i}")
    for i in range(8): a(f"v_cvt_pk_bf16_f32 v{104+i}, v{80+2*i}, v{81+2*i}")
    a("v_lshrrev_b32 v26, 5, v0"); a("v_mul_u32_u24 v26, 320, v26"); a("v_lshl_add_u32 v26, v24, 4, v26")
    a("v_cmp_gt_u32 vcc, 20, v24")
    a("s_and_saveexec_b64 s[78:79], vcc")
    a("buffer_store_dwordx4 v[104:107], v26, s[48:51], s73 offen offset:1280")
    a("buffer_store_dwordx4 v[108:111], v26, s[48:51], s73 offen offset:1920")
    a("s_mov_b64 exec, s[78:79]")
    a("s_branch K1_END")

    a.label("K1_RELAY")
    a.ev={}; a.vm=[]; a.lg=[]
    a("s_sub_u32 s70, s56, 30"); a("s_lshl_b32 s70, s70, 3"); a("s_add_u32 s70, s70, s55")
    a("s_lshl_b32 s70, s70, 1"); a("s_add_u32 s70, s70, s54")
    a("s_mul_i32 s71, s53, 320")
    for i in range(5):
        a(f"v_add_u32 v10, {64*i}, v0"); a("v_mul_u32_u24 v11, 3277, v10"); a("v_lshrrev_b32 v11, 16, v11")
        a("v_mul_u32_u24 v12, 20, v11"); a("v_sub_u32 v12, v10, v12")
        a("v_lshlrev_b32 v12, 4, v12"); a("v_add_u32 v12, s71, v12")
        a("v_mul_u32_u24 v13, 1280, v11"); a(f"v_add_u32 v{20+i}, v13, v12")
        a("v_lshrrev_b32 v13, 3, v11"); a("v_mul_u32_u24 v13, 80, v13")
        a("v_bfe_u32 v14, v11, 2, 1"); a("v_mul_u32_u24 v14, 20, v14"); a("v_and_b32 v15, 3, v11")
        a("v_add3_u32 v13, v13, v14, v15"); a("v_mul_u32_u24 v13, 1280, v13"); a(f"v_add_u32 v{25+i}, v13, v12")
    a("s_mul_i32 s65, s52, 20480")
    a("v_lshrrev_b32 v11, 5, v0"); a("v_and_b32 v12, 15, v0"); a("v_lshrrev_b32 v13, 2, v12"); a("v_and_b32 v12, 3, v12")
    a("v_lshl_add_u32 v14, v11, 2, v13"); a("v_mul_u32_u24 v14, 320, v14")
    a("v_lshrrev_b32 v15, 4, v0"); a("v_and_b32 v15, 1, v15"); a("v_lshl_add_u32 v14, v15, 5, v14")
    a("v_lshl_add_u32 v14, v12, 3, v14"); a("v_add_u32 v30, s65, v14")
    def issue(a, r):
        a(f"s_add_u32 s72, s70, {32*r}")
        a(f"s_add_u32 s76, s65, {5120*(r&3)}")
        a("s_cmp_ge_u32 s72, 96"); a(f"s_cbranch_scc1 K1_RI_WO{r}")
        srd(a,40,32,1536*1280)
        a(f"s_mul_i32 s73, s72, {16*1280}")
        a(f"s_branch K1_RI_REG{r}")
        a.label(f"K1_RI_WO{r}")
        srd(a,40,24,640*1280)
        a("s_sub_u32 s72, s72, 96")
        a(f"s_mul_i32 s73, s72, {20*1280}")
        a("s_cmp_lt_u32 s72, 32"); a(f"s_cbranch_scc1 K1_RI_REG{r}")
        a("s_sub_u32 s72, s72, 32"); a("s_lshr_b32 s73, s72, 1"); a("s_lshl_b32 s73, s73, 3"); a("s_and_b32 s72, s72, 1"); a("s_lshl_b32 s72, s72, 1")
        a("s_add_u32 s73, s73, s72"); a("s_mul_i32 s73, s73, 20"); a("s_add_u32 s73, s73, 16"); a("s_mul_i32 s73, s73, 1280")
        for i in range(5):
            a(f"s_add_u32 m0, s76, {1024*i}"); a("s_nop 0")
            a.raw(f"    buffer_load_dwordx4 v{25+i}, s[40:43], s73 offen lds")
        a(f"s_branch K1_RI_DONE{r}")
        a.label(f"K1_RI_REG{r}")
        for i in range(5):
            a(f"s_add_u32 m0, s76, {1024*i}"); a("s_nop 0")
            a(f"buffer_load_dwordx4 v{20+i}, s[40:43], s73 offen lds", f"u{r}")
        a.label(f"K1_RI_DONE{r}")
    def process(a, r):
        a(f"s_add_u32 s72, s70, {32*r}"); a("s_mul_i32 s72, s72, 20480"); a("s_mul_i32 s73, s53, 5120")
        a("s_add_u32 s72, s72, s73"); a(f"s_add_u32 s72, s72, {L.W2F}"); a("s_add_u32 s73, s72, 4096")
        for c in range(5):
            for jj in range(2):
                a(f"ds_read_b64_tr_b16 v[{32+4*c+2*jj}:{33+4*c+2*jj}], v30 offset:{5120*(r&3)+2560*jj+64*c}", f"c{c}")
        for c in range(5):
            a.wait_lg(f"c{c}")
            a(f"buffer_store_dwordx4 v[{32+4*c}:{35+4*c}], v16, s[48:51], {'s72' if c<4 else 's73'} offen offset:{1024*(c&3)}", "st")
    assert L.W2F+96*20480==L.WOF
    for r in range(4): issue(a,r)
    a.wait_vm("u0"); process(a,0)
    a("s_cmp_ge_u32 s70, 8"); a("s_cbranch_scc1 K1_RI_NO5")
    sv=list(a.vm)
    issue(a,4)
    a.label("K1_RI_NO5")
    a.wait_vm0()
    for r in range(1,4): process(a,r)
    a("s_cmp_ge_u32 s70, 8"); a("s_cbranch_scc1 K1_END")
    a.settle()
    process(a,4)
    a.label("K1_END")
    if DIAG:
        a.raw("    s_cmp_ge_u32 s2, 256\n    s_cbranch_scc1 K1_END2")
        stamp(a,7); stamp(a,9,True)
        dump(a,0,"s52",vtmp=120)
        a.label("K1_END2")
    a("s_endpgm")
    return a.text(), dict(vgpr=128, sgpr=102, lds=163840, block=512, grid=256)
if __name__=='__main__':
    t,_=k1(); print(t)
```

```python
from asmlib import Asm
import layout as L
from diag import stamp, dump, DIAG
from k1 import srd, f2u
THR=48.0

QA1,QA2,QB1,QB2=4,8,12,16
def K1b(p): return f"v[{20+8*p}:{23+8*p}]"
def K2b(p): return f"v[{24+8*p}:{27+8*p}]"
def K2lo(p): return f"v[{24+8*p}:{25+8*p}]"
def Vb(p,x): b=36+8*p+4*x; return f"v[{b}:{b+3}]"
PA,PB=52,60
SA,SB=68,84
OA,OB=100,116
CA,CB=132,148
def r16(b): return f"v[{b}:{b+15}]"
def r4(b): return f"v[{b}:{b+3}]"

def wg_decode(a):
    a("s_and_b32 s63, s2, 7"); a("s_lshr_b32 s67, s2, 3")
    a("s_lshl_b32 s55, s63, 3"); a("s_lshr_b32 s68, s67, 2"); a("s_add_u32 s55, s55, s68")
    a("s_and_b32 s56, s67, 3")

def k2():
    a=Asm()
    a.raw(".globl k2_kernel\n.p2align 8\n.type k2_kernel,@function\nk2_kernel:")
    a("s_cmp_ge_u32 s2, 256"); a("s_cbranch_scc1 K2_END")
    stamp(a,0); stamp(a,8,True)
    a("s_load_dwordx2 s[16:17], s[0:1], 0")
    a("s_load_dwordx2 s[34:35], s[0:1], 88")
    a("v_lshrrev_b32 v1, 6, v0"); a("v_readfirstlane_b32 s52, v1"); a("v_and_b32 v0, 63, v0")
    wg_decode(a)
    a("s_waitcnt lgkmcnt(0)")
    srd(a,48,34,L.WS_END)
    a("s_cmp_ge_u32 s52, 4"); a("s_cbranch_scc1 K2_GEMM")
    a("s_setprio 2")
    a("v_lshlrev_b32 v1, 4, v0")
    a("v_lshlrev_b32 v164, 2, v0"); a(f"s_mov_b32 s60, {L.KN}")
    a("buffer_load_dword v165, v164, s[48:51], s60 offen","kn")
    a("v_and_b32 v166, 7, v0"); a("s_lshl_b32 s63, s56, 3"); a("v_add_u32 v166, s63, v166")
    a("v_bfe_u32 v167, v0, 3, 2")
    a("v_lshrrev_b32 v168, 5, v0")
    a("s_lshl_b32 s63, s52, 3"); a("v_add_u32 v167, s63, v167")
    a("v_mul_u32_u24 v167, 5, v167")
    a(f"s_mul_i32 s61, s55, {40*1024}")
    def qaddr(dst, p):
        a(f"v_lshrrev_b32 v170, 2, {p}"); a("v_lshlrev_b32 v170, 10, v170")
        a(f"v_and_b32 v171, 1, {p}"); a("v_lshl_add_u32 v171, v171, 5, v166"); a("v_lshl_add_u32 v170, v171, 4, v170")
        a(f"v_bfe_u32 v171, {p}, 1, 1"); a(f"v_lshl_add_u32 {dst}, v171, 3, v170")
    for X,(q1,q2) in enumerate(((QA1,QA2),(QB1,QB2))):
        a(f"v_add_u32 v169, {20*X}, v167"); a("v_add_u32 v172, v169, v168")
        qaddr("v173","v172"); a(f"buffer_load_dwordx2 v[{q1}:{q1+1}], v173, s[48:51], s61 offen","q")
        a("v_add_u32 v172, 2, v172")
        qaddr("v174","v172"); a(f"buffer_load_dwordx2 v[{q1+2}:{q1+3}], v174, s[48:51], s61 offen","q")
        a("v_add_u32 v172, 4, v169")
        qaddr("v175","v172"); a(f"buffer_load_dwordx2 v[{q2}:{q2+1}], v175, s[48:51], s61 offen","q")
    a("s_lshl_b32 s62, s52, 10"); a(f"s_add_u32 s63, s62, {L.KV}")
    for m in range(40):
        a("s_mov_b32 m0, s62")
        a("s_add_u32 s62, s62, 4096")
        a("buffer_load_dwordx4 v1, s[48:51], s63 offen lds", "c0" if m<5 else "c1")
        a("s_add_u32 s63, s63, 4096")
    a("v_and_b32 v164, 31, v0")
    a("v_lshlrev_b32 v2, 3, v164"); a("v_add_u32 v2, 1024, v2")
    a("v_mul_u32_u24 v3, 320, v168"); a("v_lshl_add_u32 v3, v164, 4, v3"); a("v_add_u32 v3, 1280, v3")
    a("v_cmp_gt_u32 vcc, 20, v164"); a("s_mov_b64 s[70:71], vcc")
    a("v_and_b32 v169, 27, v164"); a("v_cmp_eq_u32 vcc, 24, v169")
    a("v_mov_b32 v169, 0x3f803f80"); a("v_cndmask_b32 v169, 0, v169, vcc")
    for r in range(36,52): a(f"v_mov_b32 v{r}, v169")
    for r in (26,27,34,35): a(f"v_mov_b32 v{r}, 0")
    for r in range(PA,PA+16): a(f"v_mov_b32 v{r}, 0")
    for r in range(OA,OA+32): a(f"v_mov_b32 v{r}, 0")
    a.wait_vm("kn")
    a("v_mov_b32 v169, v165"); a("v_permlane32_swap_b32 v165, v169"); a("v_max_f32 v165, v165, v169")
    for x in (1,2,4,8,16):
        a(f"ds_swizzle_b32 v169, v165 offset:0x{(x<<10)|0x1f:04x}"); a.wait_lg0(); a("v_max_f32 v165, v165, v169")
    a.wait_vm("q")
    a("v_cmp_gt_u32 vcc, 32, v0")
    for q2 in (QA2,QB2):
        a(f"v_cndmask_b32 v{q2}, 0, v{q2}, vcc"); a(f"v_cndmask_b32 v{q2+1}, 0, v{q2+1}, vcc")
        a(f"v_mov_b32 v{q2+2}, 0"); a(f"v_mov_b32 v{q2+3}, 0")
    for X,q in enumerate((QA1,QB1)):
        a(f"v_mov_b32 v{170+X}, 0")
        for i in range(6): a(f"v_dot2_f32_bf16 v{170+X}, v{q+i}, v{q+i}, v{170+X}")
    for X in range(2): a(f"v_mov_b32 v{172+X}, v{170+X}")
    for X in range(2): a(f"v_permlane32_swap_b32 v{170+X}, v{172+X}")
    for X in range(2):
        a(f"v_add_f32 v{170+X}, v{170+X}, v{172+X}"); a(f"v_mul_f32 v{170+X}, v{170+X}, v165")
        a(f"v_sqrt_f32 v{170+X}, v{170+X}"); a(f"v_mul_f32 v{170+X}, 0x{f2u(1.01):08x}, v{170+X}")
    a("v_max_f32 v172, v170, v171")
    a(f"v_cmp_ge_f32 vcc, 0x{f2u(THR):08x}, v172")
    a("s_mov_b32 s72, 0x881")
    stamp(a,1)
    a.wait_vm("c0"); a("s_barrier")
    stamp(a,2)
    a("s_cmp_eq_u64 vcc, exec"); a("s_cbranch_scc1 K2_FAST")
    a.wait_vm0(); a("s_barrier")
    a("s_mov_b32 s72, 0x880")
    a("v_mov_b32 v170, 0xff800000"); a("v_mov_b32 v171, 0xff800000")
    a("v_mov_b32 v174, v1"); a("v_mov_b32 v175, v2"); a("s_mov_b32 s73, 64")
    a.settle()
    a.label("K2_PRE")
    a(f"ds_read_b128 {K1b(0)}, v174"); a(f"ds_read_b64 {K2lo(0)}, v175")
    a("v_add_u32 v174, 2560, v174"); a("v_add_u32 v175, 2560, v175")
    a.wait_lg0()
    a(f"v_mfma_f32_32x32x16_bf16 {r16(SA)}, {K1b(0)}, {r4(QA1)}, 0")
    a(f"v_mfma_f32_32x32x16_bf16 {r16(SB)}, {K1b(0)}, {r4(QB1)}, 0")
    a(f"v_mfma_f32_32x32x16_bf16 {r16(SA)}, {K2b(0)}, {r4(QA2)}, {r16(SA)}")
    a(f"v_mfma_f32_32x32x16_bf16 {r16(SB)}, {K2b(0)}, {r4(QB2)}, {r16(SB)}")
    for i in range(0,16,2): a(f"v_max3_f32 v170, v{SA+i}, v{SA+i+1}, v170")
    for i in range(0,16,2): a(f"v_max3_f32 v171, v{SB+i}, v{SB+i+1}, v171")
    a("s_sub_u32 s73, s73, 1"); a("s_cmp_lg_u32 s73, 0")
    a.settle()
    a("s_cbranch_scc1 K2_PRE")
    for X in range(2): a(f"v_mov_b32 v{172+X}, v{170+X}")
    for X in range(2): a(f"v_permlane32_swap_b32 v{170+X}, v{172+X}")
    for X in range(2): a(f"v_max_f32 v{170+X}, v{170+X}, v{172+X}")
    a.settle()
    a.label("K2_FAST")
    a.vm=[];
    for i in range(16):
        a(f"v_sub_f32 v{CA+i}, 0, v170"); a(f"v_sub_f32 v{CB+i}, 0, v171")
    a(f"ds_read_b128 {K1b(0)}, v1"); a(f"ds_read_b64 {K2lo(0)}, v2")
    a(f"ds_read_b128 {K1b(1)}, v1 offset:2560"); a(f"ds_read_b64 {K2lo(1)}, v2 offset:2560")
    a("s_mov_b64 exec, s[70:71]")
    a(f"ds_read_b128 {Vb(0,0)}, v3"); a(f"ds_read_b128 {Vb(0,1)}, v3 offset:640")
    a("s_mov_b64 exec, -1")
    a.wait_lg0()
    a(f"v_mfma_f32_32x32x16_bf16 {r16(SA)}, {K1b(0)}, {r4(QA1)}, {r16(CA)}")
    a(f"v_mfma_f32_32x32x16_bf16 {r16(SA)}, {K2b(0)}, {r4(QA2)}, {r16(SA)}")
    def phase(t, mf, S, P, extra):
        valu=[]
        E=[f"v_exp_f32 v{S+i}, v{S+i}" for i in range(16)]
        C=[f"v_cvt_pk_bf16_f32 v{P+i}, v{S+2*i}, v{S+2*i+1}" for i in range(8)]
        groups=[E[0:4], [E[4],C[0],E[5],C[1],E[6],E[7]], [E[8],C[2],E[9],C[3],E[10],E[11]], [E[12],C[4],E[13],C[5],E[14],E[15],C[6],C[7]]]
        for k in range(4):
            t(mf[k])
            if k==1:
                for x in extra: t(x)
            for x in groups[k]: t(x)
    def tile(t, j):
        p=j&1
        mf=[f"v_mfma_f32_32x32x16_bf16 {r16(SB)}, {K1b(p)}, {r4(QB1)}, {r16(CB)}",
            f"v_mfma_f32_32x32x16_bf16 {r16(SB)}, {K2b(p)}, {r4(QB2)}, {r16(SB)}",
            f"v_mfma_f32_32x32x16_bf16 {r16(OB)}, {Vb(1-p,0)}, {r4(PB)}, {r16(OB)}",
            f"v_mfma_f32_32x32x16_bf16 {r16(OB)}, {Vb(1-p,1)}, {r4(PB+4)}, {r16(OB)}"]
        phase(t, mf, SA, PA, [])
        t.wait_lg0()
        mf=[f"v_mfma_f32_32x32x16_bf16 {r16(SA)}, {K1b(1-p)}, {r4(QA1)}, {r16(CA)}",
            f"v_mfma_f32_32x32x16_bf16 {r16(SA)}, {K2b(1-p)}, {r4(QA2)}, {r16(SA)}",
            f"v_mfma_f32_32x32x16_bf16 {r16(OA)}, {Vb(p,0)}, {r4(PA)}, {r16(OA)}",
            f"v_mfma_f32_32x32x16_bf16 {r16(OA)}, {Vb(p,1)}, {r4(PA+4)}, {r16(OA)}"]
        ex=[f"ds_read_b128 {K1b(p)}, v1 offset:{2560*(j+2)}", f"ds_read_b64 {K2lo(p)}, v2 offset:{2560*(j+2)}",
            "s_mov_b64 exec, s[70:71]",
            f"ds_read_b128 {Vb(1-p,0)}, v3 offset:{2560*(j+1)}", f"ds_read_b128 {Vb(1-p,1)}, v3 offset:{2560*(j+1)+640}",
            "s_mov_b64 exec, -1"]
        phase(t, mf, SB, PB, ex)
    a("s_mov_b32 s73, 0")
    stamp(a,3)
    a.lg=[None]*4
    def body(t):
        for j in range(4): tile(t,j)
    def tail(t):
        for r in (1,2,3): t(f"v_add_u32 v{r}, 10240, v{r}")
        t("s_bitcmp1_b32 s72, s73")
        def bar(t2):
            t2.raw("    s_waitcnt vmcnt(0)"); t2.raw("    s_barrier")
        t.cond_block("s_cbranch_scc0 K2_NOBAR","K2_NOBAR",bar)
        t("s_add_u32 s73, s73, 1"); t("s_cmp_lg_u32 s73, 16"); t("s_cbranch_scc1 K2_LOOP")
    a.loop("K2_LOOP", body, tail)
    stamp(a,4)
    a(f"v_mfma_f32_32x32x16_bf16 {r16(OB)}, {Vb(1,0)}, {r4(PB)}, {r16(OB)}")
    a(f"v_mfma_f32_32x32x16_bf16 {r16(OB)}, {Vb(1,1)}, {r4(PB+4)}, {r16(OB)}")
    a.wait_lg0()
    a("v_bfe_u32 v167, v0, 3, 2")
    a("v_lshlrev_b32 v169, 10, v167"); a("v_lshl_add_u32 v169, v168, 9, v169"); a("v_lshl_add_u32 v169, v166, 4, v169")
    a(f"s_mul_i32 s61, s55, {40*1024}"); a(f"s_add_u32 s61, s61, {L.OF}")
    a("s_lshl_b32 s63, s52, 13"); a("s_add_u32 s62, s61, s63"); a("s_add_u32 s63, s62, 4096")
    a("v_lshrrev_b32 v174, 1, v167"); a("v_lshlrev_b32 v174, 10, v174"); a("v_and_b32 v175, 1, v167")
    a("v_lshl_add_u32 v174, v175, 9, v174"); a("v_lshl_add_u32 v174, v166, 4, v174")
    a("s_lshl_b32 s64, s52, 11"); a("s_add_u32 s64, s64, s61"); a("s_add_u32 s64, s64, 32768")
    for X,O in enumerate((OA,OB)):
        a(f"v_rcp_f32 v170, v{O+12}")
        for i in range(12): a(f"v_mul_f32 v{O+i}, v170, v{O+i}")
        for i in range(4): a(f"v_cvt_pk_bf16_f32 v{176+4*X+i}, v{O+2*i}, v{O+2*i+1}")
        for i in range(2): a(f"v_cvt_pk_bf16_f32 v{184+2*X+i}, v{O+8+2*i}, v{O+9+2*i}")
        a(f"buffer_store_dwordx4 {r4(176+4*X)}, v169, s[48:51], s{62+X} offen")
    a("v_cmp_gt_u32 vcc, 32, v0")
    a("s_and_saveexec_b64 s[78:79], vcc")
    a("buffer_store_dwordx4 v[184:187], v174, s[48:51], s64 offen")
    a("s_branch K2_END")

    a.label("K2_GEMM")
    a.ev={}; a.vm=[]; a.lg=[]
    srd(a,36,16,2048*1280)
    a("s_sub_u32 s53, s52, 4")
    a("v_lshlrev_b32 v1, 4, v0"); a("v_add_u32 v2, 4096, v1")
    a(f"s_mul_i32 s60, s55, {96*1024}"); a(f"s_mul_i32 s63, s53, {24*1024}"); a("s_add_u32 s60, s60, s63"); a(f"s_add_u32 s60, s60, {L.HF}")
    a(f"s_mul_i32 s61, s53, {24*20480}"); a(f"s_mul_i32 s63, s56, 5120"); a("s_add_u32 s61, s61, s63"); a(f"s_add_u32 s61, s61, {L.W2F}")
    def ld(t, s):
        b=84+24*s
        t(f"buffer_load_dwordx4 {r4(b)}, v1, s[48:51], s60 offen", f"s{s}")
        for c in range(4): t(f"buffer_load_dwordx4 {r4(b+4+4*c)}, v1, s[48:51], s61 offen offset:{1024*c}", f"s{s}")
        t(f"buffer_load_dwordx4 {r4(b+20)}, v2, s[48:51], s61 offen", f"s{s}")
        t("s_add_u32 s60, s60, 1024"); t("s_add_u32 s61, s61, 20480")
    for s in range(4): ld(a,s)
    for r in range(4,84): a(f"v_mov_b32 v{r}, 0")
    stamp(a,1)
    a("s_barrier"); a("s_barrier")
    stamp(a,2)
    def mm(t, s):
        b=84+24*s
        t.wait_vm(f"s{s}")
        for c in range(5): t(f"v_mfma_f32_32x32x16_bf16 {r16(4+16*c)}, {r4(b+4+4*c)}, {r4(b)}, {r16(4+16*c)}")
    def gbody(t):
        for s in range(4): mm(t,s); ld(t,s)
    def gtail(t):
        t("s_sub_u32 s73, s73, 1"); t("s_cmp_lg_u32 s73, 0"); t("s_cbranch_scc1 K2_GLOOP")
    a("s_mov_b32 s73, 5")
    a.loop("K2_GLOOP", gbody, gtail)
    for s in range(4): mm(a,s)
    stamp(a,3)
    a("v_and_b32 v3, 31, v0"); a("s_lshl_b32 s63, s55, 5"); a("v_add_u32 v3, s63, v3"); a("v_mul_u32_u24 v3, 1280, v3")
    a("v_lshrrev_b32 v84, 5, v0"); a("v_lshl_add_u32 v3, v84, 3, v3")
    a("s_mul_i32 s62, s56, 320"); a("s_lshl_b32 s63, s53, 4"); a("s_add_u32 s62, s62, s63")
    for c in range(5): a(f"buffer_load_dwordx2 v[{180+2*c}:{181+2*c}], v3, s[36:39], s62 offen offset:{64*c}","x")
    a("s_mul_i32 s63, s53, 20480"); a("v_add_u32 v84, s63, v1")
    a("s_lshl_b32 s63, s53, 10"); a("v_add_u32 v85, s63, v1"); a("v_add_u32 v86, 40960, v85")
    a("s_barrier")
    stamp(a,4)
    for c in range(5):
        for g in range(4): a(f"ds_write_b128 v84, {r4(4+16*c+4*g)} offset:{(c*4+g)*1024}")
    a.wait_lg0(); a("s_barrier")
    stamp(a,5)
    for c in range(5):
        for s in range(4): a(f"ds_read_b128 {r4(88+16*c+4*s)}, v{85+(s>>1)} offset:{(s&1)*20480+c*4096}", f"r{c}")
    a("s_mul_i32 s62, s2, 20480"); a("s_lshl_b32 s63, s53, 10"); a("s_add_u32 s62, s62, s63"); a(f"s_add_u32 s62, s62, {L.Y0}")
    a.wait_vm("x")
    for c in range(5):
        a.wait_lg(f"r{c}")
        b=88+16*c
        a(f"v_lshlrev_b32 v4, 16, v{180+2*c}"); a(f"v_and_b32 v5, 0xffff0000, v{180+2*c}")
        a(f"v_lshlrev_b32 v6, 16, v{181+2*c}"); a(f"v_and_b32 v7, 0xffff0000, v{181+2*c}")
        for i in range(4):
            a(f"v_add_f32 v{b+i}, v{b+i}, v{b+4+i}"); a(f"v_add_f32 v{b+8+i}, v{b+8+i}, v{b+12+i}")
        for i in range(4):
            a(f"v_add_f32 v{b+i}, v{b+i}, v{b+8+i}")
        for i in range(4):
            a(f"v_add_f32 v{b+i}, v{b+i}, v{4+i}")
        a(f"buffer_store_dwordx4 {r4(b)}, v1, s[48:51], s62 offen")
        a("s_add_u32 s62, s62, 4096")
    a.label("K2_END")
    if DIAG:
        a.raw("    s_cmp_ge_u32 s2, 256\n    s_cbranch_scc1 K2_END2")
        stamp(a,7); stamp(a,9,True)
        dump(a,1,"s52",vtmp=188)
        a.label("K2_END2")
    a("s_endpgm")
    return a.text(), dict(vgpr=192, sgpr=102, lds=163840, block=512, grid=256)

def k3():
    a=Asm()
    a.raw(".globl k3_kernel\n.p2align 8\n.type k3_kernel,@function\nk3_kernel:")
    a("s_cmp_ge_u32 s2, 256"); a("s_cbranch_scc1 K3_END")
    stamp(a,0); stamp(a,8,True)
    a("s_load_dwordx2 s[16:17], s[0:1], 72")
    a("s_load_dwordx2 s[34:35], s[0:1], 88")
    a("v_lshrrev_b32 v1, 6, v0"); a("v_readfirstlane_b32 s53, v1"); a("v_and_b32 v0, 63, v0")
    wg_decode(a)
    a("v_lshlrev_b32 v1, 4, v0"); a("v_add_u32 v2, 4096, v1")
    a(f"s_mul_i32 s60, s55, {40*1024}"); a(f"s_mul_i32 s63, s53, {10*1024}"); a("s_add_u32 s60, s60, s63"); a(f"s_add_u32 s60, s60, {L.OF}")
    a(f"s_mul_i32 s61, s53, {10*20480}"); a(f"s_mul_i32 s63, s56, 5120"); a("s_add_u32 s61, s61, s63"); a(f"s_add_u32 s61, s61, {L.WOF}")
    a("s_waitcnt lgkmcnt(0)")
    srd(a,48,34,L.WS_END); srd(a,36,16,2048*1280)
    for s in range(10):
        b=8+24*s
        a(f"buffer_load_dwordx4 {r4(b)}, v1, s[48:51], s60 offen", f"s{s}")
        for c in range(4): a(f"buffer_load_dwordx4 {r4(b+4+4*c)}, v1, s[48:51], s61 offen offset:{1024*c}", f"s{s}")
        a(f"buffer_load_dwordx4 {r4(b+20)}, v2, s[48:51], s61 offen", f"s{s}")
        a("s_add_u32 s60, s60, 1024"); a("s_add_u32 s61, s61, 20480")
    a("s_mul_i32 s62, s2, 20480"); a("s_lshl_b32 s63, s53, 10"); a("s_add_u32 s62, s62, s63"); a(f"s_add_u32 s62, s62, {L.Y0}")
    a("s_mul_i32 s63, s53, 20480"); a("v_add_u32 v4, s63, v1")
    a("s_lshl_b32 s63, s53, 10"); a("v_add_u32 v5, s63, v1"); a("v_add_u32 v6, 40960, v5")
    a("v_and_b32 v3, 31, v0"); a("s_lshl_b32 s63, s55, 5"); a("v_add_u32 v3, s63, v3"); a("v_mul_u32_u24 v3, 1280, v3")
    a("v_lshrrev_b32 v7, 5, v0"); a("v_lshl_add_u32 v3, v7, 3, v3")
    a("s_mul_i32 s64, s56, 320"); a("s_lshl_b32 s63, s53, 4"); a("s_add_u32 s64, s64, s63")
    stamp(a,1)
    for s in range(10):
        b=8+24*s
        a.wait_vm(f"s{s}")
        if s==0: stamp(a,2)
        for c in range(5):
            C="0" if s==0 else f"a[{16*c}:{16*c+15}]"
            a(f"v_mfma_f32_32x32x16_bf16 a[{16*c}:{16*c+15}], {r4(b+4+4*c)}, {r4(b)}, {C}")
        if s==1:
            for c in range(5):
                a(f"buffer_load_dwordx4 {r4(8+4*c)}, v1, s[48:51], s62 offen", "y")
                a("s_add_u32 s62, s62, 4096")
    stamp(a,3)
    for c in range(5):
        for g in range(4): a(f"ds_write_b128 v4, a[{16*c+4*g}:{16*c+4*g+3}] offset:{(c*4+g)*1024}")
    a.wait_lg0(); a("s_barrier")
    for c in range(5):
        for s in range(4): a(f"ds_read_b128 {r4(88+16*c+4*s)}, v{5+(s>>1)} offset:{(s&1)*20480+c*4096}", f"r{c}")
    stamp(a,4)
    a.wait_vm("y")
    for c in range(5):
        a.wait_lg(f"r{c}")
        b=88+16*c
        for i in range(4):
            a(f"v_add_f32 v{b+i}, v{b+i}, v{b+4+i}"); a(f"v_add_f32 v{b+8+i}, v{b+8+i}, v{b+12+i}")
        for i in range(4): a(f"v_add_f32 v{b+i}, v{b+i}, v{b+8+i}")
        for i in range(4): a(f"v_add_f32 v{b+i}, v{b+i}, v{8+4*c+i}")
        a(f"v_cvt_pk_bf16_f32 v{b}, v{b}, v{b+1}"); a(f"v_cvt_pk_bf16_f32 v{b+1}, v{b+2}, v{b+3}")
        a(f"buffer_store_dwordx2 v[{b}:{b+1}], v3, s[36:39], s64 offen offset:{64*c}")
    a.label("K3_END")
    if DIAG:
        a.raw("    s_cmp_ge_u32 s2, 256\n    s_cbranch_scc1 K3_END2")
        stamp(a,7); stamp(a,9,True)
        dump(a,2,"s53",vtmp=250)
        a.label("K3_END2")
    a("s_endpgm")
    return a.text(), dict(vgpr=256+80, accum=256, sgpr=102, lds=81920, block=256, grid=256)
```

```python
from asmlib import Asm
import layout as L
from diag import stamp, dump, DIAG
import math, struct, os
def f2u(x): return struct.unpack('<I',struct.pack('<f',x))[0]
LOG2E=math.log2(math.e)
NT=os.environ.get('NT','nt')
NOPF=os.environ.get('NOPF','0')=='1'
NODMA=os.environ.get('NODMA','0')=='1'
NOREAD=os.environ.get('NOREAD','0')=='1'
NOCS=os.environ.get('NOCS','0')=='1'
NOMF=os.environ.get('NOMF','0')=='1'

SLOT=49152
CSP=147456
KV_WK=98304; KV_WV=126976; KV_ST=155648

def srd(a, d, lo, size, add=0):
    if add:
        a(f"s_add_u32 s{d}, s{lo}, {add}"); a(f"s_addc_u32 s{d+1}, s{lo+1}, 0")
    else:
        a(f"s_mov_b32 s{d}, s{lo}"); a(f"s_mov_b32 s{d+1}, s{lo+1}")
    a(f"s_mov_b32 s{d+2}, {size}"); a(f"s_mov_b32 s{d+3}, 0x00020000")

XF=24
WF=40
ACC=64
TMP=128
SL=136
AUG=152
def xf(st,ts): b=XF+st*8+ts*4; return f"v[{b}:{b+3}]"
def wf(st,m): b=WF+st*8+m*4; return f"v[{b}:{b+3}]"
def acc(ts,m): b=ACC+(ts*2+m)*16; return f"v[{b}:{b+15}]"
def ops_of(fn):
    t=Asm(); fn(t)
    L0=[l.strip() for l in t.lines if not l.strip().startswith('s_nop')]
    out=[]; grp=None
    for l in L0:
        if l.startswith('s_and_saveexec'): grp=[l]; continue
        if grp is not None:
            grp.append(l)
            if l.startswith('s_mov_b64 exec'): out.append('\n'.join(grp)); grp=None
            continue
        out.append(l)
    return out

def x_dma_setup(a):
    a("v_lshrrev_b32 v1, 3, v0")
    a("s_lshl_b32 s63, s55, 8"); a("s_lshl_b32 s67, s52, 5"); a("s_add_u32 s63, s63, s67")
    a("v_add_u32 v1, s63, v1")
    a("v_mul_u32_u24 v1, 1280, v1")
    a("v_and_b32 v2, 7, v0"); a("v_lshrrev_b32 v3, 4, v0")
    a("v_xor_b32 v2, v2, v3")
    a("v_xor_b32 v4, 4, v2")
    a("v_lshl_add_u32 v5, v2, 4, v1")
    a("v_lshl_add_u32 v6, v4, 4, v1")
    a("v_mov_b32 v1, v5")
    a(f"v_add_u32 v2, {9216}, v6")
    a(f"v_add_u32 v3, {2*9216}, v5")
    a(f"v_add_u32 v4, {3*9216}, v6")

def x_dma(a, tag, lds_sgpr):
    a(f"s_add_u32 m0, {lds_sgpr}, s64")
    for e in range(4):
        a(f"buffer_load_dwordx4 v{1+e}, s[36:39], s57 offen offset:{1024*e} {NT} lds", tag)

def xread_setup(a, rowbase_sgpr):
    a("v_and_b32 v10, 31, v0")
    a("v_lshrrev_b32 v11, 1, v10"); a("v_and_b32 v11, 7, v11")
    a("v_lshrrev_b32 v12, 5, v0")
    a(f"v_add_u32 v10, {rowbase_sgpr}, v10"); a("v_lshlrev_b32 v10, 7, v10")
    for ks in range(4):
        a(f"v_add_u32 v13, {2*ks}, v12"); a("v_xor_b32 v13, v13, v11")
        a(f"v_lshl_add_u32 v{6+ks}, v13, 4, v10")

def stats_math(a, s0, q0, negm, rinv):
    c=f2u(1.0/640)
    a(f"v_mul_f32 {s0}, 0x{c:08x}, {s0}"); a(f"v_mul_f32 {q0}, 0x{c:08x}, {q0}")
    a(f"v_fma_f32 {q0}, -{s0}, {s0}, {q0}"); a(f"v_max_f32 {q0}, 0, {q0}")
    a(f"v_cvt_pk_bf16_f32 {negm}, {s0}, {s0}"); a(f"v_xor_b32 {negm}, 0x80008000, {negm}")
    a(f"v_cvt_pk_bf16_f32 {q0}, {q0}, {q0}"); a(f"v_lshlrev_b32 {q0}, 16, {q0}")
    a(f"v_add_f32 {q0}, 0x{f2u(1e-5):08x}, {q0}")
    a(f"v_cvt_pk_bf16_f32 {q0}, {q0}, {q0}"); a(f"v_lshlrev_b32 {q0}, 16, {q0}")
    a(f"v_sqrt_f32 {q0}, {q0}")
    a(f"v_cvt_pk_bf16_f32 {q0}, {q0}, {q0}"); a(f"v_lshlrev_b32 {q0}, 16, {q0}")
    a(f"v_rcp_f32 {rinv}, {q0}")

def stat_ops(regs, tb=TMP):
    o=[]
    for n,r in enumerate(regs):
        A=tb+2*(n&1); B=A+1
        o+= [f"v_lshlrev_b32 v{A}, 16, v{r}", f"v_and_b32 v{B}, 0xffff0000, v{r}",
             f"v_add_f32 v17, v17, v{A}", f"v_add_f32 v18, v18, v{B}",
             f"v_fmac_f32 v19, v{A}, v{A}", f"v_fmac_f32 v20, v{B}, v{B}"]
    return o
def cs_ops(pairs, tb=TMP+4):
    o=[]
    for n,(r,ac) in enumerate(pairs):
        A=tb+2*(n&1); B=A+1
        o+= [f"v_lshlrev_b32 v{A}, 16, v{r}", f"v_and_b32 v{B}, 0xffff0000, v{r}",
             f"v_add_f32 v{ac}, v{ac}, v{A}", f"v_add_f32 v{ac}, v{ac}, v{B}"]
    return o

def share_issue(a):
    a("v_lshrrev_b32 v23, 4, v0"); a("s_lshl_b32 s63, s55, 8"); a("s_lshl_b32 s67, s77, 5"); a("s_add_u32 s63, s63, s67")
    a("s_lshl_b32 s67, s52, 2"); a("s_add_u32 s63, s63, s67"); a("v_add_u32 v23, s63, v23")
    a(f"v_mul_u32_u24 v{TMP}, 1280, v23"); a(f"v_and_b32 v{TMP+1}, 15, v0"); a(f"v_lshl_add_u32 v{TMP}, v{TMP+1}, 4, v{TMP}")
    for i in range(5):
        a(f"buffer_load_dwordx4 v[{SL+4*i}:{SL+4*i+3}], v{TMP}, s[36:39], 0 offen offset:{256*i} {NT}", "sl")
def share_finish(t):
    t("v_add_f32 v17, v17, v18"); t("v_add_f32 v19, v19, v20")
    for r in (8,4,2,1):
        t(f"v_add_f32_dpp v17, v17, v17 row_ror:{r} row_mask:0xf bank_mask:0xf")
        t(f"v_add_f32_dpp v19, v19, v19 row_ror:{r} row_mask:0xf bank_mask:0xf")
    stats_math(t,"v17","v19",f"v{TMP}",f"v{TMP+1}")
    t("v_lshlrev_b32 v23, 3, v23")
    t(f"v_and_b32 v{TMP+2}, 15, v0"); t(f"v_cmp_eq_u32 vcc, 0, v{TMP+2}")
    t("s_and_saveexec_b64 s[78:79], vcc")
    t(f"buffer_store_dwordx2 v[{TMP}:{TMP+1}], v23, s[48:51], s76 offen sc0 sc1","ss")
    t("s_mov_b64 exec, s[78:79]")
def signal(a):
    a.raw("    s_mov_b64 exec, 1")
    a.raw(f"    v_mov_b32 v{TMP+6}, 1\n    v_mov_b32 v{TMP+7}, 0\n    s_nop 1")
    a.raw(f"    buffer_atomic_add v{TMP+6}, v{TMP+7}, s[72:75], s71 offen sc1")
    a.raw("    s_mov_b64 exec, -1")

def aug_w(a, cs, d, t0, t1):
    a(f"v_cvt_pk_bf16_f32 {t0}, {cs}, {cs}"); a(f"v_lshlrev_b32 {t1}, 16, {t0}")
    a(f"v_sub_f32 {cs}, {cs}, {t1}")
    a(f"v_cvt_pk_bf16_f32 v{d}, {cs}, {cs}"); a(f"v_lshlrev_b32 {t1}, 16, v{d}")
    a(f"v_sub_f32 {cs}, {cs}, {t1}")
    a(f"v_and_b32 {t0}, 0xffff, {t0}"); a(f"v_or_b32 v{d}, {t0}, {t1}")
    a(f"v_cvt_pk_bf16_f32 v{d+1}, {cs}, 0")
    a(f"v_mov_b32 v{d+2}, 0"); a(f"v_mov_b32 v{d+3}, 0")
def aug_x(a, negm, d):
    a(f"v_cndmask_b32 v{d}, 0, {negm}, vcc")
    a(f"v_and_b32 v{d+1}, 0xffff, v{d}")
    a(f"v_mov_b32 v{d+2}, 0"); a(f"v_mov_b32 v{d+3}, 0")

OOL={}
Asm.ool=OOL
def k1():
    a=Asm()
    a.raw(".globl k1_kernel\n.p2align 8\n.type k1_kernel,@function\nk1_kernel:")
    a("s_cmp_ge_u32 s2, 256"); a("s_cbranch_scc1 K1_END")
    stamp(a,0); stamp(a,8,True)
    a("s_load_dwordx16 s[16:31], s[0:1], 0")
    a("s_load_dwordx2 s[32:33], s[0:1], 64")
    a("s_load_dwordx4 s[12:15], s[0:1], 80")
    a("v_lshrrev_b32 v1, 6, v0"); a("v_readfirstlane_b32 s52, v1"); a("v_and_b32 v0, 63, v0")
    a("s_and_b32 s53, s52, 3"); a("s_lshr_b32 s54, s52, 2")
    a("s_and_b32 s63, s2, 7"); a("s_lshr_b32 s67, s2, 3")
    a("s_lshr_b32 s77, s67, 2"); a("s_and_b32 s68, s67, 3")
    a("s_lshr_b32 s69, s63, 1")
    a("s_lshl_b32 s56, s69, 3"); a("s_add_u32 s56, s56, s77")
    a("s_and_b32 s55, s63, 1"); a("s_lshl_b32 s55, s55, 2"); a("s_add_u32 s55, s55, s68")
    a("s_lshl_b32 s76, s69, 14"); a(f"s_add_u32 s76, s76, {L.STG}")
    a("s_lshl_b32 s71, s69, 3"); a("s_add_u32 s71, s71, s55"); a("s_lshl_b32 s71, s71, 3")
    a("s_mov_b32 s66, 0x3f803f80")
    a("s_lshl_b32 s64, s52, 12")
    a("v_lshlrev_b32 v16, 4, v0")
    for r in range(17,23): a(f"v_mov_b32 v{r}, 0")
    a("s_waitcnt lgkmcnt(0)")
    srd(a,48,14,L.WS_END)
    srd(a,36,16,2048*1280)
    srd(a,72,12,256)
    a("s_mov_b32 s57, 0")
    a("s_cmp_lt_u32 s56, 29"); a("s_cbranch_scc1 K1_REG")
    a("s_cmp_ge_u32 s52, 8"); a("s_cbranch_scc1 K1_END")
    a("s_cmp_ge_u32 s56, 30"); a("s_cbranch_scc1 K1_RELAY")
    x_dma_setup(a)
    a("s_branch K1_KV")
    a.label("K1_REG")
    a("s_cmp_ge_u32 s56, 24"); a("s_cbranch_scc1 K1_QSET")
    srd(a,40,28,640*3072); srd(a,44,30,640*3072)
    a("s_mov_b32 s69, 3072"); a("s_lshl_b32 s70, s56, 7")
    a("s_branch K1_SETDONE")
    a.label("K1_QSET")
    srd(a,40,18,640*1280); srd(a,44,18,640*1280-128,add=128)
    a("s_mov_b32 s69, 1280"); a("s_sub_u32 s70, s56, 24"); a("s_lshl_b32 s70, s70, 8")
    a.label("K1_SETDONE")
    a.settle()
    a("s_lshl_b32 s59, s69, 6")
    a("s_cmp_ge_u32 s52, 8"); a("s_cbranch_scc1 K1_LOADER")
    if not NOPF:
        a("s_cmp_ge_u32 s52, 5"); a("s_cbranch_scc1 K1_XPF")
        a("v_and_b32 v4, 31, v0"); a("s_lshl_b32 s63, s55, 8"); a("s_lshl_b32 s67, s77, 5"); a("s_add_u32 s63, s63, s67")
        a("v_add_u32 v4, s63, v4"); a("v_mul_u32_u24 v4, 1280, v4")
        a(f"v_lshrrev_b32 v3, 5, v0"); a(f"v_lshl_add_u32 v4, v3, 7, v4"); a("s_lshl_b32 s63, s52, 8")
        a.raw(f"    buffer_load_dword v3, v4, s[36:39], s63 offen {NT}")
        a.label("K1_XPF")
        a.settle()
    a("s_lshl_b32 s63, s53, 6"); a("s_lshl_b32 s67, s54, 5"); a("s_add_u32 s63, s63, s67")
    xread_setup(a, "s63")
    a("s_lshl_b32 s67, s54, 13"); a("s_sub_u32 s80, 4096, s67") if False else None
    a("s_lshl_b32 s67, s54, 13"); a("s_sub_u32 s7, 4096, s67")
    a("v_lshrrev_b32 v11, 5, v0")
    a("v_and_b32 v12, 15, v0"); a("v_lshrrev_b32 v13, 2, v12")
    a("v_and_b32 v12, 3, v12")
    a("v_lshl_add_u32 v14, v11, 3, v13")
    a("v_lshlrev_b32 v14, 7, v14")
    a("v_lshrrev_b32 v15, 4, v0"); a("v_and_b32 v15, 1, v15"); a("v_lshlrev_b32 v15, 1, v15")
    a("v_lshrrev_b32 v11, 1, v12"); a("v_add_u32 v15, v15, v11")
    a("s_lshl_b32 s67, s54, 2"); a("v_add_u32 v15, s67, v15")
    a("v_lshrrev_b32 v13, 1, v13"); a("v_lshlrev_b32 v13, 2, v13"); a("v_xor_b32 v15, v15, v13")
    a("v_lshl_add_u32 v14, v15, 4, v14")
    a("v_and_b32 v12, 1, v12"); a("v_lshl_add_u32 v14, v12, 3, v14")
    a("v_add_u32 v10, 32768, v14")
    a("s_cmp_eq_u32 s52, 0"); a("s_cselect_b32 s6, 3, 99"); a("s_cselect_b32 s5, 1, 99")
    a("s_lshl_b32 s58, s54, 1"); a("s_add_u32 s58, s58, s53"); a("s_and_b32 s58, s58, 3")
    def set_read_addrs(a):
        for ks in range(4):
            a(f"v_add_u32 v{11+ks}, s61, v{6+ks}")
            a(f"v_add_u32 v{56+ks}, s7, v{11+ks}")
        a("v_add_u32 v15, s61, v10")
        a(f"s_add_u32 s61, s61, {SLOT}"); a(f"s_cmp_eq_u32 s61, {3*SLOT}"); a("s_cselect_b32 s61, 0, s61")
    def reads(ks):
        st=ks&1
        R=[(f"ds_read_b128 {xf(st,0)}, v{11+ks}", f"f{st}")]
        for m in range(2):
            b=WF+st*8+m*4
            for jj in range(2):
                R.append((f"ds_read_b64_tr_b16 v[{b+2*jj}:{b+2*jj+1}], v15 offset:{m*8192+(16*ks+4*jj)*128}", f"f{st}"))
        R.insert(3,(f"ds_read_b128 {xf(st,1)}, v{56+ks}", f"f{st}"))
        return R
    a("s_mov_b32 s61, 0")
    a("s_barrier")
    stamp(a,2)
    set_read_addrs(a)
    for t,tag in reads(0): a(t,tag)
    uid=[0]
    def cswrite(t):
        t(f"v_and_b32 v{TMP}, 31, v0")
        t(f"v_lshlrev_b32 v{TMP+2}, 6, v{TMP}"); t("s_lshl_b32 s63, s54, 12"); t(f"s_add_u32 s63, s63, {CSP}"); t(f"v_add_u32 v{TMP+2}, s63, v{TMP+2}")
    def staddr(t):
        t(f"v_and_b32 v{TMP}, 31, v0")
        t("s_lshl_b32 s63, s55, 8"); t("s_lshl_b32 s67, s53, 6"); t("s_add_u32 s63, s63, s67"); t("s_lshl_b32 s67, s54, 5"); t("s_add_u32 s63, s63, s67")
        t(f"v_add_u32 v{TMP}, s63, v{TMP}"); t(f"v_lshlrev_b32 v{TMP}, 3, v{TMP}"); t(f"v_xor_b32 v{TMP+1}, 256, v{TMP}")
    AX=(8,12); AW=(56,20)
    def aug_all(t):
        aug_x(t,"v60",AX[0]); aug_x(t,"v62",AX[1])
        for m in range(2):
            b=SL+16*m
            for st_ in (1,2,4,8):
                for i in range(0,16,2*st_): t(f"v_add_f32 v{b+i}, v{b+i}, v{b+i+st_}")
            aug_w(t, f"v{b}", AW[m], f"v{b+1}", f"v{b+2}")
    def stage(a, first, dma_tag, wait_tag, nxt, mode=0, fill=None, sig=False):
        for ks in range(4):
            st=ks&1
            if ks==3:
                a.wait_lg0()
                if nxt:
                    if wait_tag: a.wait_vm(wait_tag)
                    if mode==1:
                        a("s_cmp_lg_u32 s52, 0"); a("s_cbranch_scc1 K1_POLLOK")
                        a.label("K1_POLL")
                        a.raw("    s_waitcnt vmcnt(0)\n    v_readfirstlane_b32 s63, v1\n    s_nop 3\n    s_cmp_ge_u32 s63, 8\n    s_cbranch_scc1 K1_POLLOK")
                        a.raw(f"    s_sleep 2\n    buffer_load_dword v1, v2, s[72:75], s71 offen sc1\n    s_branch K1_POLL")
                        a.label("K1_POLLOK")
                    a("s_barrier")
                    if sig:
                        uid[0]+=1
                        a("s_cmp_eq_u32 s62, s6")
                        a.cond_block(f"s_cbranch_scc0 K1_SG{uid[0]}", f"K1_SG{uid[0]}", signal)
                        a("s_cmp_eq_u32 s62, s5")
                        def pl(t): t.raw("    v_mov_b32 v2, 0\n    s_nop 0\n    buffer_load_dword v1, v2, s[72:75], s71 offen sc1")
                        a.cond_block(f"s_cbranch_scc0 K1_PL{uid[0]}", f"K1_PL{uid[0]}", pl)
                    set_read_addrs(a)
                if mode==1:
                    for o in ops_of(staddr): a(o)
                    a(f"buffer_load_dwordx2 v[60:61], v{TMP}, s[48:51], s76 offen sc1","st")
                    a(f"buffer_load_dwordx2 v[62:63], v{TMP+1}, s[48:51], s76 offen sc1","st")
                if mode==2:
                    a("s_barrier")
                    for m in range(2):
                        for i in range(4): a(f"ds_read_b128 v[{SL+16*m+4*i}:{SL+16*m+4*i+3}], v{TMP+2} offset:{2048*m+16*i}","x")
                    a("v_cmp_gt_u32 vcc, 32, v0")
                R = reads(0) if nxt else []
            else:
                a.wait_lg(f"f{st}")
                R = reads(ks+1)
            F=[]
            if mode==2:
                if ks==0: F=ops_of(cswrite)
                if ks==3: F=ops_of(aug_all)
            elif fill is not None:
                n=(len(fill)+3-ks)//(4-ks) if ks<3 else len(fill)
                F=fill[:n]; del fill[:n]
            nr=(len(R)+2)//3; nf=(len(F)+3)//4
            k=0
            for ts,m in ((0,0),(0,1),(1,0),(1,1)):
                c = "0" if (first and ks==0) else acc(ts,m)
                if not NOMF: a(f"v_mfma_f32_32x32x16_bf16 {acc(ts,m)}, {wf(st,m)}, {xf(st,ts)}, {c}")
                for t,tag in ([] if NOREAD else R[nr*k:nr*k+nr]): a(t,tag)
                if mode==2 and ks==3 and k==0: a.wait_lg0(); a.wait_vm0()
                for d in F[nf*k:nf*k+nf]:
                    for dd in d.split('\n'): a(dd, "ss" if dd.startswith("buffer_store") else None)
                k+=1
    stage(a, True, None, None, True)
    stamp(a,1)
    share_issue(a)
    stage(a, False, None, None, True)
    a.wait_vm("sl")
    S=stat_ops(range(SL,SL+20))
    stage(a, False, None, None, True, fill=S[:72])
    stage(a, False, None, None, True, fill=S[72:]+ops_of(share_finish))
    a("s_mov_b32 s62, 3")
    a.vm=["ss"]
    def body(t):
        stage(t, False, None, "ss", True, 0, sig=True)
        t.vm=["ss"]
    def tail(t):
        t("s_sub_u32 s62, s62, 1"); t("s_cmp_lg_u32 s62, 0"); t("s_cbranch_scc1 K1_LOOP")
    a.loop("K1_LOOP", body, tail)
    stamp(a,4)
    stage(a, False, None, None, True, 1)
    stamp(a,3)
    stage(a, False, None, None, True)
    stamp(a,6)
    stage(a, False, None, None, False, 2)
    stamp(a,5)
    for ts in range(2):
        for m in range(2):
            a(f"v_mfma_f32_32x32x16_bf16 {acc(ts,m)}, v[{AW[m]}:{AW[m]+3}], v[{AX[ts]}:{AX[ts]+3}], {acc(ts,m)}")
    a("s_lshl_b32 s4, s55, 3"); a("s_lshl_b32 s63, s53, 1"); a("s_add_u32 s4, s4, s63"); a("s_add_u32 s4, s4, s54")
    a("s_xor_b32 s5, s4, 1")
    a("s_cmp_ge_u32 s56, 24"); a("s_cbranch_scc1 K1_QEPI")
    hz=a.hz_get()
    a("s_lshl_b32 s63, s56, 1"); a("s_add_u32 s63, s63, s54"); a("s_lshl_b32 s63, s63, 11")
    a(f"s_add_u32 s63, s63, {L.HF}")
    for ts in range(2):
        a(f"s_mul_i32 s{8+ts}, s{4+ts}, {96*1024}"); a(f"s_add_u32 s{8+ts}, s{8+ts}, s63")
    for ts in range(2):
        rv = "v61" if ts==0 else "v63"
        a(f"v_mul_f32 v24, 0x{f2u(-LOG2E):08x}, {rv}"); a(f"v_mul_f32 v25, {rv}, {rv}")
        G=ACC+ts*32; U=G+16
        for half in range(2):
            idx=range(8*half,8*half+8)
            for i in idx: a(f"v_mul_f32 v{28+i%8}, v24, v{G+i}")
            for i in idx: a(f"v_exp_f32 v{28+i%8}, v{28+i%8}")
            for i in idx: a(f"v_mul_f32 v{G+i}, v{G+i}, v{U+i}")
            for i in idx: a(f"v_add_f32 v{28+i%8}, 1.0, v{28+i%8}")
            for i in idx: a(f"v_rcp_f32 v{28+i%8}, v{28+i%8}")
            for i in idx: a(f"v_mul_f32 v{G+i}, v25, v{G+i}")
            for i in idx: a(f"v_mul_f32 v{G+i}, v{G+i}, v{28+i%8}")
            d=36+4*((2*ts+half)&3)
            for i in range(4): a(f"v_cvt_pk_bf16_f32 v{d+i}, v{G+8*half+2*i}, v{G+8*half+2*i+1}")
            a(f"buffer_store_dwordx4 v[{d}:{d+3}], v16, s[48:51], s{8+ts} offen offset:{1024*half}")
    a("s_branch K1_END")
    a.label("K1_QEPI")
    a.hz_set(hz)
    a("s_sub_u32 s63, s56, 24"); a("s_lshl_b32 s63, s63, 2"); a("s_add_u32 s63, s63, s54"); a("s_lshl_b32 s63, s63, 11")
    for ts in range(2):
        a(f"s_mul_i32 s{8+ts}, s{4+ts}, {40*1024}"); a(f"s_add_u32 s{8+ts}, s{8+ts}, s63")
        a(f"s_add_u32 s{10+ts}, s{8+ts}, 4096")
    qs=(20**-0.5)*LOG2E
    n=0
    for ts in range(2):
        rv = "v61" if ts==0 else "v63"
        a(f"v_mul_f32 v24, 0x{f2u(qs):08x}, {rv}")
        for m in range(2):
            B=ACC+(ts*2+m)*16
            for half in range(2):
                for i in range(8): a(f"v_mul_f32 v{B+8*half+i}, v24, v{B+8*half+i}")
                d=28+4*(n&7); n+=1
                for i in range(4): a(f"v_cvt_pk_bf16_f32 v{d+i}, v{B+8*half+2*i}, v{B+8*half+2*i+1}")
                a(f"buffer_store_dwordx4 v[{d}:{d+3}], v16, s[48:51], s{8+2*m+ts} offen offset:{1024*half}")
    a("s_branch K1_END")

    live=set(l.split()[-1] for l in a.lines if 's_cbranch_scc1 K1_CS' in l)
    for lab,lines in OOL.items():
        if lab in live:
            a.label(lab); a.lines+=lines
    a.label("K1_LOADER")
    a.ev={}; a.vm=[]; a.lg=[]
    a("s_sub_u32 s53, s52, 8")
    a("s_and_b32 s54, s53, 1"); a("s_lshr_b32 s4, s53, 1")
    a("v_lshrrev_b32 v1, 3, v0"); a("v_mul_u32_u24 v1, 1280, v1")
    a("v_and_b32 v2, 7, v0"); a("v_lshrrev_b32 v3, 4, v0"); a("v_xor_b32 v2, v2, v3"); a("v_xor_b32 v4, 4, v2")
    a("v_lshl_add_u32 v5, v2, 4, v1"); a("v_lshl_add_u32 v6, v4, 4, v1")
    a("v_mov_b32 v1, v5"); a(f"v_add_u32 v2, {9216}, v6"); a(f"v_add_u32 v3, {2*9216}, v5"); a(f"v_add_u32 v4, {3*9216}, v6")
    a("s_lshl_b32 s57, s55, 8"); a("s_lshl_b32 s63, s53, 6"); a("s_add_u32 s57, s57, s63"); a("s_mul_i32 s57, s57, 1280")
    a("v_lshrrev_b32 v5, 3, v0"); a("v_mul_lo_u32 v5, v5, s69")
    a("v_lshrrev_b32 v10, 4, v0"); a("v_and_b32 v10, 1, v10"); a("v_lshlrev_b32 v10, 2, v10")
    a("v_and_b32 v11, 7, v0"); a("v_xor_b32 v10, v10, v11"); a("v_lshl_add_u32 v5, v10, 4, v5")
    a("s_lshl_b32 s63, s69, 3"); a("s_sub_u32 s63, s63, 1024")
    a("v_add_u32 v6, s63, v5"); a("v_add_u32 v7, s63, v6"); a("v_add_u32 v8, s63, v7")
    a("s_cmp_eq_u32 s54, 0")
    a("s_cselect_b32 s8, s40, s44"); a("s_cselect_b32 s9, s41, s45"); a("s_cselect_b32 s10, s42, s46"); a("s_mov_b32 s11, 0x00020000")
    a("s_lshl_b32 s63, s69, 5"); a("s_mul_i32 s63, s63, s4"); a("s_add_u32 s58, s70, s63")
    a("s_lshl_b32 s64, s53, 13")
    a("s_lshl_b32 s66, s54, 13"); a("s_lshl_b32 s63, s4, 12"); a("s_add_u32 s66, s66, s63"); a("s_add_u32 s66, s66, 32768")
    a("v_and_b32 v9, 7, v0"); a("s_lshl_b32 s63, s68, 4"); a("s_lshl_b32 s67, s4, 3"); a("s_add_u32 s63, s63, s67"); a("v_add_u32 v9, s63, v9"); a("v_mul_lo_u32 v9, v9, s69")
    a("v_cmp_gt_u32 vcc, 8, v0")
    a("s_lshl_b32 s5, s59, 1"); a("s_add_u32 s5, s5, s70"); a("s_mov_b32 s6, s59")
    a("v_mov_b32 v11, 0x7fffff00"); a("v_cndmask_b32 v9, v11, v9, vcc")
    for r in range(24,32): a(f"v_mov_b32 v{r}, 0")
    a("s_mov_b32 s60, 0"); a("s_mov_b32 s61, 0")
    def pf(a, tag):
        if NOPF: return
        a(f"buffer_load_dword v12, v9, s[8:11], s5 offen {NT}", tag); a("s_add_u32 s5, s5, s6")
    def ldma(a, tag):
        a("s_add_u32 m0, s60, s66")
        a("s_nop 0")
        for e in range(4): a(f"buffer_load_dwordx4 v{5+e}, s[8:11], s58 offen offset:{1024*e} {NT} lds", tag)
        for gq in range(2):
            a(f"s_add_u32 s63, s64, {4096*gq}"); a("s_add_u32 m0, s60, s63")
            a(f"s_add_u32 s67, s57, {40960*gq}")
            for e in range(4): a(f"buffer_load_dwordx4 v{1+e}, s[36:39], s67 offen offset:{1024*e} {NT} lds", tag)
        a("s_add_u32 s57, s57, 128"); a("s_add_u32 s58, s58, s59")
        a(f"s_add_u32 s60, s60, {SLOT}"); a(f"s_cmp_eq_u32 s60, {3*SLOT}"); a("s_cselect_b32 s60, 0, s60")
        pf(a, tag)
    def csread(a):
        a("s_add_u32 s63, s61, s66"); a("v_add_u32 v13, s63, v16")
        for e in range(4): a(f"ds_read_b128 v[{32+4*e}:{35+4*e}], v13 offset:{1024*e}")
        a(f"s_add_u32 s61, s61, {SLOT}"); a(f"s_cmp_eq_u32 s61, {3*SLOT}"); a("s_cselect_b32 s61, 0, s61")
    def csadd(a):
        a.wait_lg0()
        if NOCS: return
        for e in range(4):
            for i in range(4):
                r=32+4*e+i; A=48+2*(i&1)
                a(f"v_lshlrev_b32 v{A}, 16, v{r}"); a(f"v_and_b32 v{A+1}, 0xffff0000, v{r}")
                a(f"v_add_f32 v{24+2*i}, v{24+2*i}, v{A}"); a(f"v_add_f32 v{25+2*i}, v{25+2*i}, v{A+1}")
    ldma(a,"d0"); ldma(a,"A")
    a.wait_vm("d0"); a("s_barrier")
    csread(a); ldma(a,"B"); csadd(a)
    a("s_mov_b32 s62, 7")
    def lbody(t):
        t.wait_vm("A"); t("s_barrier")
        csread(t)
        if NODMA: t.vm=["A"]*len(t.vm)+["B"]*len(t.vm)
        else:
            ldma(t,"C"); t.vm=[{"B":"A","C":"B"}[x] for x in t.vm]
        csadd(t)
    def ltail(t):
        t("s_sub_u32 s62, s62, 1"); t("s_cmp_lg_u32 s62, 0"); t("s_cbranch_scc1 K1_LLOOP")
    a.loop("K1_LLOOP", lbody, ltail)
    a.wait_vm("A"); a("s_barrier"); csread(a); csadd(a)
    a.wait_vm("B"); a("s_barrier"); csread(a); csadd(a)
    a("v_lshrrev_b32 v13, 2, v10"); a("v_lshlrev_b32 v13, 12, v13"); a("v_and_b32 v14, 3, v10"); a("v_lshl_add_u32 v13, v14, 9, v13")
    a("v_lshrrev_b32 v14, 3, v0"); a("v_lshl_add_u32 v13, v14, 2, v13")
    a("s_lshl_b32 s63, s54, 11"); a("s_lshl_b32 s67, s4, 5"); a("s_add_u32 s63, s63, s67"); a(f"s_add_u32 s63, s63, {CSP}"); a("v_add_u32 v13, s63, v13")
    for e in range(8): a(f"ds_write_b32 v13, v{24+e} offset:{64*e}")
    a.wait_lg0(); a("s_barrier")
    a("s_endpgm")

    def share_now(a, lab):
        share_issue(a)
        a.wait_vm0()
        for i in range(20):
            a(f"v_dot2_f32_bf16 v{17+(i&1)}, v{SL+i}, s66, v{17+(i&1)}")
            a(f"v_dot2_f32_bf16 v{19+(i&1)}, v{SL+i}, v{SL+i}, v{19+(i&1)}")
        share_finish(a)
        a.wait_vm0(); a("s_barrier")
        a("s_cmp_eq_u32 s52, 0")
        a.cond_block(f"s_cbranch_scc0 {lab}", lab, signal)
        for r in range(17,21): a(f"v_mov_b32 v{r}, 0")

    a.label("K1_KV")
    a.ev={}; a.vm=[]; a.lg=[]
    srd(a,40,20,25600); srd(a,44,22,25600)
    a("s_lshl_b32 s63, s52, 10")
    for m in range(4):
        if m==3:
            a("s_cmp_ge_u32 s52, 4"); a("s_cbranch_scc1 K1_KV_W3")
        a(f"s_add_u32 s67, s63, {8192*m}")
        a(f"s_add_u32 m0, s67, {KV_WK}")
        a("s_nop 0")
        a(f"buffer_load_dwordx4 v16, s[40:43], s67 offen {NT} lds", "w")
        a(f"s_add_u32 m0, s67, {KV_WV}")
        a("s_nop 0")
        a(f"buffer_load_dwordx4 v16, s[44:47], s67 offen {NT} lds", "w")
    a.label("K1_KV_W3")
    def dmak(a, tag):
        x_dma(a, tag, "s60")
        a("s_add_u32 s57, s57, 128")
        a("s_add_u32 s60, s60, 32768"); a(f"s_cmp_eq_u32 s60, {3*32768}"); a("s_cselect_b32 s60, 0, s60")
    a("s_mov_b32 s60, 0")
    for s in range(3): dmak(a, f"d{s}")
    share_now(a,"K1_KVSG")
    a("s_lshl_b32 s63, s52, 5")
    xread_setup(a, "s63")
    a("v_lshrrev_b32 v11, 5, v0"); a("v_and_b32 v12, 15, v0"); a("v_lshrrev_b32 v13, 2, v12"); a("v_and_b32 v12, 3, v12")
    a("v_lshl_add_u32 v14, v11, 3, v13"); a("v_mul_u32_u24 v14, 40, v14")
    a("v_lshrrev_b32 v15, 4, v0"); a("v_and_b32 v15, 1, v15"); a("v_lshl_add_u32 v14, v15, 5, v14")
    a("v_lshl_add_u32 v14, v12, 3, v14"); a(f"v_add_u32 v15, {KV_WK}, v14")
    for r in range(64,96): a(f"v_mov_b32 v{r}, 0")
    a("s_mov_b32 s61, 0")
    def set_ra(a):
        for ks in range(4): a(f"v_add_u32 v{11+ks}, s61, v{6+ks}")
        a("s_add_u32 s61, s61, 32768"); a(f"s_cmp_eq_u32 s61, {3*32768}"); a("s_cselect_b32 s61, 0, s61")
    def kreads(ks):
        st=ks&1; R=[(f"ds_read_b128 {xf(st,0)}, v{11+ks}", f"f{st}")]
        for m in range(2):
            b=WF+st*8+m*4
            for jj in range(2):
                R.append((f"ds_read_b64_tr_b16 v[{b+2*jj}:{b+2*jj+1}], v15 offset:{m*(KV_WV-KV_WK)+(16*ks+4*jj)*40}", f"f{st}"))
        return R
    set_ra(a)
    for t,tag in kreads(0): a(t,tag)
    def kstage(a, dma_tag, wait_tag, nxt):
        for ks in range(4):
            st=ks&1
            if ks==3:
                a.wait_lg0()
                if nxt:
                    a.wait_vm(wait_tag)
                    if dma_tag: dmak(a, dma_tag)
                    set_ra(a)
                    a("v_add_u32 v15, 2560, v15")
                R = kreads(0) if nxt else []
            else:
                a.wait_lg(f"f{st}"); R=kreads(ks+1)
            xb=XF+st*8
            a(f"v_mfma_f32_32x32x16_bf16 v[64:79], {wf(st,0)}, {xf(st,0)}, v[64:79]")
            for t,tag in R[:3]: a(t,tag)
            a(f"v_mfma_f32_32x32x16_bf16 v[80:95], {xf(st,0)}, {wf(st,1)}, v[80:95]")
            for t,tag in R[3:]: a(t,tag)
            for o in stat_ops(range(xb,xb+4)): a(o)
            uid[0]+=1
            lab=f"K1_KCS{uid[0]}"
            def cs(a):
                for o in cs_ops([(WF+st*8+m*4+i,21+m) for i in range(4) for m in range(2)]): a(o)
            a(f"s_cmp_eq_u32 s5, {ks}")
            a.cond_block(f"s_cbranch_scc0 {lab}", lab, cs)
        a("s_xor_b32 s5, s5, s6")
    a("s_xor_b32 s6, s53, 0xff"); a("s_cmp_eq_u32 s54, 0"); a("s_cselect_b32 s5, s53, 0xff")
    a.vm=["A"]*4+["B"]*4
    def kbody(t):
        kstage(t,"C","A",True); t.vm=[{"B":"A","C":"B"}[x] for x in t.vm]
    def ktail(t):
        t("s_sub_u32 s62, s62, 1"); t("s_cmp_lg_u32 s62, 0"); t("s_cbranch_scc1 K1_KVLOOP")
    a("s_mov_b32 s62, 7")
    a.loop("K1_KVLOOP", kbody, ktail)
    kstage(a,None,"A",True); kstage(a,None,"B",True); kstage(a,None,None,False)
    a("v_add_f32 v17, v17, v18"); a("v_add_f32 v19, v19, v20")
    a("v_mov_b32 v24, v17"); a("v_mov_b32 v25, v19")
    a("v_permlane32_swap_b32 v17, v24"); a("v_permlane32_swap_b32 v19, v25")
    a("v_add_f32 v17, v17, v24"); a("v_add_f32 v19, v19, v25")
    stats_math(a,"v17","v19","v60","v61")
    a("v_and_b32 v24, 31, v0"); a("s_lshl_b32 s63, s52, 7"); a(f"s_add_u32 s63, s63, {KV_ST}"); a("v_lshlrev_b32 v25, 2, v24"); a("v_add_u32 v25, s63, v25")
    a(f"ds_write_b32 v25, v61")
    a("v_lshlrev_b32 v26, 6, v24"); a("v_lshrrev_b32 v27, 5, v0"); a("s_lshl_b32 s67, s52, 1"); a("v_add_u32 v27, s67, v27")
    a("v_lshl_add_u32 v27, v27, 2, v26")
    a.wait_lg0(); a("s_barrier")
    a("ds_write_b32 v27, v21"); a("ds_write_b32 v27, v22 offset:2048")
    a.wait_lg0(); a("s_barrier")
    for m in range(2):
        for i in range(4): a(f"ds_read_b128 v[{112+16*m+4*i}:{115+16*m+4*i}], v26 offset:{2048*m+16*i}")
    a.wait_lg0()
    for m in range(2):
        b=112+16*m
        for st_ in (1,2,4,8):
            for i in range(0,16,2*st_): a(f"v_add_f32 v{b+i}, v{b+i}, v{b+i+st_}")
        a(f"v_mov_b32 v{21+m}, v{b}")
    a("v_cmp_gt_u32 vcc, 32, v0")
    aug_x(a,"v60",44)
    aug_w(a,"v21",48,"v26","v27"); aug_w(a,"v22",52,"v26","v27")
    a("v_mfma_f32_32x32x16_bf16 v[64:79], v[48:51], v[44:47], v[64:79]")
    a("v_mfma_f32_32x32x16_bf16 v[80:95], v[44:47], v[52:55], v[80:95]")
    a("v_lshrrev_b32 v26, 5, v0"); a("v_lshlrev_b32 v26, 4, v26"); a("v_add_u32 v26, s63, v26")
    for g in range(4): a(f"ds_read_b128 v[{28+4*g}:{31+4*g}], v26 offset:{32*g}")
    a("s_lshl_b32 s4, s55, 3"); a("s_add_u32 s4, s4, s52"); a("s_mul_i32 s5, s4, 2560"); a(f"s_add_u32 s5, s5, {L.KV}")
    for i in range(12): a(f"v_mul_f32 v{64+i}, v61, v{64+i}")
    for i in range(6): a(f"v_cvt_pk_bf16_f32 v{96+i}, v{64+2*i}, v{65+2*i}")
    a("buffer_store_dwordx4 v[96:99], v16, s[48:51], s5 offen")
    a("v_cndmask_b32 v100, 0, v100, vcc"); a("v_cndmask_b32 v101, 0, v101, vcc")
    a("v_mov_b32 v102, 0")
    for i in range(6): a(f"v_dot2_f32_bf16 v102, v{96+i}, v{96+i}, v102")
    a("v_lshlrev_b32 v27, 3, v0")
    a("s_and_saveexec_b64 s[78:79], vcc")
    a("buffer_store_dwordx2 v[100:101], v27, s[48:51], s5 offen offset:1024")
    a("s_mov_b64 exec, s[78:79]")
    a("v_mov_b32 v103, v102"); a("v_permlane32_swap_b32 v102, v103"); a("v_add_f32 v102, v102, v103")
    a.wait_lg0()
    for x in (1,2,4,8,16):
        a(f"ds_swizzle_b32 v103, v102 offset:0x{(x<<10)|0x1f:04x}"); a.wait_lg0(); a("v_max_f32 v102, v102, v103")
    a("s_lshl_b32 s6, s4, 2"); a(f"s_add_u32 s6, s6, {L.KN}")
    a("v_mov_b32 v104, 0")
    a("v_cmp_eq_u32 vcc, 0, v0")
    a("s_and_saveexec_b64 s[78:79], vcc")
    a("buffer_store_dword v102, v104, s[48:51], s6 offen")
    a("s_mov_b64 exec, s[78:79]")
    for i in range(16): a(f"v_mul_f32 v{80+i}, v{28+i}, v{80+i}")
    for i in range(8): a(f"v_cvt_pk_bf16_f32 v{104+i}, v{80+2*i}, v{81+2*i}")
    a("v_lshrrev_b32 v26, 5, v0"); a("v_mul_u32_u24 v26, 320, v26"); a("v_lshl_add_u32 v26, v24, 4, v26")
    a("v_cmp_gt_u32 vcc, 20, v24")
    a("s_and_saveexec_b64 s[78:79], vcc")
    a("buffer_store_dwordx4 v[104:107], v26, s[48:51], s5 offen offset:1280")
    a("buffer_store_dwordx4 v[108:111], v26, s[48:51], s5 offen offset:1920")
    a("s_mov_b64 exec, s[78:79]")
    a("s_branch K1_END")

    a.label("K1_RELAY")
    a.ev={}; a.vm=[]; a.lg=[]
    a("s_sub_u32 s70, s56, 30"); a("s_lshl_b32 s70, s70, 3"); a("s_add_u32 s70, s70, s55")
    a("s_lshl_b32 s70, s70, 1"); a("s_add_u32 s70, s70, s54")
    a("s_mul_i32 s69, s53, 320")
    for i in range(5):
        a(f"v_add_u32 v10, {64*i}, v0"); a("v_mul_u32_u24 v11, 3277, v10"); a("v_lshrrev_b32 v11, 16, v11")
        a("v_mul_u32_u24 v12, 20, v11"); a("v_sub_u32 v12, v10, v12")
        a("v_lshlrev_b32 v12, 4, v12"); a("v_add_u32 v12, s69, v12")
        a("v_mul_u32_u24 v13, 1280, v11"); a(f"v_add_u32 v{60+i}, v13, v12")
        a("v_lshrrev_b32 v13, 3, v11"); a("v_mul_u32_u24 v13, 80, v13")
        a("v_bfe_u32 v14, v11, 2, 1"); a("v_mul_u32_u24 v14, 20, v14"); a("v_and_b32 v15, 3, v11")
        a("v_add3_u32 v13, v13, v14, v15"); a("v_mul_u32_u24 v13, 1280, v13"); a(f"v_add_u32 v{65+i}, v13, v12")
    a("s_mul_i32 s65, s52, 20480")
    a("v_lshrrev_b32 v11, 5, v0"); a("v_and_b32 v12, 15, v0"); a("v_lshrrev_b32 v13, 2, v12"); a("v_and_b32 v12, 3, v12")
    a("v_lshl_add_u32 v14, v11, 2, v13"); a("v_mul_u32_u24 v14, 320, v14")
    a("v_lshrrev_b32 v15, 4, v0"); a("v_and_b32 v15, 1, v15"); a("v_lshl_add_u32 v14, v15, 5, v14")
    a("v_lshl_add_u32 v14, v12, 3, v14"); a("v_add_u32 v30, s65, v14")
    def issue(a, r):
        a(f"s_add_u32 s4, s70, {32*r}")
        a(f"s_add_u32 s6, s65, {5120*(r&3)}")
        a("s_cmp_ge_u32 s4, 96"); a(f"s_cbranch_scc1 K1_RI_WO{r}")
        srd(a,40,32,1536*1280)
        a(f"s_mul_i32 s5, s4, {16*1280}")
        a(f"s_branch K1_RI_REG{r}")
        a.label(f"K1_RI_WO{r}")
        srd(a,40,24,640*1280)
        a("s_sub_u32 s4, s4, 96")
        a(f"s_mul_i32 s5, s4, {20*1280}")
        a("s_cmp_lt_u32 s4, 32"); a(f"s_cbranch_scc1 K1_RI_REG{r}")
        a("s_sub_u32 s4, s4, 32"); a("s_lshr_b32 s5, s4, 1"); a("s_lshl_b32 s5, s5, 3"); a("s_and_b32 s4, s4, 1"); a("s_lshl_b32 s4, s4, 1")
        a("s_add_u32 s5, s5, s4"); a("s_mul_i32 s5, s5, 20"); a("s_add_u32 s5, s5, 16"); a("s_mul_i32 s5, s5, 1280")
        for i in range(5):
            a(f"s_add_u32 m0, s6, {1024*i}"); a("s_nop 0")
            a.raw(f"    buffer_load_dwordx4 v{65+i}, s[40:43], s5 offen {NT} lds")
        a(f"s_branch K1_RI_DONE{r}")
        a.label(f"K1_RI_REG{r}")
        for i in range(5):
            a(f"s_add_u32 m0, s6, {1024*i}"); a("s_nop 0")
            a(f"buffer_load_dwordx4 v{60+i}, s[40:43], s5 offen {NT} lds", f"u{r}")
        a.label(f"K1_RI_DONE{r}")
    def process(a, r):
        a(f"s_add_u32 s4, s70, {32*r}"); a("s_mul_i32 s4, s4, 20480"); a("s_mul_i32 s5, s53, 5120")
        a("s_add_u32 s4, s4, s5"); a(f"s_add_u32 s4, s4, {L.W2F}"); a("s_add_u32 s5, s4, 4096")
        for c in range(5):
            for jj in range(2):
                a(f"ds_read_b64_tr_b16 v[{32+4*c+2*jj}:{33+4*c+2*jj}], v30 offset:{5120*(r&3)+2560*jj+64*c}", f"c{c}")
        for c in range(5):
            a.wait_lg(f"c{c}")
            a(f"buffer_store_dwordx4 v[{32+4*c}:{35+4*c}], v16, s[48:51], {'s4' if c<4 else 's5'} offen offset:{1024*(c&3)}", "st")
    assert L.W2F+96*20480==L.WOF
    for r in range(4): issue(a,r)
    a.settle()
    share_now(a,"K1_RLSG")
    process(a,0)
    a("s_cmp_ge_u32 s70, 8"); a("s_cbranch_scc1 K1_RI_NO5")
    issue(a,4)
    a.label("K1_RI_NO5")
    a.wait_vm0()
    for r in range(1,4): process(a,r)
    a("s_cmp_ge_u32 s70, 8"); a("s_cbranch_scc1 K1_END")
    a.settle()
    process(a,4)
    a.label("K1_END")
    if DIAG:
        a.raw("    s_cmp_ge_u32 s2, 256\n    s_cbranch_scc1 K1_END2\n    s_cmp_ge_u32 s52, 8\n    s_cbranch_scc1 K1_END2")
        stamp(a,7); stamp(a,9,True)
        dump(a,0,"s52",vtmp=160)
        a.label("K1_END2")
    a("s_endpgm")
    return a.text(), dict(vgpr=168, sgpr=102, lds=163840, block=768, grid=256)
```

```python
from asmlib import Asm
import layout as L
from diag import stamp, dump, DIAG
import math, struct, os
def f2u(x): return struct.unpack('<I',struct.pack('<f',x))[0]
LOG2E=math.log2(math.e)
NT=os.environ.get('NT','')
NOPF=os.environ.get('NOPF','1')=='1'
NODMA=os.environ.get('NODMA','0')=='1'
NOREAD=os.environ.get('NOREAD','0')=='1'
NOCS=os.environ.get('NOCS','0')=='1'
NOMF=os.environ.get('NOMF','0')=='1'

SLOT=49152
CSP=147456
KV_WK=98304; KV_WV=126976; KV_ST=155648

def srd(a, d, lo, size, add=0):
    if add:
        a(f"s_add_u32 s{d}, s{lo}, {add}"); a(f"s_addc_u32 s{d+1}, s{lo+1}, 0")
    else:
        a(f"s_mov_b32 s{d}, s{lo}"); a(f"s_mov_b32 s{d+1}, s{lo+1}")
    a(f"s_mov_b32 s{d+2}, {size}"); a(f"s_mov_b32 s{d+3}, 0x00020000")

XF=24
WF=40
ACC=64
TMP=128
SL=136
AUG=152
def xf(st,ts): b=XF+st*8+ts*4; return f"v[{b}:{b+3}]"
def wf(st,m): b=WF+st*8+m*4; return f"v[{b}:{b+3}]"
def acc(ts,m): b=ACC+(ts*2+m)*16; return f"v[{b}:{b+15}]"
def ops_of(fn):
    t=Asm(); fn(t)
    L0=[l.strip() for l in t.lines if not l.strip().startswith('s_nop')]
    out=[]; grp=None
    for l in L0:
        if l.startswith('s_and_saveexec'): grp=[l]; continue
        if grp is not None:
            grp.append(l)
            if l.startswith('s_mov_b64 exec'): out.append('\n'.join(grp)); grp=None
            continue
        out.append(l)
    return out

def x_dma_setup(a):
    a("v_lshrrev_b32 v1, 3, v0")
    a("s_lshl_b32 s63, s55, 8"); a("s_lshl_b32 s67, s52, 5"); a("s_add_u32 s63, s63, s67")
    a("v_add_u32 v1, s63, v1")
    a("v_mul_u32_u24 v1, 1280, v1")
    a("v_and_b32 v2, 7, v0"); a("v_lshrrev_b32 v3, 4, v0")
    a("v_xor_b32 v2, v2, v3")
    a("v_xor_b32 v4, 4, v2")
    a("v_lshl_add_u32 v5, v2, 4, v1")
    a("v_lshl_add_u32 v6, v4, 4, v1")
    a("v_mov_b32 v1, v5")
    a(f"v_add_u32 v2, {9216}, v6")
    a(f"v_add_u32 v3, {2*9216}, v5")
    a(f"v_add_u32 v4, {3*9216}, v6")

def x_dma(a, tag, lds_sgpr):
    a(f"s_add_u32 m0, {lds_sgpr}, s64")
    for e in range(4):
        a(f"buffer_load_dwordx4 v{1+e}, s[36:39], s57 offen offset:{1024*e} {NT} lds", tag)

def xread_setup(a, rowbase_sgpr):
    a("v_and_b32 v10, 31, v0")
    a("v_lshrrev_b32 v11, 1, v10"); a("v_and_b32 v11, 7, v11")
    a("v_lshrrev_b32 v12, 5, v0")
    a(f"v_add_u32 v10, {rowbase_sgpr}, v10"); a("v_lshlrev_b32 v10, 7, v10")
    for ks in range(4):
        a(f"v_add_u32 v13, {2*ks}, v12"); a("v_xor_b32 v13, v13, v11")
        a(f"v_lshl_add_u32 v{6+ks}, v13, 4, v10")

def stats_math(a, s0, q0, negm, rinv):
    c=f2u(1.0/640)
    a(f"v_mul_f32 {s0}, 0x{c:08x}, {s0}"); a(f"v_mul_f32 {q0}, 0x{c:08x}, {q0}")
    a(f"v_fma_f32 {q0}, -{s0}, {s0}, {q0}"); a(f"v_max_f32 {q0}, 0, {q0}")
    a(f"v_cvt_pk_bf16_f32 {negm}, {s0}, {s0}"); a(f"v_xor_b32 {negm}, 0x80008000, {negm}")
    a(f"v_cvt_pk_bf16_f32 {q0}, {q0}, {q0}"); a(f"v_lshlrev_b32 {q0}, 16, {q0}")
    a(f"v_add_f32 {q0}, 0x{f2u(1e-5):08x}, {q0}")
    a(f"v_cvt_pk_bf16_f32 {q0}, {q0}, {q0}"); a(f"v_lshlrev_b32 {q0}, 16, {q0}")
    a(f"v_sqrt_f32 {q0}, {q0}")
    a(f"v_cvt_pk_bf16_f32 {q0}, {q0}, {q0}"); a(f"v_lshlrev_b32 {q0}, 16, {q0}")
    a(f"v_rcp_f32 {rinv}, {q0}")

def stat_ops(regs, tb=TMP):
    o=[]
    for n,r in enumerate(regs):
        A=tb+2*(n&1); B=A+1
        o+= [f"v_lshlrev_b32 v{A}, 16, v{r}", f"v_and_b32 v{B}, 0xffff0000, v{r}",
             f"v_add_f32 v17, v17, v{A}", f"v_add_f32 v18, v18, v{B}",
             f"v_fmac_f32 v19, v{A}, v{A}", f"v_fmac_f32 v20, v{B}, v{B}"]
    return o
def cs_ops(pairs, tb=TMP+4):
    o=[]
    for n,(r,ac) in enumerate(pairs):
        A=tb+2*(n&1); B=A+1
        o+= [f"v_lshlrev_b32 v{A}, 16, v{r}", f"v_and_b32 v{B}, 0xffff0000, v{r}",
             f"v_add_f32 v{ac}, v{ac}, v{A}", f"v_add_f32 v{ac}, v{ac}, v{B}"]
    return o

def share_issue(a):
    a("v_lshrrev_b32 v23, 4, v0"); a("s_lshl_b32 s63, s55, 8"); a("s_lshl_b32 s67, s77, 5"); a("s_add_u32 s63, s63, s67")
    a("s_lshl_b32 s67, s52, 2"); a("s_add_u32 s63, s63, s67"); a("v_add_u32 v23, s63, v23")
    a(f"v_mul_u32_u24 v{TMP}, 1280, v23"); a(f"v_and_b32 v{TMP+1}, 15, v0"); a(f"v_lshl_add_u32 v{TMP}, v{TMP+1}, 4, v{TMP}")
    for i in range(5):
        a(f"buffer_load_dwordx4 v[{SL+4*i}:{SL+4*i+3}], v{TMP}, s[36:39], 0 offen offset:{256*i} {NT}", "sl")
def share_finish(t):
    t("v_add_f32 v17, v17, v18"); t("v_add_f32 v19, v19, v20")
    for r in (8,4,2,1):
        t(f"v_add_f32_dpp v17, v17, v17 row_ror:{r} row_mask:0xf bank_mask:0xf")
        t(f"v_add_f32_dpp v19, v19, v19 row_ror:{r} row_mask:0xf bank_mask:0xf")
    stats_math(t,"v17","v19",f"v{TMP}",f"v{TMP+1}")
    t("v_lshlrev_b32 v23, 3, v23")
    t(f"v_and_b32 v{TMP+2}, 15, v0"); t(f"v_cmp_eq_u32 vcc, 0, v{TMP+2}")
    t("s_and_saveexec_b64 s[78:79], vcc")
    t(f"buffer_store_dwordx2 v[{TMP}:{TMP+1}], v23, s[48:51], s76 offen sc0 sc1","ss")
    t("s_mov_b64 exec, s[78:79]")
def signal(a):
    a.raw("    s_mov_b64 exec, 1")
    a.raw(f"    v_mov_b32 v{TMP+6}, 1\n    v_mov_b32 v{TMP+7}, 0\n    s_nop 1")
    a.raw(f"    buffer_atomic_add v{TMP+6}, v{TMP+7}, s[72:75], s71 offen sc1")
    a.raw("    s_mov_b64 exec, -1")

def aug_w(a, cs, d, t0, t1):
    a(f"v_cvt_pk_bf16_f32 {t0}, {cs}, {cs}"); a(f"v_lshlrev_b32 {t1}, 16, {t0}")
    a(f"v_sub_f32 {cs}, {cs}, {t1}")
    a(f"v_cvt_pk_bf16_f32 v{d}, {cs}, {cs}"); a(f"v_lshlrev_b32 {t1}, 16, v{d}")
    a(f"v_sub_f32 {cs}, {cs}, {t1}")
    a(f"v_and_b32 {t0}, 0xffff, {t0}"); a(f"v_or_b32 v{d}, {t0}, {t1}")
    a(f"v_cvt_pk_bf16_f32 v{d+1}, {cs}, 0")
    a(f"v_mov_b32 v{d+2}, 0"); a(f"v_mov_b32 v{d+3}, 0")
def aug_x(a, negm, d):
    a(f"v_cndmask_b32 v{d}, 0, {negm}, vcc")
    a(f"v_and_b32 v{d+1}, 0xffff, v{d}")
    a(f"v_mov_b32 v{d+2}, 0"); a(f"v_mov_b32 v{d+3}, 0")

OOL={}
Asm.ool=OOL
def k1():
    a=Asm()
    a.raw(".globl k1_kernel\n.p2align 8\n.type k1_kernel,@function\nk1_kernel:")
    a("s_cmp_ge_u32 s2, 256"); a("s_cbranch_scc1 K1_END")
    stamp(a,0); stamp(a,8,True)
    a("s_load_dwordx16 s[16:31], s[0:1], 0")
    a("s_load_dwordx2 s[32:33], s[0:1], 64")
    a("s_load_dwordx4 s[12:15], s[0:1], 80")
    a("v_lshrrev_b32 v1, 6, v0"); a("v_readfirstlane_b32 s52, v1"); a("v_and_b32 v0, 63, v0")
    a("s_and_b32 s53, s52, 3"); a("s_lshr_b32 s54, s52, 2")
    a("s_and_b32 s63, s2, 7"); a("s_lshr_b32 s67, s2, 3")
    a("s_lshr_b32 s77, s67, 2"); a("s_and_b32 s68, s67, 3")
    a("s_lshr_b32 s69, s63, 1")
    a("s_lshl_b32 s56, s69, 3"); a("s_add_u32 s56, s56, s77")
    a("s_and_b32 s55, s63, 1"); a("s_lshl_b32 s55, s55, 2"); a("s_add_u32 s55, s55, s68")
    a("s_lshl_b32 s76, s69, 14"); a(f"s_add_u32 s76, s76, {L.STG}")
    a("s_lshl_b32 s71, s69, 3"); a("s_add_u32 s71, s71, s55"); a("s_lshl_b32 s71, s71, 3")
    a("s_mov_b32 s66, 0x3f803f80")
    a("s_lshl_b32 s64, s52, 12")
    a("v_lshlrev_b32 v16, 4, v0")
    for r in range(17,23): a(f"v_mov_b32 v{r}, 0")
    a("s_waitcnt lgkmcnt(0)")
    srd(a,48,14,L.WS_END)
    srd(a,36,16,2048*1280)
    srd(a,72,12,256)
    a("s_mov_b32 s57, 0")
    a("s_cmp_lt_u32 s56, 29"); a("s_cbranch_scc1 K1_REG")
    a("s_cmp_ge_u32 s52, 8"); a("s_cbranch_scc1 K1_END")
    a("s_cmp_ge_u32 s56, 30"); a("s_cbranch_scc1 K1_RELAY")
    x_dma_setup(a)
    a("s_branch K1_KV")
    a.label("K1_REG")
    a("s_cmp_ge_u32 s56, 24"); a("s_cbranch_scc1 K1_QSET")
    srd(a,40,28,640*3072); srd(a,44,30,640*3072)
    a("s_mov_b32 s69, 3072"); a("s_lshl_b32 s70, s56, 7")
    a("s_branch K1_SETDONE")
    a.label("K1_QSET")
    srd(a,40,18,640*1280); srd(a,44,18,640*1280-128,add=128)
    a("s_mov_b32 s69, 1280"); a("s_sub_u32 s70, s56, 24"); a("s_lshl_b32 s70, s70, 8")
    a.label("K1_SETDONE")
    a.settle()
    a("s_lshl_b32 s59, s69, 6")
    a("s_cmp_ge_u32 s52, 8"); a("s_cbranch_scc1 K1_LOADER")
    if not NOPF:
        a("s_cmp_ge_u32 s52, 3"); a("s_cbranch_scc1 K1_PFW")
        a("v_and_b32 v4, 31, v0"); a("s_lshl_b32 s63, s55, 8"); a("s_lshl_b32 s67, s77, 5"); a("s_add_u32 s63, s63, s67")
        a("v_add_u32 v4, s63, v4"); a("v_mul_u32_u24 v4, 1280, v4")
        a(f"v_lshrrev_b32 v3, 5, v0"); a(f"v_lshl_add_u32 v4, v3, 7, v4")
        a("s_mov_b32 s8, s36"); a("s_mov_b32 s9, s37"); a("s_mov_b32 s10, s38")
        a("s_lshl_b32 s4, s52, 8"); a("s_add_u32 s28, s4, 768"); a("s_cmp_eq_u32 s52, 2"); a("s_cselect_b32 s28, 0x7f000000, s28")
        a("s_branch K1_PFD")
        a.label("K1_PFW")
        a("s_bitcmp1_b32 s52, 0")
        a("s_cselect_b32 s8, s40, s44"); a("s_cselect_b32 s9, s41, s45"); a("s_mov_b32 s10, s46")
        a("v_lshrrev_b32 v4, 4, v0"); a("v_lshlrev_b32 v4, 6, v4"); a("v_and_b32 v3, 15, v0"); a("v_add_u32 v4, v4, v3")
        a("s_lshl_b32 s63, s68, 4"); a("v_add_u32 v4, s63, v4"); a("v_mul_lo_u32 v4, v4, s69")
        a("s_mul_i32 s63, s59, 6"); a("s_add_u32 s28, s70, s63"); a("s_mov_b32 s4, s70")
        a("s_cmp_lt_u32 s52, 5"); a("s_cbranch_scc1 K1_PFD")
        a("s_lshl_b32 s63, s59, 2"); a("s_add_u32 s4, s70, s63"); a("s_mov_b32 s28, 0x7f000000")
        a("s_cmp_eq_u32 s52, 7"); a("s_cselect_b32 s4, 0x7f000000, s4")
        a("v_cmp_gt_u32 vcc, 32, v0"); a("v_mov_b32 v3, 0x7f000000"); a("v_cndmask_b32 v4, v3, v4, vcc")
        a.label("K1_PFD")
        a("s_mov_b32 s11, 0x00020000")
        a.settle()
        a(f"buffer_load_dword v3, v4, s[8:11], s4 offen {NT}","pfa")
    a("s_lshl_b32 s63, s53, 6"); a("s_lshl_b32 s67, s54, 5"); a("s_add_u32 s63, s63, s67")
    xread_setup(a, "s63")
    a("s_lshl_b32 s67, s54, 13"); a("s_sub_u32 s80, 4096, s67") if False else None
    a("s_lshl_b32 s67, s54, 13"); a("s_sub_u32 s7, 4096, s67")
    a("v_lshrrev_b32 v11, 5, v0")
    a("v_and_b32 v12, 15, v0"); a("v_lshrrev_b32 v13, 2, v12")
    a("v_and_b32 v12, 3, v12")
    a("v_lshl_add_u32 v14, v11, 3, v13")
    a("v_lshlrev_b32 v14, 7, v14")
    a("v_lshrrev_b32 v15, 4, v0"); a("v_and_b32 v15, 1, v15"); a("v_lshlrev_b32 v15, 1, v15")
    a("v_lshrrev_b32 v11, 1, v12"); a("v_add_u32 v15, v15, v11")
    a("s_lshl_b32 s67, s54, 2"); a("v_add_u32 v15, s67, v15")
    a("v_lshrrev_b32 v13, 1, v13"); a("v_lshlrev_b32 v13, 2, v13"); a("v_xor_b32 v15, v15, v13")
    a("v_lshl_add_u32 v14, v15, 4, v14")
    a("v_and_b32 v12, 1, v12"); a("v_lshl_add_u32 v14, v12, 3, v14")
    a("v_add_u32 v10, 32768, v14")
    a("v_mov_b32 v2, 0")
    a("s_cmp_eq_u32 s52, 0"); a("s_cselect_b32 s6, 3, 99"); a("s_cselect_b32 s5, 1, 99")
    a("s_lshl_b32 s58, s54, 1"); a("s_add_u32 s58, s58, s53"); a("s_and_b32 s58, s58, 3")
    def set_read_addrs(a):
        for ks in range(4):
            a(f"v_add_u32 v{11+ks}, s61, v{6+ks}")
            a(f"v_add_u32 v{56+ks}, s7, v{11+ks}")
        a("v_add_u32 v15, s61, v10")
        a(f"s_add_u32 s61, s61, {SLOT}"); a(f"s_cmp_eq_u32 s61, {3*SLOT}"); a("s_cselect_b32 s61, 0, s61")
    def reads(ks):
        st=ks&1
        R=[(f"ds_read_b128 {xf(st,0)}, v{11+ks}", f"f{st}")]
        for m in range(2):
            b=WF+st*8+m*4
            for jj in range(2):
                R.append((f"ds_read_b64_tr_b16 v[{b+2*jj}:{b+2*jj+1}], v15 offset:{m*8192+(16*ks+4*jj)*128}", f"f{st}"))
        R.insert(3,(f"ds_read_b128 {xf(st,1)}, v{56+ks}", f"f{st}"))
        return R
    a("s_mov_b32 s61, 0")
    a("s_barrier")
    stamp(a,2)
    if not NOPF: a(f"buffer_load_dword v3, v4, s[8:11], s28 offen {NT}","pfb")
    set_read_addrs(a)
    for t,tag in reads(0): a(t,tag)
    uid=[0]
    def cswrite(t):
        t(f"v_and_b32 v{TMP}, 31, v0")
        t(f"v_lshlrev_b32 v{TMP+2}, 6, v{TMP}"); t("s_lshl_b32 s63, s54, 12"); t(f"s_add_u32 s63, s63, {CSP}"); t(f"v_add_u32 v{TMP+2}, s63, v{TMP+2}")
    def staddr(t):
        t(f"v_and_b32 v{TMP}, 31, v0")
        t("s_lshl_b32 s63, s55, 8"); t("s_lshl_b32 s67, s53, 6"); t("s_add_u32 s63, s63, s67"); t("s_lshl_b32 s67, s54, 5"); t("s_add_u32 s63, s63, s67")
        t(f"v_add_u32 v{TMP}, s63, v{TMP}"); t(f"v_lshlrev_b32 v{TMP}, 3, v{TMP}"); t(f"v_xor_b32 v{TMP+1}, 256, v{TMP}")
    AX=(8,12); AW=(SL+4,SL+20)
    def aug_xpart(t):
        aug_x(t,"v60",AX[0]); aug_x(t,"v62",AX[1])
    def aug_wpart(t):
        for m in range(2):
            b=SL+16*m
            for st_ in (1,2,4,8):
                for i in range(0,16,2*st_): t(f"v_add_f32 v{b+i}, v{b+i}, v{b+i+st_}")
            aug_w(t, f"v{b}", AW[m], f"v{b+1}", f"v{b+2}")
    def stage(a, first, dma_tag, wait_tag, nxt, mode=0, fill=None, sig=False):
        for ks in range(4):
            st=ks&1
            if ks==3:
                a.wait_lg0()
                if nxt:
                    if wait_tag: a.wait_vm(wait_tag)
                    if mode==1:
                        a("s_cmp_lg_u32 s52, 0"); a("s_cbranch_scc1 K1_POLLOK")
                        a.label("K1_POLL")
                        a.raw("    s_waitcnt vmcnt(0)\n    v_readfirstlane_b32 s63, v1\n    s_nop 3\n    s_cmp_ge_u32 s63, 8\n    s_cbranch_scc1 K1_POLLOK")
                        a.raw(f"    s_sleep 2\n    buffer_load_dword v1, v2, s[72:75], s71 offen sc1\n    s_branch K1_POLL")
                        a.label("K1_POLLOK")
                    a("s_barrier")
                    if sig:
                        uid[0]+=1
                        a("s_cmp_eq_u32 s62, s6")
                        a.cond_block(f"s_cbranch_scc0 K1_SG{uid[0]}", f"K1_SG{uid[0]}", signal)
                        a("s_cmp_eq_u32 s62, s5")
                        def pl(t): t.raw("    v_mov_b32 v2, 0\n    s_nop 0\n    buffer_load_dword v1, v2, s[72:75], s71 offen sc1")
                        a.cond_block(f"s_cbranch_scc0 K1_PL{uid[0]}", f"K1_PL{uid[0]}", pl)
                    set_read_addrs(a)
                if mode==1:
                    for o in ops_of(staddr): a(o)
                    a(f"buffer_load_dwordx2 v[60:61], v{TMP}, s[48:51], s76 offen sc1","st")
                    a(f"buffer_load_dwordx2 v[62:63], v{TMP+1}, s[48:51], s76 offen sc1","st")
                if mode==4:
                    for o in ops_of(cswrite): a(o)
                    for m in range(2):
                        for i in range(4): a(f"ds_read_b128 v[{SL+16*m+4*i}:{SL+16*m+4*i+3}], v{TMP+2} offset:{2048*m+16*i}","x")
                R = reads(0) if nxt else []
            else:
                a.wait_lg(f"f{st}")
                R = reads(ks+1)
            F=[]
            if mode==2:
                if ks==0:
                    a.wait_lg0(); AUGW=ops_of(aug_wpart)
                if ks<3:
                    n=(len(AUGW)+2-ks)//(3-ks); F=AUGW[:n]; AUGW=AUGW[n:]
                if ks==3: F=ops_of(aug_xpart)
            elif fill is not None:
                n=(len(fill)+3-ks)//(4-ks) if ks<3 else len(fill)
                F=fill[:n]; del fill[:n]
            nr=(len(R)+2)//3; nf=(len(F)+3)//4
            k=0
            for ts,m in ((0,0),(0,1),(1,0),(1,1)):
                c = "0" if (first and ks==0) else acc(ts,m)
                if not NOMF: a(f"v_mfma_f32_32x32x16_bf16 {acc(ts,m)}, {wf(st,m)}, {xf(st,ts)}, {c}")
                for t,tag in ([] if NOREAD else R[nr*k:nr*k+nr]): a(t,tag)
                if mode==2 and ks==3 and k==0: a.wait_vm0(); a("v_cmp_gt_u32 vcc, 32, v0")
                for d in F[nf*k:nf*k+nf]:
                    for dd in d.split('\n'): a(dd, "ss" if dd.startswith("buffer_store") else None)
                k+=1
    stage(a, True, None, None, True)
    stamp(a,1)
    share_issue(a)
    stage(a, False, None, None, True)
    a.wait_vm("sl")
    S=stat_ops(range(SL,SL+20))
    stage(a, False, None, None, True, fill=S[:72])
    stage(a, False, None, None, True, fill=S[72:]+ops_of(share_finish))
    a("s_mov_b32 s62, 3")
    a.vm=["ss"]
    def body(t):
        stage(t, False, None, "ss", True, 0, sig=True)
        t.vm=["ss"]
    def tail(t):
        t("s_sub_u32 s62, s62, 1"); t("s_cmp_lg_u32 s62, 0"); t("s_cbranch_scc1 K1_LOOP")
    a.loop("K1_LOOP", body, tail)
    stamp(a,4)
    stage(a, False, None, None, True, 1)
    stamp(a,3)
    stage(a, False, None, None, True, 4)
    stamp(a,6)
    stage(a, False, None, None, False, 2)
    stamp(a,5)
    for ts in range(2):
        for m in range(2):
            a(f"v_mfma_f32_32x32x16_bf16 {acc(ts,m)}, v[{AW[m]}:{AW[m]+3}], v[{AX[ts]}:{AX[ts]+3}], {acc(ts,m)}")
    a("s_lshl_b32 s4, s55, 3"); a("s_lshl_b32 s63, s53, 1"); a("s_add_u32 s4, s4, s63"); a("s_add_u32 s4, s4, s54")
    a("s_xor_b32 s5, s4, 1")
    a("s_cmp_ge_u32 s56, 24"); a("s_cbranch_scc1 K1_QEPI")
    hz=a.hz_get()
    a("s_lshl_b32 s63, s56, 1"); a("s_add_u32 s63, s63, s54"); a("s_lshl_b32 s63, s63, 11")
    a(f"s_add_u32 s63, s63, {L.HF}")
    for ts in range(2):
        a(f"s_mul_i32 s{8+ts}, s{4+ts}, {96*1024}"); a(f"s_add_u32 s{8+ts}, s{8+ts}, s63")
    for ts in range(2):
        rv = "v61" if ts==0 else "v63"
        a(f"v_mul_f32 v24, 0x{f2u(-LOG2E):08x}, {rv}"); a(f"v_mul_f32 v25, {rv}, {rv}")
        G=ACC+ts*32; U=G+16
        for half in range(2):
            idx=range(8*half,8*half+8)
            for i in idx: a(f"v_mul_f32 v{28+i%8}, v24, v{G+i}")
            for i in idx: a(f"v_exp_f32 v{28+i%8}, v{28+i%8}")
            for i in idx: a(f"v_mul_f32 v{G+i}, v{G+i}, v{U+i}")
            for i in idx: a(f"v_add_f32 v{28+i%8}, 1.0, v{28+i%8}")
            for i in idx: a(f"v_rcp_f32 v{28+i%8}, v{28+i%8}")
            for i in idx: a(f"v_mul_f32 v{G+i}, v25, v{G+i}")
            for i in idx: a(f"v_mul_f32 v{G+i}, v{G+i}, v{28+i%8}")
            d=36+4*((2*ts+half)&3)
            for i in range(4): a(f"v_cvt_pk_bf16_f32 v{d+i}, v{G+8*half+2*i}, v{G+8*half+2*i+1}")
            a(f"buffer_store_dwordx4 v[{d}:{d+3}], v16, s[48:51], s{8+ts} offen offset:{1024*half}")
    a("s_branch K1_END")
    a.label("K1_QEPI")
    a.hz_set(hz)
    a("s_sub_u32 s63, s56, 24"); a("s_lshl_b32 s63, s63, 2"); a("s_add_u32 s63, s63, s54"); a("s_lshl_b32 s63, s63, 11")
    for ts in range(2):
        a(f"s_mul_i32 s{8+ts}, s{4+ts}, {40*1024}"); a(f"s_add_u32 s{8+ts}, s{8+ts}, s63")
        a(f"s_add_u32 s{10+ts}, s{8+ts}, 4096")
    qs=(20**-0.5)*LOG2E
    n=0
    for ts in range(2):
        rv = "v61" if ts==0 else "v63"
        a(f"v_mul_f32 v24, 0x{f2u(qs):08x}, {rv}")
        for m in range(2):
            B=ACC+(ts*2+m)*16
            for half in range(2):
                for i in range(8): a(f"v_mul_f32 v{B+8*half+i}, v24, v{B+8*half+i}")
                d=28+4*(n&7); n+=1
                for i in range(4): a(f"v_cvt_pk_bf16_f32 v{d+i}, v{B+8*half+2*i}, v{B+8*half+2*i+1}")
                a(f"buffer_store_dwordx4 v[{d}:{d+3}], v16, s[48:51], s{8+2*m+ts} offen offset:{1024*half}")
    a("s_branch K1_END")

    live=set(l.split()[-1] for l in a.lines if 's_cbranch_scc1 K1_CS' in l)
    for lab,lines in OOL.items():
        if lab in live:
            a.label(lab); a.lines+=lines
    a.label("K1_LOADER")
    a.ev={}; a.vm=[]; a.lg=[]
    a("s_sub_u32 s53, s52, 8")
    a("s_and_b32 s54, s53, 1"); a("s_lshr_b32 s4, s53, 1")
    a("v_lshrrev_b32 v1, 3, v0"); a("v_mul_u32_u24 v1, 1280, v1")
    a("v_and_b32 v2, 7, v0"); a("v_lshrrev_b32 v3, 4, v0"); a("v_xor_b32 v2, v2, v3"); a("v_xor_b32 v4, 4, v2")
    a("v_lshl_add_u32 v5, v2, 4, v1"); a("v_lshl_add_u32 v6, v4, 4, v1")
    a("v_mov_b32 v1, v5"); a(f"v_add_u32 v2, {9216}, v6"); a(f"v_add_u32 v3, {2*9216}, v5"); a(f"v_add_u32 v4, {3*9216}, v6")
    a("s_lshl_b32 s57, s55, 8"); a("s_lshl_b32 s63, s53, 6"); a("s_add_u32 s57, s57, s63"); a("s_mul_i32 s57, s57, 1280")
    a("v_lshrrev_b32 v5, 3, v0"); a("v_mul_lo_u32 v5, v5, s69")
    a("v_lshrrev_b32 v10, 4, v0"); a("v_and_b32 v10, 1, v10"); a("v_lshlrev_b32 v10, 2, v10")
    a("v_and_b32 v11, 7, v0"); a("v_xor_b32 v10, v10, v11"); a("v_lshl_add_u32 v5, v10, 4, v5")
    a("s_lshl_b32 s63, s69, 3"); a("s_sub_u32 s63, s63, 1024")
    a("v_add_u32 v6, s63, v5"); a("v_add_u32 v7, s63, v6"); a("v_add_u32 v8, s63, v7")
    a("s_cmp_eq_u32 s54, 0")
    a("s_cselect_b32 s8, s40, s44"); a("s_cselect_b32 s9, s41, s45"); a("s_cselect_b32 s10, s42, s46"); a("s_mov_b32 s11, 0x00020000")
    a("s_lshl_b32 s63, s69, 5"); a("s_mul_i32 s63, s63, s4"); a("s_add_u32 s58, s70, s63")
    a("s_lshl_b32 s64, s53, 13")
    a("s_lshl_b32 s66, s54, 13"); a("s_lshl_b32 s63, s4, 12"); a("s_add_u32 s66, s66, s63"); a("s_add_u32 s66, s66, 32768")
    a("v_and_b32 v9, 7, v0"); a("s_lshl_b32 s63, s68, 4"); a("s_lshl_b32 s67, s4, 3"); a("s_add_u32 s63, s63, s67"); a("v_add_u32 v9, s63, v9"); a("v_mul_lo_u32 v9, v9, s69")
    a("v_cmp_gt_u32 vcc, 8, v0")
    a("s_lshl_b32 s5, s59, 1"); a("s_add_u32 s5, s5, s70"); a("s_mov_b32 s6, s59")
    a("v_mov_b32 v11, 0x7fffff00"); a("v_cndmask_b32 v9, v11, v9, vcc")
    for r in range(24,32): a(f"v_mov_b32 v{r}, 0")
    a("s_mov_b32 s60, 0"); a("s_mov_b32 s61, 0")
    def pf(a, tag):
        if True: return
        a(f"buffer_load_dword v12, v9, s[8:11], s5 offen {NT}", tag); a("s_add_u32 s5, s5, s6")
    def ldma(a, tag):
        a("s_add_u32 m0, s60, s66")
        a("s_nop 0")
        for e in range(4): a(f"buffer_load_dwordx4 v{5+e}, s[8:11], s58 offen offset:{1024*e} {NT} lds", tag)
        for gq in range(2):
            a(f"s_add_u32 s63, s64, {4096*gq}"); a("s_add_u32 m0, s60, s63")
            a(f"s_add_u32 s67, s57, {40960*gq}")
            for e in range(4): a(f"buffer_load_dwordx4 v{1+e}, s[36:39], s67 offen offset:{1024*e} {NT} lds", tag)
        a("s_add_u32 s57, s57, 128"); a("s_add_u32 s58, s58, s59")
        a(f"s_add_u32 s60, s60, {SLOT}"); a(f"s_cmp_eq_u32 s60, {3*SLOT}"); a("s_cselect_b32 s60, 0, s60")
        pf(a, tag)
    def csread(a):
        a("s_add_u32 s63, s61, s66"); a("v_add_u32 v13, s63, v16")
        for e in range(4): a(f"ds_read_b128 v[{32+4*e}:{35+4*e}], v13 offset:{1024*e}")
        a(f"s_add_u32 s61, s61, {SLOT}"); a(f"s_cmp_eq_u32 s61, {3*SLOT}"); a("s_cselect_b32 s61, 0, s61")
    def csadd(a):
        a.wait_lg0()
        if NOCS: return
        for e in range(4):
            for i in range(4):
                r=32+4*e+i; A=48+2*(i&1)
                a(f"v_lshlrev_b32 v{A}, 16, v{r}"); a(f"v_and_b32 v{A+1}, 0xffff0000, v{r}")
                a(f"v_add_f32 v{24+2*i}, v{24+2*i}, v{A}"); a(f"v_add_f32 v{25+2*i}, v{25+2*i}, v{A+1}")
    ldma(a,"d0"); ldma(a,"A")
    a.wait_vm("d0"); a("s_barrier")
    csread(a); ldma(a,"B"); csadd(a)
    a("s_mov_b32 s62, 7")
    def lbody(t):
        t.wait_vm("A"); t("s_barrier")
        csread(t)
        if NODMA: t.vm=["A"]*len(t.vm)+["B"]*len(t.vm)
        else:
            ldma(t,"C"); t.vm=[{"B":"A","C":"B"}[x] for x in t.vm]
        csadd(t)
    def ltail(t):
        t("s_sub_u32 s62, s62, 1"); t("s_cmp_lg_u32 s62, 0"); t("s_cbranch_scc1 K1_LLOOP")
    a.loop("K1_LLOOP", lbody, ltail)
    a.wait_vm("A"); a("s_barrier"); csread(a); csadd(a)
    a.wait_vm("B"); csread(a); csadd(a)
    a("v_lshrrev_b32 v13, 2, v10"); a("v_lshlrev_b32 v13, 12, v13"); a("v_and_b32 v14, 3, v10"); a("v_lshl_add_u32 v13, v14, 9, v13")
    a("v_lshrrev_b32 v14, 3, v0"); a("v_lshl_add_u32 v13, v14, 2, v13")
    a("s_lshl_b32 s63, s54, 11"); a("s_lshl_b32 s67, s4, 5"); a("s_add_u32 s63, s63, s67"); a(f"s_add_u32 s63, s63, {CSP}"); a("v_add_u32 v13, s63, v13")
    for e in range(8): a(f"ds_write_b32 v13, v{24+e} offset:{64*e}")
    a.wait_lg0(); a("s_barrier")
    a("s_endpgm")

    def share_now(a, lab):
        share_issue(a)
        a.wait_vm0()
        for i in range(20):
            a(f"v_dot2_f32_bf16 v{17+(i&1)}, v{SL+i}, s66, v{17+(i&1)}")
            a(f"v_dot2_f32_bf16 v{19+(i&1)}, v{SL+i}, v{SL+i}, v{19+(i&1)}")
        share_finish(a)
        a.wait_vm0(); a("s_barrier")
        a("s_cmp_eq_u32 s52, 0")
        a.cond_block(f"s_cbranch_scc0 {lab}", lab, signal)
        for r in range(17,21): a(f"v_mov_b32 v{r}, 0")

    a.label("K1_KV")
    a.ev={}; a.vm=[]; a.lg=[]
    srd(a,40,20,25600); srd(a,44,22,25600)
    a("s_lshl_b32 s63, s52, 10")
    for m in range(4):
        if m==3:
            a("s_cmp_ge_u32 s52, 4"); a("s_cbranch_scc1 K1_KV_W3")
        a(f"s_add_u32 s67, s63, {8192*m}")
        a(f"s_add_u32 m0, s67, {KV_WK}")
        a("s_nop 0")
        a(f"buffer_load_dwordx4 v16, s[40:43], s67 offen {NT} lds", "w")
        a(f"s_add_u32 m0, s67, {KV_WV}")
        a("s_nop 0")
        a(f"buffer_load_dwordx4 v16, s[44:47], s67 offen {NT} lds", "w")
    a.label("K1_KV_W3")
    def dmak(a, tag):
        x_dma(a, tag, "s60")
        a("s_add_u32 s57, s57, 128")
        a("s_add_u32 s60, s60, 32768"); a(f"s_cmp_eq_u32 s60, {3*32768}"); a("s_cselect_b32 s60, 0, s60")
    a("s_mov_b32 s60, 0")
    for s in range(3): dmak(a, f"d{s}")
    share_now(a,"K1_KVSG")
    a("s_lshl_b32 s63, s52, 5")
    xread_setup(a, "s63")
    a("v_lshrrev_b32 v11, 5, v0"); a("v_and_b32 v12, 15, v0"); a("v_lshrrev_b32 v13, 2, v12"); a("v_and_b32 v12, 3, v12")
    a("v_lshl_add_u32 v14, v11, 3, v13"); a("v_mul_u32_u24 v14, 40, v14")
    a("v_lshrrev_b32 v15, 4, v0"); a("v_and_b32 v15, 1, v15"); a("v_lshl_add_u32 v14, v15, 5, v14")
    a("v_lshl_add_u32 v14, v12, 3, v14"); a(f"v_add_u32 v15, {KV_WK}, v14")
    for r in range(64,96): a(f"v_mov_b32 v{r}, 0")
    a("s_mov_b32 s61, 0")
    def set_ra(a):
        for ks in range(4): a(f"v_add_u32 v{11+ks}, s61, v{6+ks}")
        a("s_add_u32 s61, s61, 32768"); a(f"s_cmp_eq_u32 s61, {3*32768}"); a("s_cselect_b32 s61, 0, s61")
    def kreads(ks):
        st=ks&1; R=[(f"ds_read_b128 {xf(st,0)}, v{11+ks}", f"f{st}")]
        for m in range(2):
            b=WF+st*8+m*4
            for jj in range(2):
                R.append((f"ds_read_b64_tr_b16 v[{b+2*jj}:{b+2*jj+1}], v15 offset:{m*(KV_WV-KV_WK)+(16*ks+4*jj)*40}", f"f{st}"))
        return R
    set_ra(a)
    for t,tag in kreads(0): a(t,tag)
    def kstage(a, dma_tag, wait_tag, nxt):
        for ks in range(4):
            st=ks&1
            if ks==3:
                a.wait_lg0()
                if nxt:
                    a.wait_vm(wait_tag)
                    if dma_tag: dmak(a, dma_tag)
                    set_ra(a)
                    a("v_add_u32 v15, 2560, v15")
                R = kreads(0) if nxt else []
            else:
                a.wait_lg(f"f{st}"); R=kreads(ks+1)
            xb=XF+st*8
            a(f"v_mfma_f32_32x32x16_bf16 v[64:79], {wf(st,0)}, {xf(st,0)}, v[64:79]")
            for t,tag in R[:3]: a(t,tag)
            a(f"v_mfma_f32_32x32x16_bf16 v[80:95], {xf(st,0)}, {wf(st,1)}, v[80:95]")
            for t,tag in R[3:]: a(t,tag)
            for o in stat_ops(range(xb,xb+4)): a(o)
            uid[0]+=1
            lab=f"K1_KCS{uid[0]}"
            def cs(a):
                for o in cs_ops([(WF+st*8+m*4+i,21+m) for i in range(4) for m in range(2)]): a(o)
            a(f"s_cmp_eq_u32 s5, {ks}")
            a.cond_block(f"s_cbranch_scc0 {lab}", lab, cs)
        a("s_xor_b32 s5, s5, s6")
    a("s_xor_b32 s6, s53, 0xff"); a("s_cmp_eq_u32 s54, 0"); a("s_cselect_b32 s5, s53, 0xff")
    a.vm=["A"]*4+["B"]*4
    def kbody(t):
        kstage(t,"C","A",True); t.vm=[{"B":"A","C":"B"}[x] for x in t.vm]
    def ktail(t):
        t("s_sub_u32 s62, s62, 1"); t("s_cmp_lg_u32 s62, 0"); t("s_cbranch_scc1 K1_KVLOOP")
    a("s_mov_b32 s62, 7")
    a.loop("K1_KVLOOP", kbody, ktail)
    kstage(a,None,"A",True); kstage(a,None,"B",True); kstage(a,None,None,False)
    a("v_add_f32 v17, v17, v18"); a("v_add_f32 v19, v19, v20")
    a("v_mov_b32 v24, v17"); a("v_mov_b32 v25, v19")
    a("v_permlane32_swap_b32 v17, v24"); a("v_permlane32_swap_b32 v19, v25")
    a("v_add_f32 v17, v17, v24"); a("v_add_f32 v19, v19, v25")
    stats_math(a,"v17","v19","v60","v61")
    a("v_and_b32 v24, 31, v0"); a("s_lshl_b32 s63, s52, 7"); a(f"s_add_u32 s63, s63, {KV_ST}"); a("v_lshlrev_b32 v25, 2, v24"); a("v_add_u32 v25, s63, v25")
    a(f"ds_write_b32 v25, v61")
    a("v_lshlrev_b32 v26, 6, v24"); a("v_lshrrev_b32 v27, 5, v0"); a("s_lshl_b32 s67, s52, 1"); a("v_add_u32 v27, s67, v27")
    a("v_lshl_add_u32 v27, v27, 2, v26")
    a.wait_lg0(); a("s_barrier")
    a("ds_write_b32 v27, v21"); a("ds_write_b32 v27, v22 offset:2048")
    a.wait_lg0(); a("s_barrier")
    for m in range(2):
        for i in range(4): a(f"ds_read_b128 v[{112+16*m+4*i}:{115+16*m+4*i}], v26 offset:{2048*m+16*i}")
    a.wait_lg0()
    for m in range(2):
        b=112+16*m
        for st_ in (1,2,4,8):
            for i in range(0,16,2*st_): a(f"v_add_f32 v{b+i}, v{b+i}, v{b+i+st_}")
        a(f"v_mov_b32 v{21+m}, v{b}")
    a("v_cmp_gt_u32 vcc, 32, v0")
    aug_x(a,"v60",44)
    aug_w(a,"v21",48,"v26","v27"); aug_w(a,"v22",52,"v26","v27")
    a("v_mfma_f32_32x32x16_bf16 v[64:79], v[48:51], v[44:47], v[64:79]")
    a("v_mfma_f32_32x32x16_bf16 v[80:95], v[44:47], v[52:55], v[80:95]")
    a("v_lshrrev_b32 v26, 5, v0"); a("v_lshlrev_b32 v26, 4, v26"); a("v_add_u32 v26, s63, v26")
    for g in range(4): a(f"ds_read_b128 v[{28+4*g}:{31+4*g}], v26 offset:{32*g}")
    a("s_lshl_b32 s4, s55, 3"); a("s_add_u32 s4, s4, s52"); a("s_mul_i32 s5, s4, 2560"); a(f"s_add_u32 s5, s5, {L.KV}")
    for i in range(12): a(f"v_mul_f32 v{64+i}, v61, v{64+i}")
    for i in range(6): a(f"v_cvt_pk_bf16_f32 v{96+i}, v{64+2*i}, v{65+2*i}")
    a("buffer_store_dwordx4 v[96:99], v16, s[48:51], s5 offen")
    a("v_cndmask_b32 v100, 0, v100, vcc"); a("v_cndmask_b32 v101, 0, v101, vcc")
    a("v_mov_b32 v102, 0")
    for i in range(6): a(f"v_dot2_f32_bf16 v102, v{96+i}, v{96+i}, v102")
    a("v_lshlrev_b32 v27, 3, v0")
    a("s_and_saveexec_b64 s[78:79], vcc")
    a("buffer_store_dwordx2 v[100:101], v27, s[48:51], s5 offen offset:1024")
    a("s_mov_b64 exec, s[78:79]")
    a("v_mov_b32 v103, v102"); a("v_permlane32_swap_b32 v102, v103"); a("v_add_f32 v102, v102, v103")
    a.wait_lg0()
    for x in (1,2,4,8,16):
        a(f"ds_swizzle_b32 v103, v102 offset:0x{(x<<10)|0x1f:04x}"); a.wait_lg0(); a("v_max_f32 v102, v102, v103")
    a("s_lshl_b32 s6, s4, 2"); a(f"s_add_u32 s6, s6, {L.KN}")
    a("v_mov_b32 v104, 0")
    a("v_cmp_eq_u32 vcc, 0, v0")
    a("s_and_saveexec_b64 s[78:79], vcc")
    a("buffer_store_dword v102, v104, s[48:51], s6 offen")
    a("s_mov_b64 exec, s[78:79]")
    for i in range(16): a(f"v_mul_f32 v{80+i}, v{28+i}, v{80+i}")
    for i in range(8): a(f"v_cvt_pk_bf16_f32 v{104+i}, v{80+2*i}, v{81+2*i}")
    a("v_lshrrev_b32 v26, 5, v0"); a("v_mul_u32_u24 v26, 320, v26"); a("v_lshl_add_u32 v26, v24, 4, v26")
    a("v_cmp_gt_u32 vcc, 20, v24")
    a("s_and_saveexec_b64 s[78:79], vcc")
    a("buffer_store_dwordx4 v[104:107], v26, s[48:51], s5 offen offset:1280")
    a("buffer_store_dwordx4 v[108:111], v26, s[48:51], s5 offen offset:1920")
    a("s_mov_b64 exec, s[78:79]")
    a("s_branch K1_END")

    a.label("K1_RELAY")
    a.ev={}; a.vm=[]; a.lg=[]
    a("s_sub_u32 s70, s56, 30"); a("s_lshl_b32 s70, s70, 3"); a("s_add_u32 s70, s70, s55")
    a("s_lshl_b32 s70, s70, 1"); a("s_add_u32 s70, s70, s54")
    a("s_mul_i32 s69, s53, 320")
    for i in range(5):
        a(f"v_add_u32 v10, {64*i}, v0"); a("v_mul_u32_u24 v11, 3277, v10"); a("v_lshrrev_b32 v11, 16, v11")
        a("v_mul_u32_u24 v12, 20, v11"); a("v_sub_u32 v12, v10, v12")
        a("v_lshlrev_b32 v12, 4, v12"); a("v_add_u32 v12, s69, v12")
        a("v_mul_u32_u24 v13, 1280, v11"); a(f"v_add_u32 v{60+i}, v13, v12")
        a("v_lshrrev_b32 v13, 3, v11"); a("v_mul_u32_u24 v13, 80, v13")
        a("v_bfe_u32 v14, v11, 2, 1"); a("v_mul_u32_u24 v14, 20, v14"); a("v_and_b32 v15, 3, v11")
        a("v_add3_u32 v13, v13, v14, v15"); a("v_mul_u32_u24 v13, 1280, v13"); a(f"v_add_u32 v{65+i}, v13, v12")
    a("s_mul_i32 s65, s52, 20480")
    a("v_lshrrev_b32 v11, 5, v0"); a("v_and_b32 v12, 15, v0"); a("v_lshrrev_b32 v13, 2, v12"); a("v_and_b32 v12, 3, v12")
    a("v_lshl_add_u32 v14, v11, 2, v13"); a("v_mul_u32_u24 v14, 320, v14")
    a("v_lshrrev_b32 v15, 4, v0"); a("v_and_b32 v15, 1, v15"); a("v_lshl_add_u32 v14, v15, 5, v14")
    a("v_lshl_add_u32 v14, v12, 3, v14"); a("v_add_u32 v30, s65, v14")
    def issue(a, r):
        a(f"s_add_u32 s4, s70, {32*r}")
        a(f"s_add_u32 s6, s65, {5120*(r&3)}")
        a("s_cmp_ge_u32 s4, 96"); a(f"s_cbranch_scc1 K1_RI_WO{r}")
        srd(a,40,32,1536*1280)
        a(f"s_mul_i32 s5, s4, {16*1280}")
        a(f"s_branch K1_RI_REG{r}")
        a.label(f"K1_RI_WO{r}")
        srd(a,40,24,640*1280)
        a("s_sub_u32 s4, s4, 96")
        a(f"s_mul_i32 s5, s4, {20*1280}")
        a("s_cmp_lt_u32 s4, 32"); a(f"s_cbranch_scc1 K1_RI_REG{r}")
        a("s_sub_u32 s4, s4, 32"); a("s_lshr_b32 s5, s4, 1"); a("s_lshl_b32 s5, s5, 3"); a("s_and_b32 s4, s4, 1"); a("s_lshl_b32 s4, s4, 1")
        a("s_add_u32 s5, s5, s4"); a("s_mul_i32 s5, s5, 20"); a("s_add_u32 s5, s5, 16"); a("s_mul_i32 s5, s5, 1280")
        for i in range(5):
            a(f"s_add_u32 m0, s6, {1024*i}"); a("s_nop 0")
            a.raw(f"    buffer_load_dwordx4 v{65+i}, s[40:43], s5 offen {NT} lds")
        a(f"s_branch K1_RI_DONE{r}")
        a.label(f"K1_RI_REG{r}")
        for i in range(5):
            a(f"s_add_u32 m0, s6, {1024*i}"); a("s_nop 0")
            a(f"buffer_load_dwordx4 v{60+i}, s[40:43], s5 offen {NT} lds", f"u{r}")
        a.label(f"K1_RI_DONE{r}")
    def process(a, r):
        a(f"s_add_u32 s4, s70, {32*r}"); a("s_mul_i32 s4, s4, 20480"); a("s_mul_i32 s5, s53, 5120")
        a("s_add_u32 s4, s4, s5"); a(f"s_add_u32 s4, s4, {L.W2F}"); a("s_add_u32 s5, s4, 4096")
        for c in range(5):
            for jj in range(2):
                a(f"ds_read_b64_tr_b16 v[{32+4*c+2*jj}:{33+4*c+2*jj}], v30 offset:{5120*(r&3)+2560*jj+64*c}", f"c{c}")
        for c in range(5):
            a.wait_lg(f"c{c}")
            a(f"buffer_store_dwordx4 v[{32+4*c}:{35+4*c}], v16, s[48:51], {'s4' if c<4 else 's5'} offen offset:{1024*(c&3)}", "st")
    assert L.W2F+96*20480==L.WOF
    for r in range(4): issue(a,r)
    a.settle()
    share_now(a,"K1_RLSG")
    process(a,0)
    a("s_cmp_ge_u32 s70, 8"); a("s_cbranch_scc1 K1_RI_NO5")
    issue(a,4)
    a.label("K1_RI_NO5")
    a.wait_vm0()
    for r in range(1,4): process(a,r)
    a("s_cmp_ge_u32 s70, 8"); a("s_cbranch_scc1 K1_END")
    a.settle()
    process(a,4)
    a.label("K1_END")
    if DIAG:
        a.raw("    s_cmp_ge_u32 s2, 256\n    s_cbranch_scc1 K1_END2\n    s_cmp_ge_u32 s52, 8\n    s_cbranch_scc1 K1_END2")
        stamp(a,7); stamp(a,9,True)
        dump(a,0,"s52",vtmp=160)
        a.label("K1_END2")
    a("s_endpgm")
    return a.text(), dict(vgpr=168, sgpr=102, lds=163840, block=768, grid=256)
```

```python
from asmlib import Asm
import layout as L
from diag import stamp, dump, DIAG
from k1 import srd, f2u
import os
NOKV=os.environ.get('NOKV','0')=='1'
NOGEMM=os.environ.get('NOGEMM','0')=='1'
NOEXEC=os.environ.get('NOEXEC','0')=='1'
NOPRIO=os.environ.get('NOPRIO','0')=='1'
THR=48.0
BMASK=(1<<10)|(1<<12)

Q1,Q2=4,8
def K1b(p): return f"v[{12+8*p}:{15+8*p}]"
def K2b(p): return f"v[{16+8*p}:{19+8*p}]"
def K2lo(p): return f"v[{16+8*p}:{17+8*p}]"
def Vb(p,x): b=28+8*p+4*x; return f"v[{b}:{b+3}]"
PP=(44,52)
SS=(60,76)
OO=92
CC=108
T0=124
def r16(b): return f"v[{b}:{b+15}]"
def r4(b): return f"v[{b}:{b+3}]"

def wg_decode(a):
    a("s_and_b32 s63, s2, 7"); a("s_lshr_b32 s67, s2, 3")
    a("s_lshl_b32 s55, s63, 3"); a("s_lshr_b32 s68, s67, 2"); a("s_add_u32 s55, s55, s68")
    a("s_and_b32 s56, s67, 3")

def k2():
    a=Asm()
    a.raw(".globl k2_kernel\n.p2align 8\n.type k2_kernel,@function\nk2_kernel:")
    a("s_cmp_ge_u32 s2, 256"); a("s_cbranch_scc1 K2_END")
    stamp(a,0); stamp(a,8,True)
    a("s_load_dwordx2 s[16:17], s[0:1], 0")
    a("s_load_dwordx2 s[34:35], s[0:1], 88")
    a("v_lshrrev_b32 v1, 6, v0"); a("v_readfirstlane_b32 s52, v1"); a("v_and_b32 v0, 63, v0")
    wg_decode(a)
    a("s_waitcnt lgkmcnt(0)")
    srd(a,48,34,L.WS_END)
    a("s_cmp_ge_u32 s52, 8"); a("s_cbranch_scc1 K2_GEMM")
    if not NOPRIO: a("s_setprio 2")
    t=lambda i: f"v{T0+i}"
    a("v_lshlrev_b32 v1, 4, v0")
    a(f"v_lshlrev_b32 {t(0)}, 2, v0"); a(f"s_mov_b32 s60, {L.KN}")
    a(f"buffer_load_dword {t(1)}, {t(0)}, s[48:51], s60 offen","kn")
    a(f"v_and_b32 {t(2)}, 7, v0"); a("s_lshl_b32 s63, s56, 3"); a(f"v_add_u32 {t(2)}, s63, {t(2)}")
    a(f"v_bfe_u32 {t(3)}, v0, 3, 2")
    a(f"v_lshrrev_b32 {t(4)}, 5, v0")
    a("s_lshl_b32 s63, s52, 2"); a(f"v_add_u32 {t(5)}, s63, {t(3)}")
    a(f"v_mul_u32_u24 {t(5)}, 5, {t(5)}")
    a(f"s_mul_i32 s61, s55, {40*1024}")
    def qaddr(dst, p):
        a(f"v_lshrrev_b32 {t(6)}, 2, {p}"); a(f"v_lshlrev_b32 {t(6)}, 10, {t(6)}")
        a(f"v_and_b32 {t(7)}, 1, {p}"); a(f"v_lshl_add_u32 {t(7)}, {t(7)}, 5, {t(2)}"); a(f"v_lshl_add_u32 {t(6)}, {t(7)}, 4, {t(6)}")
        a(f"v_bfe_u32 {t(7)}, {p}, 1, 1"); a(f"v_lshl_add_u32 {dst}, {t(7)}, 3, {t(6)}")
    a(f"v_add_u32 {t(8)}, {t(5)}, {t(4)}")
    qaddr(t(9),t(8)); a(f"buffer_load_dwordx2 v[{Q1}:{Q1+1}], {t(9)}, s[48:51], s61 offen","q")
    a(f"v_add_u32 {t(8)}, 2, {t(8)}")
    qaddr(t(10),t(8)); a(f"buffer_load_dwordx2 v[{Q1+2}:{Q1+3}], {t(10)}, s[48:51], s61 offen","q")
    a(f"v_add_u32 {t(8)}, 4, {t(5)}")
    qaddr(t(11),t(8)); a(f"buffer_load_dwordx2 v[{Q2}:{Q2+1}], {t(11)}, s[48:51], s61 offen","q")
    a("s_lshl_b32 s62, s52, 10"); a(f"s_add_u32 s63, s62, {L.KV}")
    for m in range(4):
        a("s_mov_b32 m0, s62")
        a("s_add_u32 s62, s62, 8192")
        a("buffer_load_dwordx4 v1, s[48:51], s63 offen lds", "c0")
        a("s_add_u32 s63, s63, 8192")
    a(f"v_and_b32 {t(0)}, 31, v0")
    a(f"v_lshlrev_b32 v2, 3, {t(0)}"); a("v_add_u32 v2, 1024, v2")
    a(f"v_mul_u32_u24 v3, 320, {t(4)}"); a(f"v_lshl_add_u32 v3, {t(0)}, 4, v3"); a("v_add_u32 v3, 1280, v3")
    a(f"v_cmp_gt_u32 vcc, 20, {t(0)}"); a("s_mov_b64 s[70:71], vcc")
    a(f"v_and_b32 {t(8)}, 27, {t(0)}"); a(f"v_cmp_eq_u32 vcc, 24, {t(8)}")
    a(f"v_mov_b32 {t(8)}, 0x3f803f80"); a(f"v_cndmask_b32 {t(8)}, 0, {t(8)}, vcc")
    for r in range(28,44): a(f"v_mov_b32 v{r}, {t(8)}")
    for r in (18,19,26,27): a(f"v_mov_b32 v{r}, 0")
    for r in range(PP[1],PP[1]+8): a(f"v_mov_b32 v{r}, 0")
    for r in range(OO,OO+16): a(f"v_mov_b32 v{r}, 0")
    a.wait_vm("kn")
    a(f"v_mov_b32 {t(8)}, {t(1)}"); a(f"v_permlane32_swap_b32 {t(1)}, {t(8)}"); a(f"v_max_f32 {t(1)}, {t(1)}, {t(8)}")
    for x in (1,2,4,8,16):
        a(f"ds_swizzle_b32 {t(8)}, {t(1)} offset:0x{(x<<10)|0x1f:04x}"); a.wait_lg0(); a(f"v_max_f32 {t(1)}, {t(1)}, {t(8)}")
    a.wait_vm("q")
    a("v_cmp_gt_u32 vcc, 32, v0")
    a(f"v_cndmask_b32 v{Q2}, 0, v{Q2}, vcc"); a(f"v_cndmask_b32 v{Q2+1}, 0, v{Q2+1}, vcc")
    a(f"v_mov_b32 v{Q2+2}, 0"); a(f"v_mov_b32 v{Q2+3}, 0")
    a(f"v_mov_b32 {t(6)}, 0")
    for i in range(6): a(f"v_dot2_f32_bf16 {t(6)}, v{Q1+i}, v{Q1+i}, {t(6)}")
    a(f"v_mov_b32 {t(7)}, {t(6)}"); a(f"v_permlane32_swap_b32 {t(6)}, {t(7)}")
    a(f"v_add_f32 {t(6)}, {t(6)}, {t(7)}"); a(f"v_mul_f32 {t(6)}, {t(6)}, {t(1)}")
    a(f"v_sqrt_f32 {t(6)}, {t(6)}"); a(f"v_mul_f32 {t(6)}, 0x{f2u(1.01):08x}, {t(6)}")
    a(f"v_cmp_ge_f32 vcc, 0x{f2u(THR):08x}, {t(6)}")
    a(f"s_mov_b32 s72, {BMASK|2}")
    stamp(a,1)
    a.wait_vm("c0"); a("s_barrier")
    stamp(a,2)
    a("s_cmp_eq_u64 vcc, exec"); a("s_cbranch_scc1 K2_FAST")
    a("s_barrier")
    a(f"s_mov_b32 s72, {BMASK}")
    a(f"v_mov_b32 {t(6)}, 0xff800000")
    a(f"v_mov_b32 {t(10)}, v1"); a(f"v_mov_b32 {t(11)}, v2"); a("s_mov_b32 s73, 64")
    a.settle()
    a.label("K2_PRE")
    a(f"ds_read_b128 {K1b(0)}, {t(10)}"); a(f"ds_read_b64 {K2lo(0)}, {t(11)}")
    a(f"v_add_u32 {t(10)}, 2560, {t(10)}"); a(f"v_add_u32 {t(11)}, 2560, {t(11)}")
    a.wait_lg0()
    a(f"v_mfma_f32_32x32x16_bf16 {r16(SS[0])}, {K1b(0)}, {r4(Q1)}, 0")
    a(f"v_mfma_f32_32x32x16_bf16 {r16(SS[0])}, {K2b(0)}, {r4(Q2)}, {r16(SS[0])}")
    for i in range(0,16,2): a(f"v_max3_f32 {t(6)}, v{SS[0]+i}, v{SS[0]+i+1}, {t(6)}")
    a("s_sub_u32 s73, s73, 1"); a("s_cmp_lg_u32 s73, 0")
    a.settle()
    a("s_cbranch_scc1 K2_PRE")
    a(f"v_mov_b32 {t(7)}, {t(6)}"); a(f"v_permlane32_swap_b32 {t(6)}, {t(7)}"); a(f"v_max_f32 {t(6)}, {t(6)}, {t(7)}")
    a.settle()
    a.label("K2_FAST")
    a.vm=[]
    a(f"ds_read_b128 {K1b(0)}, v1"); a(f"ds_read_b64 {K2lo(0)}, v2")
    a(f"ds_read_b128 {K1b(1)}, v1 offset:2560"); a(f"ds_read_b64 {K2lo(1)}, v2 offset:2560")
    for i in range(16): a(f"v_sub_f32 v{CC+i}, 0, {t(6)}")
    a.wait_lg0()
    a(f"v_mfma_f32_32x32x16_bf16 {r16(SS[0])}, {K1b(0)}, {r4(Q1)}, {r16(CC)}")
    a(f"v_mfma_f32_32x32x16_bf16 {r16(SS[0])}, {K2b(0)}, {r4(Q2)}, {r16(SS[0])}")
    def tile(tt, j):
        p=j&1; S=SS[p]; P=PP[p]
        tt.wait_lg0()
        mf=[f"v_mfma_f32_32x32x16_bf16 {r16(SS[1-p])}, {K1b(1-p)}, {r4(Q1)}, {r16(CC)}",
            f"v_mfma_f32_32x32x16_bf16 {r16(OO)}, {Vb(1-p,0)}, {r4(PP[1-p])}, {r16(OO)}",
            f"v_mfma_f32_32x32x16_bf16 {r16(SS[1-p])}, {K2b(1-p)}, {r4(Q2)}, {r16(SS[1-p])}",
            f"v_mfma_f32_32x32x16_bf16 {r16(OO)}, {Vb(1-p,1)}, {r4(PP[1-p]+4)}, {r16(OO)}"]
        ex=[f"ds_read_b128 {K1b(p)}, v1 offset:{2560*(j+2)}", f"ds_read_b64 {K2lo(p)}, v2 offset:{2560*(j+2)}",
            "s_mov_b64 exec, s[70:71]",
            f"ds_read_b128 {Vb(p,0)}, v3 offset:{2560*j}", f"ds_read_b128 {Vb(p,1)}, v3 offset:{2560*j+640}",
            "s_mov_b64 exec, -1"]
        E=[f"v_exp_f32 v{S+i}, v{S+i}" for i in range(16)]
        C=[f"v_cvt_pk_bf16_f32 v{P+i}, v{S+2*i}, v{S+2*i+1}" for i in range(8)]
        groups=[E[0:4], [E[4],C[0],E[5],C[1],E[6],E[7]], [E[8],C[2],E[9],C[3],E[10],E[11]], [E[12],C[4],E[13],C[5],E[14],E[15],C[6],C[7]]]
        for k in range(4):
            tt(mf[k])
            if k==0:
                for x in ex:
                    if NOKV and x.startswith('ds_'): tt.lg.append(None); continue
                    if (NOKV or NOEXEC) and x.startswith('s_mov'): continue
                    tt(x)
            for x in groups[k]: tt(x)
    a("s_mov_b32 s73, 0")
    a.settle()
    stamp(a,3)
    a.lg=[None]*4
    def body(tt):
        for j in range(4): tile(tt,j)
    def tail(tt):
        for r in (1,2,3): tt(f"v_add_u32 v{r}, 10240, v{r}")
        tt("s_bitcmp1_b32 s72, s73")
        def bar(t2):
            stamp(t2,5); t2.raw("    s_barrier"); stamp(t2,6)
        tt.cond_block("s_cbranch_scc0 K2_NOBAR","K2_NOBAR",bar)
        tt("s_add_u32 s73, s73, 1"); tt("s_cmp_lg_u32 s73, 16"); tt("s_cbranch_scc1 K2_LOOP")
    a.loop("K2_LOOP", body, tail)
    stamp(a,4)
    a.wait_lg0()
    a(f"v_mfma_f32_32x32x16_bf16 {r16(OO)}, {Vb(1,0)}, {r4(PP[1])}, {r16(OO)}")
    a(f"v_mfma_f32_32x32x16_bf16 {r16(OO)}, {Vb(1,1)}, {r4(PP[1]+4)}, {r16(OO)}")
    a(f"v_lshlrev_b32 {t(5)}, 10, {t(3)}"); a(f"v_lshl_add_u32 {t(5)}, {t(4)}, 9, {t(5)}"); a(f"v_lshl_add_u32 {t(5)}, {t(2)}, 4, {t(5)}")
    a(f"s_mul_i32 s61, s55, {40*1024}"); a(f"s_add_u32 s61, s61, {L.OF}")
    a("s_lshl_b32 s63, s52, 12"); a("s_add_u32 s62, s61, s63")
    a(f"v_lshrrev_b32 {t(10)}, 1, {t(3)}"); a(f"v_lshlrev_b32 {t(10)}, 10, {t(10)}"); a(f"v_and_b32 {t(11)}, 1, {t(3)}")
    a(f"v_lshl_add_u32 {t(10)}, {t(11)}, 9, {t(10)}"); a(f"v_lshl_add_u32 {t(10)}, {t(2)}, 4, {t(10)}")
    a("s_lshr_b32 s64, s52, 1"); a("s_lshl_b32 s64, s64, 11"); a("s_add_u32 s64, s64, s61"); a("s_add_u32 s64, s64, 32768")
    a("s_and_b32 s63, s52, 1"); a("s_lshl_b32 s63, s63, 3"); a("s_add_u32 s64, s64, s63")
    a(f"v_rcp_f32 {t(6)}, v{OO+12}")
    for i in range(12): a(f"v_mul_f32 v{OO+i}, {t(6)}, v{OO+i}")
    for i in range(6): a(f"v_cvt_pk_bf16_f32 v{SS[0]+i}, v{OO+2*i}, v{OO+2*i+1}")
    a(f"buffer_store_dwordx4 {r4(SS[0])}, {t(5)}, s[48:51], s62 offen")
    a("v_cmp_gt_u32 vcc, 32, v0")
    a("s_and_saveexec_b64 s[78:79], vcc")
    a(f"buffer_store_dwordx2 v[{SS[0]+4}:{SS[0]+5}], {t(10)}, s[48:51], s64 offen")
    a("s_branch K2_END")

    a.label("K2_GEMM")
    a.ev={}; a.vm=[]; a.lg=[]
    srd(a,36,16,2048*1280)
    a("s_sub_u32 s53, s52, 8")
    a("v_lshlrev_b32 v1, 4, v0"); a("v_add_u32 v2, 4096, v1")
    a(f"s_mul_i32 s60, s55, {96*1024}"); a(f"s_mul_i32 s63, s53, {24*1024}"); a("s_add_u32 s60, s60, s63"); a(f"s_add_u32 s60, s60, {L.HF}")
    a(f"s_mul_i32 s61, s53, {24*20480}"); a(f"s_mul_i32 s63, s56, 5120"); a("s_add_u32 s61, s61, s63"); a(f"s_add_u32 s61, s61, {L.W2F}")
    def ld(t, s):
        b=84+24*s
        t(f"buffer_load_dwordx4 {r4(b)}, v1, s[48:51], s60 offen", f"s{s}")
        for c in range(4): t(f"buffer_load_dwordx4 {r4(b+4+4*c)}, v1, s[48:51], s61 offen offset:{1024*c}", f"s{s}")
        t(f"buffer_load_dwordx4 {r4(b+20)}, v2, s[48:51], s61 offen", f"s{s}")
        t("s_add_u32 s60, s60, 1024"); t("s_add_u32 s61, s61, 20480")
    a("s_barrier")
    a("s_lshl_b32 s62, s53, 10"); a("s_add_u32 s62, s62, 32768"); a(f"s_add_u32 s63, s62, {L.KV}")
    for m in range(32):
        a("s_mov_b32 m0, s62")
        a("s_add_u32 s62, s62, 4096")
        a("buffer_load_dwordx4 v1, s[48:51], s63 offen lds", "kv")
        a("s_add_u32 s63, s63, 4096")
    for s in range(3): ld(a,s)
    for r in range(4,84): a(f"v_mov_b32 v{r}, 0")
    stamp(a,1)
    a.wait_vm("kv")
    a("s_barrier")
    stamp(a,2)
    def mm(t, s):
        b=84+24*s
        t.wait_vm(f"s{s}")
        for c in range(5): t(f"v_mfma_f32_32x32x16_bf16 {r16(4+16*c)}, {r4(b+4+4*c)}, {r4(b)}, {r16(4+16*c)}")
    def gbody(t):
        for s in range(3): mm(t,s); ld(t,s)
    def gtail(t):
        t("s_sub_u32 s73, s73, 1"); t("s_cmp_lg_u32 s73, 0"); t("s_cbranch_scc1 K2_GLOOP")
    a("s_mov_b32 s73, 7")
    if not NOGEMM: a.loop("K2_GLOOP", gbody, gtail)
    for s in range(3): mm(a,s)
    stamp(a,3)
    a("v_and_b32 v3, 31, v0"); a("s_lshl_b32 s63, s55, 5"); a("v_add_u32 v3, s63, v3"); a("v_mul_u32_u24 v3, 1280, v3")
    a("v_lshrrev_b32 v84, 5, v0"); a("v_lshl_add_u32 v3, v84, 3, v3")
    a("s_mul_i32 s62, s56, 320"); a("s_lshl_b32 s63, s53, 4"); a("s_add_u32 s62, s62, s63")
    for c in range(5): a(f"buffer_load_dwordx2 v[{88+2*c}:{89+2*c}], v3, s[36:39], s62 offen offset:{64*c}","x")
    a("s_mul_i32 s63, s53, 20480"); a("v_add_u32 v84, s63, v1")
    a("s_lshl_b32 s63, s53, 10"); a("v_add_u32 v85, s63, v1"); a("v_add_u32 v86, 40960, v85")
    a("s_barrier")
    stamp(a,4)
    for c in range(5):
        for g in range(4): a(f"ds_write_b128 v84, {r4(4+16*c+4*g)} offset:{(c*4+g)*1024}")
    a.wait_lg0(); a("s_barrier")
    stamp(a,5)
    for c in range(5):
        for s in range(4): a(f"ds_read_b128 {r4(4+16*c+4*s)}, v{85+(s>>1)} offset:{(s&1)*20480+c*4096}", f"r{c}")
    a("s_mul_i32 s62, s2, 20480"); a("s_lshl_b32 s63, s53, 10"); a("s_add_u32 s62, s62, s63"); a(f"s_add_u32 s62, s62, {L.Y0}")
    a.wait_vm("x")
    for c in range(5):
        a.wait_lg(f"r{c}")
        b=4+16*c
        a(f"v_lshlrev_b32 v100, 16, v{88+2*c}"); a(f"v_and_b32 v101, 0xffff0000, v{88+2*c}")
        a(f"v_lshlrev_b32 v102, 16, v{89+2*c}"); a(f"v_and_b32 v103, 0xffff0000, v{89+2*c}")
        for i in range(4):
            a(f"v_add_f32 v{b+i}, v{b+i}, v{b+4+i}"); a(f"v_add_f32 v{b+8+i}, v{b+8+i}, v{b+12+i}")
        for i in range(4):
            a(f"v_add_f32 v{b+i}, v{b+i}, v{b+8+i}")
        for i in range(4):
            a(f"v_add_f32 v{b+i}, v{b+i}, v{100+i}")
        a(f"buffer_store_dwordx4 {r4(b)}, v1, s[48:51], s62 offen")
        a("s_add_u32 s62, s62, 4096")
    a.label("K2_END")
    if DIAG:
        a.raw("    s_cmp_ge_u32 s2, 256\n    s_cbranch_scc1 K2_END2")
        stamp(a,7); stamp(a,9,True)
        dump(a,1,"s52",vtmp=160,wmul=4)
        a.label("K2_END2")
    a("s_endpgm")
    return a.text(), dict(vgpr=168, sgpr=102, lds=163840, block=768, grid=256)

def k3():
    a=Asm()
    a.raw(".globl k3_kernel\n.p2align 8\n.type k3_kernel,@function\nk3_kernel:")
    a("s_cmp_ge_u32 s2, 256"); a("s_cbranch_scc1 K3_END")
    stamp(a,0); stamp(a,8,True)
    a("s_load_dwordx2 s[16:17], s[0:1], 72")
    a("s_load_dwordx2 s[34:35], s[0:1], 88")
    a("v_lshrrev_b32 v1, 6, v0"); a("v_readfirstlane_b32 s53, v1"); a("v_and_b32 v0, 63, v0")
    wg_decode(a)
    a("v_lshlrev_b32 v1, 4, v0"); a("v_add_u32 v2, 4096, v1")
    a(f"s_mul_i32 s60, s55, {40*1024}"); a(f"s_mul_i32 s63, s53, {10*1024}"); a("s_add_u32 s60, s60, s63"); a(f"s_add_u32 s60, s60, {L.OF}")
    a(f"s_mul_i32 s61, s53, {10*20480}"); a(f"s_mul_i32 s63, s56, 5120"); a("s_add_u32 s61, s61, s63"); a(f"s_add_u32 s61, s61, {L.WOF}")
    a("s_waitcnt lgkmcnt(0)")
    srd(a,48,34,L.WS_END); srd(a,36,16,2048*1280)
    for s in range(10):
        b=8+24*s
        a(f"buffer_load_dwordx4 {r4(b)}, v1, s[48:51], s60 offen", f"s{s}")
        for c in range(4): a(f"buffer_load_dwordx4 {r4(b+4+4*c)}, v1, s[48:51], s61 offen offset:{1024*c}", f"s{s}")
        a(f"buffer_load_dwordx4 {r4(b+20)}, v2, s[48:51], s61 offen", f"s{s}")
        a("s_add_u32 s60, s60, 1024"); a("s_add_u32 s61, s61, 20480")
    a("s_mul_i32 s62, s2, 20480"); a("s_lshl_b32 s63, s53, 10"); a("s_add_u32 s62, s62, s63"); a(f"s_add_u32 s62, s62, {L.Y0}")
    a("s_mul_i32 s63, s53, 20480"); a("v_add_u32 v4, s63, v1")
    a("s_lshl_b32 s63, s53, 10"); a("v_add_u32 v5, s63, v1"); a("v_add_u32 v6, 40960, v5")
    a("v_and_b32 v3, 31, v0"); a("s_lshl_b32 s63, s55, 5"); a("v_add_u32 v3, s63, v3"); a("v_mul_u32_u24 v3, 1280, v3")
    a("v_lshrrev_b32 v7, 5, v0"); a("v_lshl_add_u32 v3, v7, 3, v3")
    a("s_mul_i32 s64, s56, 320"); a("s_lshl_b32 s63, s53, 4"); a("s_add_u32 s64, s64, s63")
    stamp(a,1)
    for s in range(10):
        b=8+24*s
        a.wait_vm(f"s{s}")
        if s==0: stamp(a,2)
        for c in range(5):
            C="0" if s==0 else f"a[{16*c}:{16*c+15}]"
            a(f"v_mfma_f32_32x32x16_bf16 a[{16*c}:{16*c+15}], {r4(b+4+4*c)}, {r4(b)}, {C}")
        if s==1:
            for c in range(5):
                a(f"buffer_load_dwordx4 {r4(8+4*c)}, v1, s[48:51], s62 offen", "y")
                a("s_add_u32 s62, s62, 4096")
    stamp(a,3)
    for c in range(5):
        for g in range(4): a(f"ds_write_b128 v4, a[{16*c+4*g}:{16*c+4*g+3}] offset:{(c*4+g)*1024}")
    a.wait_lg0(); a("s_barrier")
    for c in range(5):
        for s in range(4): a(f"ds_read_b128 {r4(88+16*c+4*s)}, v{5+(s>>1)} offset:{(s&1)*20480+c*4096}", f"r{c}")
    stamp(a,4)
    a.wait_vm("y")
    for c in range(5):
        a.wait_lg(f"r{c}")
        b=88+16*c
        for i in range(4):
            a(f"v_add_f32 v{b+i}, v{b+i}, v{b+4+i}"); a(f"v_add_f32 v{b+8+i}, v{b+8+i}, v{b+12+i}")
        for i in range(4): a(f"v_add_f32 v{b+i}, v{b+i}, v{b+8+i}")
        for i in range(4): a(f"v_add_f32 v{b+i}, v{b+i}, v{8+4*c+i}")
        a(f"v_cvt_pk_bf16_f32 v{b}, v{b}, v{b+1}"); a(f"v_cvt_pk_bf16_f32 v{b+1}, v{b+2}, v{b+3}")
        a(f"buffer_store_dwordx2 v[{b}:{b+1}], v3, s[36:39], s64 offen offset:{64*c}")
    a.label("K3_END")
    if DIAG:
        a.raw("    s_cmp_ge_u32 s2, 256\n    s_cbranch_scc1 K3_END2")
        stamp(a,7); stamp(a,9,True)
        dump(a,2,"s53",vtmp=250)
        a.label("K3_END2")
    a("s_endpgm")
    return a.text(), dict(vgpr=256+80, accum=256, sgpr=102, lds=81920, block=256, grid=256)
```

```python
from asmlib import Asm
import layout as L
from diag import stamp as stamp0, dump, DIAG
import os as _os
SB=_os.environ.get('SB','0')=='1'
def stamp(a,i,real=False):
    if SB and i in (2,3,5,6): return
    if SB and i==4: i=5
    stamp0(a,i,real)
def stampb(a,i):
    if SB: stamp0(a,i)
import math, struct, os
def f2u(x): return struct.unpack('<I',struct.pack('<f',x))[0]
LOG2E=math.log2(math.e)
NT=os.environ.get('NT','')
NOPF=os.environ.get('NOPF','1')=='1'
NODMA=os.environ.get('NODMA','0')=='1'
NOREAD=os.environ.get('NOREAD','0')=='1'
NOCS=os.environ.get('NOCS','0')=='1'
NOMF=os.environ.get('NOMF','0')=='1'

SLOT=49152
CSP=147456
KV_WK=98304; KV_WV=126976; KV_ST=155648

def srd(a, d, lo, size, add=0):
    if add:
        a(f"s_add_u32 s{d}, s{lo}, {add}"); a(f"s_addc_u32 s{d+1}, s{lo+1}, 0")
    else:
        a(f"s_mov_b32 s{d}, s{lo}"); a(f"s_mov_b32 s{d+1}, s{lo+1}")
    a(f"s_mov_b32 s{d+2}, {size}"); a(f"s_mov_b32 s{d+3}, 0x00020000")

XF=24
WF=40
ACC=64
TMP=128
SL=136
AUG=152
def xf(st,ts): b=XF+st*8+ts*4; return f"v[{b}:{b+3}]"
def wf(st,m): b=WF+st*8+m*4; return f"v[{b}:{b+3}]"
def acc(ts,m): b=ACC+(ts*2+m)*16; return f"v[{b}:{b+15}]"
def ops_of(fn):
    t=Asm(); fn(t)
    L0=[l.strip() for l in t.lines if not l.strip().startswith('s_nop')]
    out=[]; grp=None
    for l in L0:
        if l.startswith('s_and_saveexec'): grp=[l]; continue
        if grp is not None:
            grp.append(l)
            if l.startswith('s_mov_b64 exec'): out.append('\n'.join(grp)); grp=None
            continue
        out.append(l)
    return out

def x_dma_setup(a):
    a("v_lshrrev_b32 v1, 3, v0")
    a("s_lshl_b32 s63, s55, 8"); a("s_lshl_b32 s67, s52, 5"); a("s_add_u32 s63, s63, s67")
    a("v_add_u32 v1, s63, v1")
    a("v_mul_u32_u24 v1, 1280, v1")
    a("v_and_b32 v2, 7, v0"); a("v_lshrrev_b32 v3, 4, v0")
    a("v_xor_b32 v2, v2, v3")
    a("v_xor_b32 v4, 4, v2")
    a("v_lshl_add_u32 v5, v2, 4, v1")
    a("v_lshl_add_u32 v6, v4, 4, v1")
    a("v_mov_b32 v1, v5")
    a(f"v_add_u32 v2, {9216}, v6")
    a(f"v_add_u32 v3, {2*9216}, v5")
    a(f"v_add_u32 v4, {3*9216}, v6")

def x_dma(a, tag, lds_sgpr):
    a(f"s_add_u32 m0, {lds_sgpr}, s64")
    for e in range(4):
        a(f"buffer_load_dwordx4 v{1+e}, s[36:39], s57 offen offset:{1024*e} {NT} lds", tag)

def xread_setup(a, rowbase_sgpr):
    a("v_and_b32 v10, 31, v0")
    a("v_lshrrev_b32 v11, 1, v10"); a("v_and_b32 v11, 7, v11")
    a("v_lshrrev_b32 v12, 5, v0")
    a(f"v_add_u32 v10, {rowbase_sgpr}, v10"); a("v_lshlrev_b32 v10, 7, v10")
    for ks in range(4):
        a(f"v_add_u32 v13, {2*ks}, v12"); a("v_xor_b32 v13, v13, v11")
        a(f"v_lshl_add_u32 v{6+ks}, v13, 4, v10")

def stats_math(a, s0, q0, negm, rinv):
    c=f2u(1.0/640)
    a(f"v_mul_f32 {s0}, 0x{c:08x}, {s0}"); a(f"v_mul_f32 {q0}, 0x{c:08x}, {q0}")
    a(f"v_fma_f32 {q0}, -{s0}, {s0}, {q0}"); a(f"v_max_f32 {q0}, 0, {q0}")
    a(f"v_cvt_pk_bf16_f32 {negm}, {s0}, {s0}"); a(f"v_xor_b32 {negm}, 0x80008000, {negm}")
    a(f"v_cvt_pk_bf16_f32 {q0}, {q0}, {q0}"); a(f"v_lshlrev_b32 {q0}, 16, {q0}")
    a(f"v_add_f32 {q0}, 0x{f2u(1e-5):08x}, {q0}")
    a(f"v_cvt_pk_bf16_f32 {q0}, {q0}, {q0}"); a(f"v_lshlrev_b32 {q0}, 16, {q0}")
    a(f"v_sqrt_f32 {q0}, {q0}")
    a(f"v_cvt_pk_bf16_f32 {q0}, {q0}, {q0}"); a(f"v_lshlrev_b32 {q0}, 16, {q0}")
    a(f"v_rcp_f32 {rinv}, {q0}")

def stat_ops(regs, tb=TMP):
    o=[]
    for n,r in enumerate(regs):
        A=tb+2*(n&1); B=A+1
        o+= [f"v_lshlrev_b32 v{A}, 16, v{r}", f"v_and_b32 v{B}, 0xffff0000, v{r}",
             f"v_add_f32 v17, v17, v{A}", f"v_add_f32 v18, v18, v{B}",
             f"v_fmac_f32 v19, v{A}, v{A}", f"v_fmac_f32 v20, v{B}, v{B}"]
    return o
def cs_ops(pairs, tb=TMP+4):
    o=[]
    for n,(r,ac) in enumerate(pairs):
        A=tb+2*(n&1); B=A+1
        o+= [f"v_lshlrev_b32 v{A}, 16, v{r}", f"v_and_b32 v{B}, 0xffff0000, v{r}",
             f"v_add_f32 v{ac}, v{ac}, v{A}", f"v_add_f32 v{ac}, v{ac}, v{B}"]
    return o

def share_issue(a):
    a("s_lshl_b32 s63, s55, 8"); a("s_lshl_b32 s67, s56, 3"); a("s_add_u32 s63, s63, s67"); a("s_add_u32 s63, s63, s52")
    a("v_mov_b32 v23, s63"); a("s_mul_i32 s63, s63, 1280")
    a(f"v_lshlrev_b32 v{TMP}, 5, v0"); a(f"v_mov_b32 v{TMP+1}, 0x7f000000"); a("v_cmp_gt_u32 vcc, 40, v0"); a(f"v_cndmask_b32 v{TMP}, v{TMP+1}, v{TMP}, vcc")
    for i in range(2):
        a(f"buffer_load_dwordx4 v[{SL+4*i}:{SL+4*i+3}], v{TMP}, s[36:39], s63 offen offset:{16*i} {NT}", "sl")
def share_finish(t):
    t("v_add_f32 v17, v17, v18"); t("v_add_f32 v19, v19, v20")
    for r in (8,4,2,1):
        t(f"v_add_f32_dpp v17, v17, v17 row_ror:{r} row_mask:0xf bank_mask:0xf")
        t(f"v_add_f32_dpp v19, v19, v19 row_ror:{r} row_mask:0xf bank_mask:0xf")
    for bc,rm in ((15,0xa),(31,0xc)):
        t(f"v_add_f32_dpp v17, v17, v17 row_bcast:{bc} row_mask:0x{rm:x} bank_mask:0xf")
        t(f"v_add_f32_dpp v19, v19, v19 row_bcast:{bc} row_mask:0x{rm:x} bank_mask:0xf")
    stats_math(t,"v17","v19",f"v{TMP}",f"v{TMP+1}")
    t("v_lshlrev_b32 v23, 3, v23")
    t("v_cmp_eq_u32 vcc, 63, v0")
    t("s_and_saveexec_b64 s[78:79], vcc")
    t(f"buffer_store_dwordx2 v[{TMP}:{TMP+1}], v23, s[48:51], s76 offen sc0 sc1","ss")
    t("s_mov_b64 exec, s[78:79]")
def signal(a):
    a.raw("    s_mov_b64 exec, 1")
    a.raw(f"    v_mov_b32 v{TMP+6}, 1\n    v_mov_b32 v{TMP+7}, 0\n    s_nop 1")
    a.raw(f"    buffer_store_byte v{TMP+6}, v{TMP+7}, s[72:75], s2 offen sc0 sc1")
    a.raw("    s_mov_b64 exec, -1")

def aug_w(a, cs, d, t0, t1):
    a(f"v_cvt_pk_bf16_f32 {t0}, {cs}, {cs}"); a(f"v_lshlrev_b32 {t1}, 16, {t0}")
    a(f"v_sub_f32 {cs}, {cs}, {t1}")
    a(f"v_cvt_pk_bf16_f32 v{d}, {cs}, {cs}"); a(f"v_lshlrev_b32 {t1}, 16, v{d}")
    a(f"v_sub_f32 {cs}, {cs}, {t1}")
    a(f"v_and_b32 {t0}, 0xffff, {t0}"); a(f"v_or_b32 v{d}, {t0}, {t1}")
    a(f"v_cvt_pk_bf16_f32 v{d+1}, {cs}, 0")
    a(f"v_mov_b32 v{d+2}, 0"); a(f"v_mov_b32 v{d+3}, 0")
def aug_x(a, negm, d):
    a(f"v_cndmask_b32 v{d}, 0, {negm}, vcc")
    a(f"v_and_b32 v{d+1}, 0xffff, v{d}")
    a(f"v_mov_b32 v{d+2}, 0"); a(f"v_mov_b32 v{d+3}, 0")

OOL={}
Asm.ool=OOL
def k1():
    a=Asm()
    a.raw(".globl k1_kernel\n.p2align 8\n.type k1_kernel,@function\nk1_kernel:")
    a("s_cmp_ge_u32 s2, 256"); a("s_cbranch_scc1 K1_END")
    stamp(a,0); stamp(a,8,True)
    a("s_load_dwordx16 s[16:31], s[0:1], 0")
    a("s_load_dwordx2 s[32:33], s[0:1], 64")
    a("s_load_dwordx4 s[12:15], s[0:1], 80")
    a("v_lshrrev_b32 v1, 6, v0"); a("v_readfirstlane_b32 s52, v1"); a("v_and_b32 v0, 63, v0")
    a("s_and_b32 s53, s52, 3"); a("s_lshr_b32 s54, s52, 2")
    a("s_and_b32 s63, s2, 7"); a("s_lshr_b32 s67, s2, 3")
    a("s_lshr_b32 s77, s67, 2"); a("s_and_b32 s68, s67, 3")
    a("s_lshr_b32 s69, s63, 1")
    a("s_lshl_b32 s56, s69, 3"); a("s_add_u32 s56, s56, s77")
    a("s_and_b32 s55, s63, 1"); a("s_lshl_b32 s55, s55, 2"); a("s_add_u32 s55, s55, s68")
    a(f"s_mov_b32 s76, {L.STG}")
    a("s_mov_b32 s71, 0")
    a("s_mov_b32 s66, 0x3f803f80")
    a("s_lshl_b32 s64, s52, 12")
    a("v_lshlrev_b32 v16, 4, v0")
    for r in range(17,23): a(f"v_mov_b32 v{r}, 0")
    a("s_waitcnt lgkmcnt(0)")
    srd(a,48,14,L.WS_END)
    srd(a,36,16,2048*1280)
    srd(a,72,12,256)
    a("s_mov_b32 s57, 0")
    a("s_cmp_lt_u32 s56, 29"); a("s_cbranch_scc1 K1_REG")
    a("s_cmp_ge_u32 s52, 8"); a("s_cbranch_scc1 K1_END")
    a("s_cmp_ge_u32 s56, 30"); a("s_cbranch_scc1 K1_RELAY")
    x_dma_setup(a)
    a("s_branch K1_KV")
    a.label("K1_REG")
    a("s_cmp_ge_u32 s56, 24"); a("s_cbranch_scc1 K1_QSET")
    srd(a,40,28,640*3072); srd(a,44,30,640*3072)
    a("s_mov_b32 s69, 3072"); a("s_lshl_b32 s70, s56, 7")
    a("s_branch K1_SETDONE")
    a.label("K1_QSET")
    srd(a,40,18,640*1280); srd(a,44,18,640*1280-128,add=128)
    a("s_mov_b32 s69, 1280"); a("s_sub_u32 s70, s56, 24"); a("s_lshl_b32 s70, s70, 8")
    a.label("K1_SETDONE")
    a.settle()
    a("s_lshl_b32 s59, s69, 6")
    a("s_cmp_ge_u32 s52, 8"); a("s_cbranch_scc1 K1_LOADER")
    share_issue(a)
    a("s_bitcmp1_b32 s52, 0")
    a("s_cselect_b32 s8, s44, s40"); a("s_cselect_b32 s9, s45, s41"); a("s_cselect_b32 s10, s46, s42"); a("s_mov_b32 s11, 0x00020000")
    a("s_mul_i32 s63, s55, 80"); a("s_lshr_b32 s67, s52, 1"); a("s_mul_i32 s67, s67, 20"); a("s_add_u32 s63, s63, s67"); a("s_mul_i32 s63, s63, s69"); a("s_add_u32 s63, s63, s70")
    a("v_lshrrev_b32 v24, 3, v0"); a("v_mul_lo_u32 v24, v24, s69"); a("v_and_b32 v25, 7, v0"); a("v_lshl_add_u32 v24, v25, 4, v24")
    a("s_lshl_b32 s67, s69, 3")
    a("v_cmp_gt_u32 vcc, 32, v0"); a("v_mov_b32 v26, 0x7f000000"); a("v_cndmask_b32 v26, v26, v24, vcc")
    a(f"buffer_load_dwordx4 v[{SL+8}:{SL+11}], v24, s[8:11], s63 offen","cl"); a("s_add_u32 s63, s63, s67")
    a(f"buffer_load_dwordx4 v[{SL+12}:{SL+15}], v24, s[8:11], s63 offen","cl"); a("s_add_u32 s63, s63, s67")
    a(f"buffer_load_dwordx4 v[{SL+16}:{SL+19}], v26, s[8:11], s63 offen","cl")
    if not NOPF:
        a("s_cmp_ge_u32 s52, 3"); a("s_cbranch_scc1 K1_PFW")
        a("v_and_b32 v4, 31, v0"); a("s_lshl_b32 s63, s55, 8"); a("s_lshl_b32 s67, s77, 5"); a("s_add_u32 s63, s63, s67")
        a("v_add_u32 v4, s63, v4"); a("v_mul_u32_u24 v4, 1280, v4")
        a(f"v_lshrrev_b32 v3, 5, v0"); a(f"v_lshl_add_u32 v4, v3, 7, v4")
        a("s_mov_b32 s8, s36"); a("s_mov_b32 s9, s37"); a("s_mov_b32 s10, s38")
        a("s_lshl_b32 s4, s52, 8"); a("s_add_u32 s28, s4, 768"); a("s_cmp_eq_u32 s52, 2"); a("s_cselect_b32 s28, 0x7f000000, s28")
        a("s_branch K1_PFD")
        a.label("K1_PFW")
        a("s_bitcmp1_b32 s52, 0")
        a("s_cselect_b32 s8, s40, s44"); a("s_cselect_b32 s9, s41, s45"); a("s_mov_b32 s10, s46")
        a("v_lshrrev_b32 v4, 4, v0"); a("v_lshlrev_b32 v4, 6, v4"); a("v_and_b32 v3, 15, v0"); a("v_add_u32 v4, v4, v3")
        a("s_lshl_b32 s63, s68, 4"); a("v_add_u32 v4, s63, v4"); a("v_mul_lo_u32 v4, v4, s69")
        a("s_mul_i32 s63, s59, 6"); a("s_add_u32 s28, s70, s63"); a("s_mov_b32 s4, s70")
        a("s_cmp_lt_u32 s52, 5"); a("s_cbranch_scc1 K1_PFD")
        a("s_lshl_b32 s63, s59, 2"); a("s_add_u32 s4, s70, s63"); a("s_mov_b32 s28, 0x7f000000")
        a("s_cmp_eq_u32 s52, 7"); a("s_cselect_b32 s4, 0x7f000000, s4")
        a("v_cmp_gt_u32 vcc, 32, v0"); a("v_mov_b32 v3, 0x7f000000"); a("v_cndmask_b32 v4, v3, v4, vcc")
        a.label("K1_PFD")
        a("s_mov_b32 s11, 0x00020000")
        a.settle()
        a(f"buffer_load_dword v3, v4, s[8:11], s4 offen {NT}","pfa")
    a("s_lshl_b32 s63, s53, 6"); a("s_lshl_b32 s67, s54, 5"); a("s_add_u32 s63, s63, s67")
    xread_setup(a, "s63")
    a("s_lshl_b32 s67, s54, 13"); a("s_sub_u32 s80, 4096, s67") if False else None
    a("s_lshl_b32 s67, s54, 13"); a("s_sub_u32 s7, 4096, s67")
    a("v_lshrrev_b32 v11, 5, v0")
    a("v_and_b32 v12, 15, v0"); a("v_lshrrev_b32 v13, 2, v12")
    a("v_and_b32 v12, 3, v12")
    a("v_lshl_add_u32 v14, v11, 3, v13")
    a("v_lshlrev_b32 v14, 7, v14")
    a("v_lshrrev_b32 v15, 4, v0"); a("v_and_b32 v15, 1, v15"); a("v_lshlrev_b32 v15, 1, v15")
    a("v_lshrrev_b32 v11, 1, v12"); a("v_add_u32 v15, v15, v11")
    a("s_lshl_b32 s67, s54, 2"); a("v_add_u32 v15, s67, v15")
    a("v_lshrrev_b32 v13, 1, v13"); a("v_lshlrev_b32 v13, 2, v13"); a("v_xor_b32 v15, v15, v13")
    a("v_lshl_add_u32 v14, v15, 4, v14")
    a("v_and_b32 v12, 1, v12"); a("v_lshl_add_u32 v14, v12, 3, v14")
    a("v_add_u32 v10, 32768, v14")
    a("v_lshlrev_b32 v2, 2, v0")
    a("s_cmp_eq_u32 s52, 0"); a("s_cselect_b32 s6, 4, 99"); a("s_cselect_b32 s5, 1, 99")
    a("s_lshl_b32 s58, s54, 1"); a("s_add_u32 s58, s58, s53"); a("s_and_b32 s58, s58, 3")
    def set_read_addrs(a):
        for ks in range(4):
            a(f"v_add_u32 v{11+ks}, s61, v{6+ks}")
            a(f"v_add_u32 v{56+ks}, s7, v{11+ks}")
        a("v_add_u32 v15, s61, v10")
        a(f"s_add_u32 s61, s61, {SLOT}"); a(f"s_cmp_eq_u32 s61, {3*SLOT}"); a("s_cselect_b32 s61, 0, s61")
    def reads(ks):
        st=ks&1
        R=[(f"ds_read_b128 {xf(st,0)}, v{11+ks}", f"f{st}")]
        for m in range(2):
            b=WF+st*8+m*4
            for jj in range(2):
                R.append((f"ds_read_b64_tr_b16 v[{b+2*jj}:{b+2*jj+1}], v15 offset:{m*8192+(16*ks+4*jj)*128}", f"f{st}"))
        R.insert(3,(f"ds_read_b128 {xf(st,1)}, v{56+ks}", f"f{st}"))
        return R
    a("s_mov_b32 s61, 0")
    a("s_barrier")
    stamp(a,2)
    CL=SL+8; CA=SL+20
    def cs_part(t):
        for i in range(4):
            t(f"v_lshlrev_b32 v{CA+2*i}, 16, v{CL+i}"); t(f"v_and_b32 v{CA+2*i+1}, 0xffff0000, v{CL+i}")
        for r in (1,2):
            for i in range(4):
                A=TMP+4+2*(i&1)
                t(f"v_lshlrev_b32 v{A}, 16, v{CL+4*r+i}"); t(f"v_and_b32 v{A+1}, 0xffff0000, v{CL+4*r+i}")
                t(f"v_add_f32 v{CA+2*i}, v{CA+2*i}, v{A}"); t(f"v_add_f32 v{CA+2*i+1}, v{CA+2*i+1}, v{A+1}")
        for i in range(8): t(f"v_add_f32_dpp v{CA+i}, v{CA+i}, v{CA+i} row_ror:8 row_mask:0xf bank_mask:0xf")
        for op in ("v_permlane16_swap_b32","v_permlane32_swap_b32"):
            for i in range(8): t(f"v_mov_b32 v{CL+i}, v{CA+i}")
            for i in range(8): t(f"{op} v{CA+i}, v{CL+i}")
            for i in range(8): t(f"v_add_f32 v{CA+i}, v{CA+i}, v{CL+i}")
        t("s_and_b32 s63, s52, 1"); t("s_lshl_b32 s63, s63, 10"); t("s_lshr_b32 s67, s52, 1"); t("s_lshl_b32 s67, s67, 2"); t("s_add_u32 s63, s63, s67"); t(f"s_add_u32 s63, s63, {CSP}")
        t("v_and_b32 v5, 7, v0"); t("v_lshlrev_b32 v5, 7, v5"); t("v_add_u32 v5, s63, v5")
        for e in range(8): t(f"ds_write_b32 v5, v{CA+e} offset:{16*e}")
    def cs_pub(a):
        a("s_cmp_ge_u32 s52, 2"); a("s_cbranch_scc1 K1_CSPUB")
        a("s_lshl_b32 s63, s52, 10"); a(f"s_add_u32 s63, s63, {CSP}"); a("v_add_u32 v5, s63, v16")
        a.raw(f"    ds_read_b128 v[{CA}:{CA+3}], v5")
        a("s_lshl_b32 s63, s56, 12"); a("s_lshl_b32 s67, s52, 11"); a("s_add_u32 s63, s63, s67"); a("s_lshl_b32 s67, s55, 2"); a("s_add_u32 s63, s63, s67"); a(f"s_add_u32 s63, s63, {L.CSG}")
        a("v_lshlrev_b32 v5, 5, v0")
        a.raw("    s_waitcnt lgkmcnt(0)")
        a(f"v_add_f32 v{CA}, v{CA}, v{CA+1}"); a(f"v_add_f32 v{CA+2}, v{CA+2}, v{CA+3}"); a(f"v_add_f32 v{CA}, v{CA}, v{CA+2}")
        a.raw(f"    buffer_store_dword v{CA}, v5, s[48:51], s63 offen sc0 sc1")
        a.label("K1_CSPUB")
        a.settle()
    set_read_addrs(a)
    for t,tag in reads(0): a(t,tag)
    uid=[0]
    def cswrite(t):
        t(f"v_and_b32 v{TMP}, 31, v0")
        t(f"v_lshlrev_b32 v{TMP+2}, 6, v{TMP}"); t("s_lshl_b32 s63, s54, 12"); t(f"s_add_u32 s63, s63, {CSP}"); t(f"v_add_u32 v{TMP+2}, s63, v{TMP+2}")
    def staddr(t):
        t(f"v_and_b32 v{TMP}, 31, v0")
        t("s_lshl_b32 s63, s55, 8"); t("s_lshl_b32 s67, s53, 6"); t("s_add_u32 s63, s63, s67"); t("s_lshl_b32 s67, s54, 5"); t("s_add_u32 s63, s63, s67")
        t(f"v_add_u32 v{TMP}, s63, v{TMP}"); t(f"v_lshlrev_b32 v{TMP}, 3, v{TMP}"); t(f"v_xor_b32 v{TMP+1}, 256, v{TMP}")
    AX=(8,12); AW=(SL+4,SL+20)
    def aug_xpart(t):
        aug_x(t,"v60",AX[0]); aug_x(t,"v62",AX[1])
    def aug_wpart(t):
        for m in range(2):
            b=SL+16*m
            for st_ in (1,2,4):
                for i in range(0,8,2*st_): t(f"v_add_f32 v{b+i}, v{b+i}, v{b+i+st_}")
            aug_w(t, f"v{b}", AW[m], f"v{b+1}", f"v{b+2}")
    def stage(a, first, dma_tag, wait_tag, nxt, mode=0, fill=None, sig=False, post=None):
        for ks in range(4):
            st=ks&1
            if ks==3:
                a.wait_lg0()
                if nxt:
                    if wait_tag: a.wait_vm(wait_tag)
                    if mode==1:
                        a("s_cmp_lg_u32 s52, 0"); a("s_cbranch_scc1 K1_POLLOK")
                        a.label("K1_POLL")
                        a.raw("    s_waitcnt vmcnt(0)\n    v_cmp_eq_u32 vcc, 0x01010101, v1\n    s_nop 3\n    s_cmp_eq_u64 vcc, exec\n    s_cbranch_scc1 K1_POLLOK")
                        a.raw(f"    s_sleep 2\n    buffer_load_dword v1, v2, s[72:75], 0 offen sc1\n    s_branch K1_POLL")
                        a.label("K1_POLLOK")
                    a("s_barrier")
                    if post: post(a)
                    if sig:
                        uid[0]+=1
                        a("s_cmp_eq_u32 s62, s6")
                        a.cond_block(f"s_cbranch_scc0 K1_SG{uid[0]}", f"K1_SG{uid[0]}", signal)
                        a("s_cmp_eq_u32 s62, s5")
                        def pl(t): t.raw("    buffer_load_dword v1, v2, s[72:75], 0 offen sc1")
                        a.cond_block(f"s_cbranch_scc0 K1_PL{uid[0]}", f"K1_PL{uid[0]}", pl)
                    set_read_addrs(a)
                if mode==1:
                    for o in ops_of(staddr): a(o)
                    a(f"buffer_load_dwordx2 v[60:61], v{TMP}, s[48:51], s76 offen sc1","st")
                    a(f"buffer_load_dwordx2 v[62:63], v{TMP+1}, s[48:51], s76 offen sc1","st")
                    a(f"v_and_b32 v{TMP}, 31, v0"); a(f"v_lshlrev_b32 v{TMP}, 5, v{TMP}")
                    a("s_lshl_b32 s63, s56, 12"); a("s_lshl_b32 s67, s54, 10"); a("s_add_u32 s63, s63, s67"); a(f"s_add_u32 s63, s63, {L.CSG}")
                    for m in range(2):
                        for i in range(2): a(f"buffer_load_dwordx4 v[{SL+16*m+4*i}:{SL+16*m+4*i+3}], v{TMP}, s[48:51], s63 offen offset:{2048*m+16*i} sc1","st")
                R = reads(0) if nxt else []
            else:
                a.wait_lg(f"f{st}")
                R = reads(ks+1)
            F=[]
            if mode==2:
                if ks==0:
                    a.wait_vm0(); AUGW=ops_of(aug_wpart)
                if ks<3:
                    n=(len(AUGW)+2-ks)//(3-ks); F=AUGW[:n]; AUGW=AUGW[n:]
                if ks==3: F=ops_of(aug_xpart)
            elif fill is not None:
                n=(len(fill)+3-ks)//(4-ks) if ks<3 else len(fill)
                F=fill[:n]; del fill[:n]
            nr=(len(R)+2)//3; nf=(len(F)+3)//4
            k=0
            for ts,m in ((0,0),(0,1),(1,0),(1,1)):
                c = "0" if (first and ks==0) else acc(ts,m)
                if not NOMF: a(f"v_mfma_f32_32x32x16_bf16 {acc(ts,m)}, {wf(st,m)}, {xf(st,ts)}, {c}")
                for t,tag in ([] if NOREAD else R[nr*k:nr*k+nr]): a(t,tag)
                if mode==2 and ks==3 and k==0: a.wait_vm0(); a("v_cmp_gt_u32 vcc, 32, v0")
                for d in F[nf*k:nf*k+nf]:
                    for dd in d.split('\n'): a(dd, "ss" if dd.startswith("buffer_store") else None)
                k+=1
    a.wait_vm("cl")
    class Fill:
        def __init__(s,parts): s.p=parts; s.i=0
        def __len__(s): return len(s.p[s.i])*(4-s.i) if s.i<3 else len(s.p[s.i])
        def __getitem__(s,sl): return list(s.p[s.i])
        def __delitem__(s,sl): s.i+=1
    FA=ops_of(cs_part); FB=stat_ops(range(SL,SL+8))+ops_of(share_finish)
    n=(len(FA)+6)//7
    stage(a, True, None, None, True, fill=Fill([FA[0:n],FA[n:2*n],FA[2*n:3*n],FA[3*n:4*n]]))
    stamp(a,1)
    stage(a, False, None, None, True, fill=Fill([FA[4*n:5*n],FA[5*n:6*n],FA[6*n:],[]]), post=cs_pub)
    stage(a, False, None, None, True, fill=FB)
    a("s_mov_b32 s62, 4")
    a.vm=["ss"]
    def body(t):
        stage(t, False, None, "ss", True, 0, sig=True)
        t.vm=["ss"]
    def tail(t):
        t("s_sub_u32 s62, s62, 1"); t("s_cmp_lg_u32 s62, 0"); t("s_cbranch_scc1 K1_LOOP")
    a.loop("K1_LOOP", body, tail)
    stamp(a,4)
    stage(a, False, None, None, True, 1)
    stamp(a,3); stampb(a,6)
    stage(a, False, None, None, True)
    stamp(a,6)
    stage(a, False, None, None, False, 2)
    stamp(a,5)
    for ts in range(2):
        for m in range(2):
            a(f"v_mfma_f32_32x32x16_bf16 {acc(ts,m)}, v[{AW[m]}:{AW[m]+3}], v[{AX[ts]}:{AX[ts]+3}], {acc(ts,m)}")
    a("s_lshl_b32 s4, s55, 3"); a("s_lshl_b32 s63, s53, 1"); a("s_add_u32 s4, s4, s63"); a("s_add_u32 s4, s4, s54")
    a("s_xor_b32 s5, s4, 1")
    a("s_cmp_ge_u32 s56, 24"); a("s_cbranch_scc1 K1_QEPI")
    hz=a.hz_get()
    a("s_lshl_b32 s63, s56, 1"); a("s_add_u32 s63, s63, s54"); a("s_lshl_b32 s63, s63, 11")
    a(f"s_add_u32 s63, s63, {L.HF}")
    for ts in range(2):
        a(f"s_mul_i32 s{8+ts}, s{4+ts}, {96*1024}"); a(f"s_add_u32 s{8+ts}, s{8+ts}, s63")
    for ts in range(2):
        rv = "v61" if ts==0 else "v63"
        a(f"v_mul_f32 v24, 0x{f2u(-LOG2E):08x}, {rv}"); a(f"v_mul_f32 v25, {rv}, {rv}")
        G=ACC+ts*32; U=G+16
        for half in range(2):
            idx=range(8*half,8*half+8)
            for i in idx: a(f"v_mul_f32 v{28+i%8}, v24, v{G+i}")
            for i in idx: a(f"v_exp_f32 v{28+i%8}, v{28+i%8}")
            for i in idx: a(f"v_mul_f32 v{G+i}, v{G+i}, v{U+i}")
            for i in idx: a(f"v_add_f32 v{28+i%8}, 1.0, v{28+i%8}")
            for i in idx: a(f"v_rcp_f32 v{28+i%8}, v{28+i%8}")
            for i in idx: a(f"v_mul_f32 v{G+i}, v25, v{G+i}")
            for i in idx: a(f"v_mul_f32 v{G+i}, v{G+i}, v{28+i%8}")
            d=36+4*((2*ts+half)&3)
            for i in range(4): a(f"v_cvt_pk_bf16_f32 v{d+i}, v{G+8*half+2*i}, v{G+8*half+2*i+1}")
            a(f"buffer_store_dwordx4 v[{d}:{d+3}], v16, s[48:51], s{8+ts} offen offset:{1024*half}")
    a("s_branch K1_END")
    a.label("K1_QEPI")
    a.hz_set(hz)
    a("s_sub_u32 s63, s56, 24"); a("s_lshl_b32 s63, s63, 2"); a("s_add_u32 s63, s63, s54"); a("s_lshl_b32 s63, s63, 11")
    for ts in range(2):
        a(f"s_mul_i32 s{8+ts}, s{4+ts}, {40*1024}"); a(f"s_add_u32 s{8+ts}, s{8+ts}, s63")
        a(f"s_add_u32 s{10+ts}, s{8+ts}, 4096")
    qs=(20**-0.5)*LOG2E
    n=0
    for ts in range(2):
        rv = "v61" if ts==0 else "v63"
        a(f"v_mul_f32 v24, 0x{f2u(qs):08x}, {rv}")
        for m in range(2):
            B=ACC+(ts*2+m)*16
            for half in range(2):
                for i in range(8): a(f"v_mul_f32 v{B+8*half+i}, v24, v{B+8*half+i}")
                d=28+4*(n&7); n+=1
                for i in range(4): a(f"v_cvt_pk_bf16_f32 v{d+i}, v{B+8*half+2*i}, v{B+8*half+2*i+1}")
                a(f"buffer_store_dwordx4 v[{d}:{d+3}], v16, s[48:51], s{8+2*m+ts} offen offset:{1024*half}")
    a("s_branch K1_END")

    live=set(l.split()[-1] for l in a.lines if 's_cbranch_scc1 K1_CS' in l)
    for lab,lines in OOL.items():
        if lab in live:
            a.label(lab); a.lines+=lines
    a.label("K1_LOADER")
    a.ev={}; a.vm=[]; a.lg=[]
    if os.environ.get('LPRIO','0')!='0': a("s_setprio "+os.environ['LPRIO'])
    a("s_sub_u32 s53, s52, 8")
    a("s_and_b32 s54, s53, 1"); a("s_lshr_b32 s4, s53, 1")
    a("v_lshrrev_b32 v1, 3, v0"); a("v_mul_u32_u24 v1, 1280, v1")
    a("v_and_b32 v2, 7, v0"); a("v_lshrrev_b32 v3, 4, v0"); a("v_xor_b32 v2, v2, v3"); a("v_xor_b32 v4, 4, v2")
    a("v_lshl_add_u32 v5, v2, 4, v1"); a("v_lshl_add_u32 v6, v4, 4, v1")
    a("v_mov_b32 v1, v5"); a(f"v_add_u32 v2, {9216}, v6"); a(f"v_add_u32 v3, {2*9216}, v5"); a(f"v_add_u32 v4, {3*9216}, v6")
    a("s_lshl_b32 s57, s55, 8"); a("s_lshl_b32 s63, s53, 6"); a("s_add_u32 s57, s57, s63"); a("s_mul_i32 s57, s57, 1280")
    a("v_lshrrev_b32 v5, 3, v0"); a("v_mul_lo_u32 v5, v5, s69")
    a("v_lshrrev_b32 v10, 4, v0"); a("v_and_b32 v10, 1, v10"); a("v_lshlrev_b32 v10, 2, v10")
    a("v_and_b32 v11, 7, v0"); a("v_xor_b32 v10, v10, v11"); a("v_lshl_add_u32 v5, v10, 4, v5")
    a("s_lshl_b32 s63, s69, 3"); a("s_sub_u32 s63, s63, 1024")
    a("v_add_u32 v6, s63, v5"); a("v_add_u32 v7, s63, v6"); a("v_add_u32 v8, s63, v7")
    a("s_cmp_eq_u32 s54, 0")
    a("s_cselect_b32 s8, s40, s44"); a("s_cselect_b32 s9, s41, s45"); a("s_cselect_b32 s10, s42, s46"); a("s_mov_b32 s11, 0x00020000")
    a("s_lshl_b32 s63, s69, 5"); a("s_mul_i32 s63, s63, s4"); a("s_add_u32 s58, s70, s63")
    a("s_lshl_b32 s64, s53, 13")
    a("s_lshl_b32 s66, s54, 13"); a("s_lshl_b32 s63, s4, 12"); a("s_add_u32 s66, s66, s63"); a("s_add_u32 s66, s66, 32768")
    a("v_and_b32 v9, 7, v0"); a("s_lshl_b32 s63, s68, 4"); a("s_lshl_b32 s67, s4, 3"); a("s_add_u32 s63, s63, s67"); a("v_add_u32 v9, s63, v9"); a("v_mul_lo_u32 v9, v9, s69")
    a("v_cmp_gt_u32 vcc, 8, v0")
    a("s_lshl_b32 s5, s59, 1"); a("s_add_u32 s5, s5, s70"); a("s_mov_b32 s6, s59")
    a("v_mov_b32 v11, 0x7fffff00"); a("v_cndmask_b32 v9, v11, v9, vcc")
    for r in range(24,32): a(f"v_mov_b32 v{r}, 0")
    a("v_lshrrev_b32 v15, 2, v10"); a("v_lshlrev_b32 v15, 12, v15"); a("v_and_b32 v14, 3, v10"); a("v_lshl_add_u32 v15, v14, 9, v15")
    a("v_lshrrev_b32 v14, 3, v0"); a("v_lshl_add_u32 v15, v14, 2, v15")
    a("s_lshl_b32 s63, s54, 11"); a("s_lshl_b32 s67, s4, 5"); a("s_add_u32 s63, s63, s67"); a(f"s_add_u32 s63, s63, {CSP}"); a("v_add_u32 v15, s63, v15")
    a("s_mov_b32 s60, 0"); a("s_mov_b32 s61, 0")
    def pf(a, tag):
        if True: return
        a(f"buffer_load_dword v12, v9, s[8:11], s5 offen {NT}", tag); a("s_add_u32 s5, s5, s6")
    def ldma(a, tag):
        a("s_add_u32 m0, s60, s66")
        a("s_nop 0")
        for e in range(4): a(f"buffer_load_dwordx4 v{5+e}, s[8:11], s58 offen offset:{1024*e} {NT} lds", tag)
        for gq in range(2):
            a(f"s_add_u32 s63, s64, {4096*gq}"); a("s_add_u32 m0, s60, s63")
            a(f"s_add_u32 s67, s57, {40960*gq}")
            for e in range(4): a(f"buffer_load_dwordx4 v{1+e}, s[36:39], s67 offen offset:{1024*e} {NT} lds", tag)
        a("s_add_u32 s57, s57, 128"); a("s_add_u32 s58, s58, s59")
        a(f"s_add_u32 s60, s60, {SLOT}"); a(f"s_cmp_eq_u32 s60, {3*SLOT}"); a("s_cselect_b32 s60, 0, s60")
        pf(a, tag)
    def csread(a):
        a("s_add_u32 s63, s61, s66"); a("v_add_u32 v13, s63, v16")
        for e in range(4): a(f"ds_read_b128 v[{32+4*e}:{35+4*e}], v13 offset:{1024*e}")
        a(f"s_add_u32 s61, s61, {SLOT}"); a(f"s_cmp_eq_u32 s61, {3*SLOT}"); a("s_cselect_b32 s61, 0, s61")
    def csadd(a):
        a.wait_lg0()
        if NOCS: return
        for e in range(4):
            for i in range(4):
                r=32+4*e+i; A=48+2*(i&1)
                a(f"v_lshlrev_b32 v{A}, 16, v{r}"); a(f"v_and_b32 v{A+1}, 0xffff0000, v{r}")
                a(f"v_add_f32 v{24+2*i}, v{24+2*i}, v{A}"); a(f"v_add_f32 v{25+2*i}, v{25+2*i}, v{A+1}")
    def ldma2(a, tag):
        n=len(a.vm); ldma(a, tag)
        for i in range(4): a.vm[n+i]=tag+"w"
    ldma2(a,"d0"); ldma2(a,"A")
    a.wait_vm("d0"); a("s_barrier")
    ldma2(a,"B")
    a("s_mov_b32 s62, 7")
    ren={"B":"A","C":"B","Bw":"Aw","Cw":"Bw","Aw":"Aw"}
    def lbody(t):
        t.wait_vm("A"); t("s_barrier")
        ldma2(t,"C")
        t.vm=[ren[x] for x in t.vm]
    def ltail(t):
        t("s_sub_u32 s62, s62, 1"); t("s_cmp_lg_u32 s62, 0"); t("s_cbranch_scc1 K1_LLOOP")
    a.loop("K1_LLOOP", lbody, ltail)
    a.wait_vm("A"); a("s_barrier")
    a.wait_vm("B")
    a("s_barrier")
    a("s_endpgm")

    def share_now(a, lab):
        share_issue(a)
        a.wait_vm0()
        for i in range(8):
            a(f"v_dot2_f32_bf16 v{17+(i&1)}, v{SL+i}, s66, v{17+(i&1)}")
            a(f"v_dot2_f32_bf16 v{19+(i&1)}, v{SL+i}, v{SL+i}, v{19+(i&1)}")
        share_finish(a)
        a.wait_vm0(); a("s_barrier")
        a("s_cmp_eq_u32 s52, 0")
        a.cond_block(f"s_cbranch_scc0 {lab}", lab, signal)
        for r in range(17,21): a(f"v_mov_b32 v{r}, 0")

    a.label("K1_KV")
    a.ev={}; a.vm=[]; a.lg=[]
    srd(a,40,20,25600); srd(a,44,22,25600)
    a("s_lshl_b32 s63, s52, 10")
    for m in range(4):
        if m==3:
            a("s_cmp_ge_u32 s52, 4"); a("s_cbranch_scc1 K1_KV_W3")
        a(f"s_add_u32 s67, s63, {8192*m}")
        a(f"s_add_u32 m0, s67, {KV_WK}")
        a("s_nop 0")
        a(f"buffer_load_dwordx4 v16, s[40:43], s67 offen {NT} lds", "w")
        a(f"s_add_u32 m0, s67, {KV_WV}")
        a("s_nop 0")
        a(f"buffer_load_dwordx4 v16, s[44:47], s67 offen {NT} lds", "w")
    a.label("K1_KV_W3")
    def dmak(a, tag):
        x_dma(a, tag, "s60")
        a("s_add_u32 s57, s57, 128")
        a("s_add_u32 s60, s60, 32768"); a(f"s_cmp_eq_u32 s60, {3*32768}"); a("s_cselect_b32 s60, 0, s60")
    a("s_mov_b32 s60, 0")
    for s in range(3): dmak(a, f"d{s}")
    share_now(a,"K1_KVSG")
    a("s_lshl_b32 s63, s52, 5")
    xread_setup(a, "s63")
    a("v_lshrrev_b32 v11, 5, v0"); a("v_and_b32 v12, 15, v0"); a("v_lshrrev_b32 v13, 2, v12"); a("v_and_b32 v12, 3, v12")
    a("v_lshl_add_u32 v14, v11, 3, v13"); a("v_mul_u32_u24 v14, 40, v14")
    a("v_lshrrev_b32 v15, 4, v0"); a("v_and_b32 v15, 1, v15"); a("v_lshl_add_u32 v14, v15, 5, v14")
    a("v_lshl_add_u32 v14, v12, 3, v14"); a(f"v_add_u32 v15, {KV_WK}, v14")
    for r in range(64,96): a(f"v_mov_b32 v{r}, 0")
    a("s_mov_b32 s61, 0")
    def set_ra(a):
        for ks in range(4): a(f"v_add_u32 v{11+ks}, s61, v{6+ks}")
        a("s_add_u32 s61, s61, 32768"); a(f"s_cmp_eq_u32 s61, {3*32768}"); a("s_cselect_b32 s61, 0, s61")
    def kreads(ks):
        st=ks&1; R=[(f"ds_read_b128 {xf(st,0)}, v{11+ks}", f"f{st}")]
        for m in range(2):
            b=WF+st*8+m*4
            for jj in range(2):
                R.append((f"ds_read_b64_tr_b16 v[{b+2*jj}:{b+2*jj+1}], v15 offset:{m*(KV_WV-KV_WK)+(16*ks+4*jj)*40}", f"f{st}"))
        return R
    set_ra(a)
    for t,tag in kreads(0): a(t,tag)
    def kstage(a, dma_tag, wait_tag, nxt):
        for ks in range(4):
            st=ks&1
            if ks==3:
                a.wait_lg0()
                if nxt:
                    a.wait_vm(wait_tag)
                    if dma_tag: dmak(a, dma_tag)
                    set_ra(a)
                    a("v_add_u32 v15, 2560, v15")
                R = kreads(0) if nxt else []
            else:
                a.wait_lg(f"f{st}"); R=kreads(ks+1)
            xb=XF+st*8
            a(f"v_mfma_f32_32x32x16_bf16 v[64:79], {wf(st,0)}, {xf(st,0)}, v[64:79]")
            for t,tag in R[:3]: a(t,tag)
            a(f"v_mfma_f32_32x32x16_bf16 v[80:95], {xf(st,0)}, {wf(st,1)}, v[80:95]")
            for t,tag in R[3:]: a(t,tag)
            for o in stat_ops(range(xb,xb+4)): a(o)
            uid[0]+=1
            lab=f"K1_KCS{uid[0]}"
            def cs(a):
                for o in cs_ops([(WF+st*8+m*4+i,21+m) for i in range(4) for m in range(2)]): a(o)
            a(f"s_cmp_eq_u32 s5, {ks}")
            a.cond_block(f"s_cbranch_scc0 {lab}", lab, cs)
        a("s_xor_b32 s5, s5, s6")
    a("s_xor_b32 s6, s53, 0xff"); a("s_cmp_eq_u32 s54, 0"); a("s_cselect_b32 s5, s53, 0xff")
    a.vm=["A"]*4+["B"]*4
    def kbody(t):
        kstage(t,"C","A",True); t.vm=[{"B":"A","C":"B"}[x] for x in t.vm]
    def ktail(t):
        t("s_sub_u32 s62, s62, 1"); t("s_cmp_lg_u32 s62, 0"); t("s_cbranch_scc1 K1_KVLOOP")
    a("s_mov_b32 s62, 7")
    a.loop("K1_KVLOOP", kbody, ktail)
    kstage(a,None,"A",True); kstage(a,None,"B",True); kstage(a,None,None,False)
    a("v_add_f32 v17, v17, v18"); a("v_add_f32 v19, v19, v20")
    a("v_mov_b32 v24, v17"); a("v_mov_b32 v25, v19")
    a("v_permlane32_swap_b32 v17, v24"); a("v_permlane32_swap_b32 v19, v25")
    a("v_add_f32 v17, v17, v24"); a("v_add_f32 v19, v19, v25")
    stats_math(a,"v17","v19","v60","v61")
    a("v_and_b32 v24, 31, v0"); a("s_lshl_b32 s63, s52, 7"); a(f"s_add_u32 s63, s63, {KV_ST}"); a("v_lshlrev_b32 v25, 2, v24"); a("v_add_u32 v25, s63, v25")
    a(f"ds_write_b32 v25, v61")
    a("v_lshlrev_b32 v26, 6, v24"); a("v_lshrrev_b32 v27, 5, v0"); a("s_lshl_b32 s67, s52, 1"); a("v_add_u32 v27, s67, v27")
    a("v_lshl_add_u32 v27, v27, 2, v26")
    a.wait_lg0(); a("s_barrier")
    a("ds_write_b32 v27, v21"); a("ds_write_b32 v27, v22 offset:2048")
    a.wait_lg0(); a("s_barrier")
    for m in range(2):
        for i in range(4): a(f"ds_read_b128 v[{112+16*m+4*i}:{115+16*m+4*i}], v26 offset:{2048*m+16*i}")
    a.wait_lg0()
    for m in range(2):
        b=112+16*m
        for st_ in (1,2,4,8):
            for i in range(0,16,2*st_): a(f"v_add_f32 v{b+i}, v{b+i}, v{b+i+st_}")
        a(f"v_mov_b32 v{21+m}, v{b}")
    a("v_cmp_gt_u32 vcc, 32, v0")
    aug_x(a,"v60",44)
    aug_w(a,"v21",48,"v26","v27"); aug_w(a,"v22",52,"v26","v27")
    a("v_mfma_f32_32x32x16_bf16 v[64:79], v[48:51], v[44:47], v[64:79]")
    a("v_mfma_f32_32x32x16_bf16 v[80:95], v[44:47], v[52:55], v[80:95]")
    a("v_lshrrev_b32 v26, 5, v0"); a("v_lshlrev_b32 v26, 4, v26"); a("v_add_u32 v26, s63, v26")
    for g in range(4): a(f"ds_read_b128 v[{28+4*g}:{31+4*g}], v26 offset:{32*g}")
    a("s_lshl_b32 s4, s55, 3"); a("s_add_u32 s4, s4, s52"); a(f"s_mul_i32 s5, s4, {L.REC}"); a(f"s_add_u32 s5, s5, {L.KV}")
    for i in range(12): a(f"v_mul_f32 v{64+i}, v61, v{64+i}")
    for i in range(6): a(f"v_cvt_pk_bf16_f32 v{96+i}, v{64+2*i}, v{65+2*i}")
    a("buffer_store_dwordx4 v[96:99], v16, s[48:51], s5 offen")
    a("v_cndmask_b32 v100, 0, v100, vcc"); a("v_cndmask_b32 v101, 0, v101, vcc")
    a("v_mov_b32 v102, 0")
    for i in range(6): a(f"v_dot2_f32_bf16 v102, v{96+i}, v{96+i}, v102")
    a("v_lshlrev_b32 v27, 3, v0")
    a("s_and_saveexec_b64 s[78:79], vcc")
    a("buffer_store_dwordx2 v[100:101], v27, s[48:51], s5 offen offset:1024")
    a("s_mov_b64 exec, s[78:79]")
    a("v_mov_b32 v103, v102"); a("v_permlane32_swap_b32 v102, v103"); a("v_add_f32 v102, v102, v103")
    a.wait_lg0()
    for x in (1,2,4,8,16):
        a(f"ds_swizzle_b32 v103, v102 offset:0x{(x<<10)|0x1f:04x}"); a.wait_lg0(); a("v_max_f32 v102, v102, v103")
    a("s_lshl_b32 s6, s4, 2"); a(f"s_add_u32 s6, s6, {L.KN}")
    a("v_mov_b32 v104, 0")
    a("v_cmp_eq_u32 vcc, 0, v0")
    a("s_and_saveexec_b64 s[78:79], vcc")
    a("buffer_store_dword v102, v104, s[48:51], s6 offen")
    a("s_mov_b64 exec, s[78:79]")
    for i in range(16): a(f"v_mul_f32 v{80+i}, v{28+i}, v{80+i}")
    for i in range(8): a(f"v_cvt_pk_bf16_f32 v{104+i}, v{80+2*i}, v{81+2*i}")
    a("v_lshrrev_b32 v26, 5, v0"); a("v_mul_u32_u24 v26, 336, v26"); a("v_lshl_add_u32 v26, v24, 4, v26")
    a("v_cmp_gt_u32 vcc, 32, v0"); a("v_mov_b32 v27, 0x3f803f80"); a("v_cndmask_b32 v27, 0, v27, vcc")
    a("v_cmp_gt_u32 vcc, 20, v24")
    for i in range(8): a(f"v_cndmask_b32 v{104+i}, v27, v{104+i}, vcc")
    a("v_cmp_gt_u32 vcc, 21, v24")
    a("s_and_saveexec_b64 s[78:79], vcc")
    a("buffer_store_dwordx4 v[104:107], v26, s[48:51], s5 offen offset:1280")
    a("buffer_store_dwordx4 v[108:111], v26, s[48:51], s5 offen offset:1952")
    a("s_mov_b64 exec, s[78:79]")
    a("s_branch K1_END")

    a.label("K1_RELAY")
    a.ev={}; a.vm=[]; a.lg=[]
    a("s_sub_u32 s70, s56, 30"); a("s_lshl_b32 s70, s70, 3"); a("s_add_u32 s70, s70, s55")
    a("s_lshl_b32 s70, s70, 1"); a("s_add_u32 s70, s70, s54")
    a("s_mul_i32 s69, s53, 320")
    for i in range(5):
        a(f"v_add_u32 v10, {64*i}, v0"); a("v_mul_u32_u24 v11, 3277, v10"); a("v_lshrrev_b32 v11, 16, v11")
        a("v_mul_u32_u24 v12, 20, v11"); a("v_sub_u32 v12, v10, v12")
        a("v_lshlrev_b32 v12, 4, v12"); a("v_add_u32 v12, s69, v12")
        a("v_mul_u32_u24 v13, 1280, v11"); a(f"v_add_u32 v{60+i}, v13, v12")
        a("v_lshrrev_b32 v13, 3, v11"); a("v_mul_u32_u24 v13, 80, v13")
        a("v_bfe_u32 v14, v11, 2, 1"); a("v_mul_u32_u24 v14, 20, v14"); a("v_and_b32 v15, 3, v11")
        a("v_add3_u32 v13, v13, v14, v15"); a("v_mul_u32_u24 v13, 1280, v13"); a(f"v_add_u32 v{65+i}, v13, v12")
    a("s_mul_i32 s65, s52, 20480")
    a("v_lshrrev_b32 v11, 5, v0"); a("v_and_b32 v12, 15, v0"); a("v_lshrrev_b32 v13, 2, v12"); a("v_and_b32 v12, 3, v12")
    a("v_lshl_add_u32 v14, v11, 2, v13"); a("v_mul_u32_u24 v14, 320, v14")
    a("v_lshrrev_b32 v15, 4, v0"); a("v_and_b32 v15, 1, v15"); a("v_lshl_add_u32 v14, v15, 5, v14")
    a("v_lshl_add_u32 v14, v12, 3, v14"); a("v_add_u32 v30, s65, v14")
    def issue(a, r):
        a(f"s_add_u32 s4, s70, {32*r}")
        a(f"s_add_u32 s6, s65, {5120*(r&3)}")
        a("s_cmp_ge_u32 s4, 96"); a(f"s_cbranch_scc1 K1_RI_WO{r}")
        srd(a,40,32,1536*1280)
        a(f"s_mul_i32 s5, s4, {16*1280}")
        a(f"s_branch K1_RI_REG{r}")
        a.label(f"K1_RI_WO{r}")
        srd(a,40,24,640*1280)
        a("s_sub_u32 s4, s4, 96")
        a(f"s_mul_i32 s5, s4, {20*1280}")
        a("s_cmp_lt_u32 s4, 32"); a(f"s_cbranch_scc1 K1_RI_REG{r}")
        a("s_sub_u32 s4, s4, 32"); a("s_lshr_b32 s5, s4, 1"); a("s_lshl_b32 s5, s5, 3"); a("s_and_b32 s4, s4, 1"); a("s_lshl_b32 s4, s4, 1")
        a("s_add_u32 s5, s5, s4"); a("s_mul_i32 s5, s5, 20"); a("s_add_u32 s5, s5, 16"); a("s_mul_i32 s5, s5, 1280")
        for i in range(5):
            a(f"s_add_u32 m0, s6, {1024*i}"); a("s_nop 0")
            a.raw(f"    buffer_load_dwordx4 v{65+i}, s[40:43], s5 offen {NT} lds")
        a(f"s_branch K1_RI_DONE{r}")
        a.label(f"K1_RI_REG{r}")
        for i in range(5):
            a(f"s_add_u32 m0, s6, {1024*i}"); a("s_nop 0")
            a(f"buffer_load_dwordx4 v{60+i}, s[40:43], s5 offen {NT} lds", f"u{r}")
        a.label(f"K1_RI_DONE{r}")
    def process(a, r):
        a(f"s_add_u32 s4, s70, {32*r}"); a("s_mul_i32 s4, s4, 20480"); a("s_mul_i32 s5, s53, 5120")
        a("s_add_u32 s4, s4, s5"); a(f"s_add_u32 s4, s4, {L.W2F}"); a("s_add_u32 s5, s4, 4096")
        for c in range(5):
            for jj in range(2):
                a(f"ds_read_b64_tr_b16 v[{32+4*c+2*jj}:{33+4*c+2*jj}], v30 offset:{5120*(r&3)+2560*jj+64*c}", f"c{c}")
        for c in range(5):
            a.wait_lg(f"c{c}")
            a(f"buffer_store_dwordx4 v[{32+4*c}:{35+4*c}], v16, s[48:51], {'s4' if c<4 else 's5'} offen offset:{1024*(c&3)}", "st")
    assert L.W2F+96*20480==L.WOF
    a("s_cmp_ge_u32 s70, 2"); a("s_cbranch_scc1 K1_NOZ")
    for i in range(4): a(f"v_mov_b32 v{32+i}, 0")
    a("s_lshl_b32 s4, s52, 10"); a(f"s_add_u32 s4, s4, {L.FLG}")
    a.raw("    buffer_store_dwordx4 v[32:35], v16, s[48:51], s4 offen")
    a.label("K1_NOZ")
    a.settle()
    for r in range(4): issue(a,r)
    a.settle()
    share_now(a,"K1_RLSG")
    process(a,0)
    a("s_cmp_ge_u32 s70, 8"); a("s_cbranch_scc1 K1_RI_NO5")
    issue(a,4)
    a.label("K1_RI_NO5")
    a.wait_vm0()
    for r in range(1,4): process(a,r)
    a("s_cmp_ge_u32 s70, 8"); a("s_cbranch_scc1 K1_END")
    a.settle()
    process(a,4)
    a.label("K1_END")
    if DIAG:
        a.raw("    s_cmp_ge_u32 s2, 256\n    s_cbranch_scc1 K1_END2\n    s_cmp_ge_u32 s52, 8\n    s_cbranch_scc1 K1_END2")
        stamp(a,7); stamp(a,9,True)
        dump(a,0,"s52",vtmp=160)
        a.label("K1_END2")
    a("s_endpgm")
    return a.text(), dict(vgpr=168, sgpr=102, lds=163840, block=768, grid=256)
```

```python
from asmlib import Asm
import layout as L
from diag import stamp, dump, DIAG
from k1 import srd, f2u
import os
NOKV=os.environ.get('NOKV','0')=='1'
NOGEMM=os.environ.get('NOGEMM','0')=='1'
NOEXEC=os.environ.get('NOEXEC','0')=='1'
NOPRIO=os.environ.get('NOPRIO','0')=='1'
THR=48.0
BMASK=(1<<4)|(1<<5)
R=L.REC
WL=81920
OL=122880

Q1,Q2=4,8
def K1b(p): return f"v[{12+8*p}:{15+8*p}]"
def K2b(p): return f"v[{16+8*p}:{19+8*p}]"
def K2lo(p): return f"v[{16+8*p}:{17+8*p}]"
def Vb(p,x): b=28+8*p+4*x; return f"v[{b}:{b+3}]"
PP=(44,52)
SS=(60,76)
OO=92
CC=108
T0=124
def r16(b): return f"v[{b}:{b+15}]"
def r4(b): return f"v[{b}:{b+3}]"

def wg_decode(a):
    a("s_and_b32 s63, s2, 7"); a("s_lshr_b32 s67, s2, 3")
    a("s_lshl_b32 s55, s63, 3"); a("s_lshr_b32 s68, s67, 2"); a("s_add_u32 s55, s55, s68")
    a("s_and_b32 s56, s67, 3")

def k2():
    a=Asm()
    a.raw(".globl k2_kernel\n.p2align 8\n.type k2_kernel,@function\nk2_kernel:")
    a("s_cmp_ge_u32 s2, 256"); a("s_cbranch_scc1 K2_END")
    stamp(a,0); stamp(a,8,True)
    a("s_load_dwordx2 s[16:17], s[0:1], 0")
    a("s_load_dwordx2 s[18:19], s[0:1], 72")
    a("s_load_dwordx4 s[32:35], s[0:1], 80")
    a("v_lshrrev_b32 v1, 6, v0"); a("v_readfirstlane_b32 s52, v1"); a("v_and_b32 v0, 63, v0")
    wg_decode(a)
    a("s_waitcnt lgkmcnt(0)")
    srd(a,48,34,L.WS_END)
    a("s_cmp_ge_u32 s52, 8"); a("s_cbranch_scc1 K2_GEMM")
    if not NOPRIO: a("s_setprio 2")
    t=lambda i: f"v{T0+i}"
    a("v_lshlrev_b32 v1, 4, v0")
    a(f"v_lshlrev_b32 {t(0)}, 2, v0"); a(f"s_mov_b32 s60, {L.KN}")
    a(f"buffer_load_dword {t(1)}, {t(0)}, s[48:51], s60 offen","kn")
    a(f"v_and_b32 {t(2)}, 7, v0"); a("s_lshl_b32 s63, s56, 3"); a(f"v_add_u32 {t(2)}, s63, {t(2)}")
    a(f"v_bfe_u32 {t(3)}, v0, 3, 2")
    a(f"v_lshrrev_b32 {t(4)}, 5, v0")
    a("s_lshl_b32 s63, s52, 2"); a(f"v_add_u32 {t(5)}, s63, {t(3)}")
    a(f"v_mul_u32_u24 {t(5)}, 5, {t(5)}")
    a(f"s_mul_i32 s61, s55, {40*1024}")
    def qaddr(dst, p):
        a(f"v_lshrrev_b32 {t(6)}, 2, {p}"); a(f"v_lshlrev_b32 {t(6)}, 10, {t(6)}")
        a(f"v_and_b32 {t(7)}, 1, {p}"); a(f"v_lshl_add_u32 {t(7)}, {t(7)}, 5, {t(2)}"); a(f"v_lshl_add_u32 {t(6)}, {t(7)}, 4, {t(6)}")
        a(f"v_bfe_u32 {t(7)}, {p}, 1, 1"); a(f"v_lshl_add_u32 {dst}, {t(7)}, 3, {t(6)}")
    a(f"v_add_u32 {t(8)}, {t(5)}, {t(4)}")
    qaddr(t(9),t(8)); a(f"buffer_load_dwordx2 v[{Q1}:{Q1+1}], {t(9)}, s[48:51], s61 offen","q")
    a(f"v_add_u32 {t(8)}, 2, {t(8)}")
    qaddr(t(10),t(8)); a(f"buffer_load_dwordx2 v[{Q1+2}:{Q1+3}], {t(10)}, s[48:51], s61 offen","q")
    a(f"v_add_u32 {t(8)}, 4, {t(5)}")
    qaddr(t(11),t(8)); a(f"buffer_load_dwordx2 v[{Q2}:{Q2+1}], {t(11)}, s[48:51], s61 offen","q")
    a(f"v_and_b32 {t(0)}, 31, v0")
    a(f"v_lshlrev_b32 v2, 3, {t(0)}"); a("v_add_u32 v2, 1024, v2")
    a(f"v_min_u32 {t(8)}, 20, {t(0)}")
    a(f"v_mul_u32_u24 v3, 336, {t(4)}"); a(f"v_lshl_add_u32 v3, {t(8)}, 4, v3"); a("v_add_u32 v3, 1280, v3")
    a(f"s_mov_b32 s64, {L.KV}")
    for tt_ in range(2):
        a(f"buffer_load_dwordx4 {K1b(tt_)}, v1, s[48:51], s64 offen offset:{R*tt_}","q")
        a(f"buffer_load_dwordx2 {K2lo(tt_)}, v2, s[48:51], s64 offen offset:{R*tt_}","q")
    a(f"s_add_u32 s65, s64, {R}")
    for tt_ in range(2):
        for x in range(2): a(f"buffer_load_dwordx4 {Vb(tt_,x)}, v3, s[48:51], s{64+tt_} offen offset:{672*x}","q")
    a("s_lshl_b32 s62, s52, 10"); a(f"s_add_u32 s63, s62, {L.KV+2*R}")
    for m in range(3):
        a("s_mov_b32 m0, s62")
        a("s_add_u32 s62, s62, 8192")
        a("buffer_load_dwordx4 v1, s[48:51], s63 offen lds", "c0")
        a("s_add_u32 s63, s63, 8192")
    for r in (18,19,26,27): a(f"v_mov_b32 v{r}, 0")
    for r in range(PP[1],PP[1]+8): a(f"v_mov_b32 v{r}, 0")
    for r in range(OO,OO+16): a(f"v_mov_b32 v{r}, 0")
    a.wait_vm("kn")
    a(f"v_mov_b32 {t(8)}, {t(1)}"); a(f"v_permlane32_swap_b32 {t(1)}, {t(8)}"); a(f"v_max_f32 {t(1)}, {t(1)}, {t(8)}")
    for x in (1,2,4,8,16):
        a(f"ds_swizzle_b32 {t(8)}, {t(1)} offset:0x{(x<<10)|0x1f:04x}"); a.wait_lg0(); a(f"v_max_f32 {t(1)}, {t(1)}, {t(8)}")
    a.wait_vm("q")
    a("v_cmp_gt_u32 vcc, 32, v0")
    a(f"v_cndmask_b32 v{Q2}, 0, v{Q2}, vcc"); a(f"v_cndmask_b32 v{Q2+1}, 0, v{Q2+1}, vcc")
    a(f"v_mov_b32 v{Q2+2}, 0"); a(f"v_mov_b32 v{Q2+3}, 0")
    a(f"v_mov_b32 {t(6)}, 0")
    for i in range(6): a(f"v_dot2_f32_bf16 {t(6)}, v{Q1+i}, v{Q1+i}, {t(6)}")
    a(f"v_mov_b32 {t(7)}, {t(6)}"); a(f"v_permlane32_swap_b32 {t(6)}, {t(7)}")
    a(f"v_add_f32 {t(6)}, {t(6)}, {t(7)}"); a(f"v_mul_f32 {t(6)}, {t(6)}, {t(1)}")
    a(f"v_sqrt_f32 {t(6)}, {t(6)}"); a(f"v_mul_f32 {t(6)}, 0x{f2u(1.01):08x}, {t(6)}")
    a(f"v_cmp_ge_f32 vcc, 0x{f2u(THR):08x}, {t(6)}")
    a("s_mov_b32 s74, 1")
    a.wait_vm("c0"); a("s_barrier")
    a("s_cmp_eq_u64 vcc, exec"); a("s_cbranch_scc1 K2_FAST")
    a("s_barrier")
    a("s_mov_b32 s74, 0")
    a(f"v_mov_b32 {t(6)}, 0xff800000")
    for p in range(2):
        a(f"v_mfma_f32_32x32x16_bf16 {r16(SS[0])}, {K1b(p)}, {r4(Q1)}, 0")
        a(f"v_mfma_f32_32x32x16_bf16 {r16(SS[0])}, {K2b(p)}, {r4(Q2)}, {r16(SS[0])}")
        for i in range(0,16,2): a(f"v_max3_f32 {t(6)}, v{SS[0]+i}, v{SS[0]+i+1}, {t(6)}")
    a(f"v_mov_b32 {t(10)}, v1"); a(f"v_mov_b32 {t(11)}, v2"); a("s_mov_b32 s73, 62")
    a(f"v_mov_b32 v{SS[1]+6}, 0"); a(f"v_mov_b32 v{SS[1]+7}, 0")
    a.settle()
    a.label("K2_PRE")
    a(f"ds_read_b128 {r4(SS[1])}, {t(10)}"); a(f"ds_read_b64 v[{SS[1]+4}:{SS[1]+5}], {t(11)}")
    a(f"v_add_u32 {t(10)}, {R}, {t(10)}"); a(f"v_add_u32 {t(11)}, {R}, {t(11)}")
    a.wait_lg0()
    a(f"v_mfma_f32_32x32x16_bf16 {r16(SS[0])}, {r4(SS[1])}, {r4(Q1)}, 0")
    a(f"v_mfma_f32_32x32x16_bf16 {r16(SS[0])}, {r4(SS[1]+4)}, {r4(Q2)}, {r16(SS[0])}")
    for i in range(0,16,2): a(f"v_max3_f32 {t(6)}, v{SS[0]+i}, v{SS[0]+i+1}, {t(6)}")
    a("s_sub_u32 s73, s73, 1"); a("s_cmp_lg_u32 s73, 0")
    a.settle()
    a("s_cbranch_scc1 K2_PRE")
    a(f"v_mov_b32 {t(7)}, {t(6)}"); a(f"v_permlane32_swap_b32 {t(6)}, {t(7)}"); a(f"v_max_f32 {t(6)}, {t(6)}, {t(7)}")
    a.settle()
    a.label("K2_FAST")
    a.vm=[]
    for i in range(16): a(f"v_sub_f32 v{CC+i}, 0, {t(6)}")
    a(f"v_mfma_f32_32x32x16_bf16 {r16(SS[0])}, {K1b(0)}, {r4(Q1)}, {r16(CC)}")
    a(f"v_mfma_f32_32x32x16_bf16 {r16(SS[0])}, {K2b(0)}, {r4(Q2)}, {r16(SS[0])}")
    def tile(tt, j, base, nov=False):
        p=j&1; S=SS[p]; P=PP[p]
        tt.wait_lg0()
        mf=[f"v_mfma_f32_32x32x16_bf16 {r16(SS[1-p])}, {K1b(1-p)}, {r4(Q1)}, {r16(CC)}",
            f"v_mfma_f32_32x32x16_bf16 {r16(OO)}, {Vb(1-p,0)}, {r4(PP[1-p])}, {r16(OO)}",
            f"v_mfma_f32_32x32x16_bf16 {r16(SS[1-p])}, {K2b(1-p)}, {r4(Q2)}, {r16(SS[1-p])}",
            f"v_mfma_f32_32x32x16_bf16 {r16(OO)}, {Vb(1-p,1)}, {r4(PP[1-p]+4)}, {r16(OO)}"]
        ex=[f"ds_read_b128 {K1b(p)}, v1 offset:{R*(j+base)}", f"ds_read_b64 {K2lo(p)}, v2 offset:{R*(j+base)}"]
        if not nov:
            ex+=[f"ds_read_b128 {Vb(p,0)}, v3 offset:{R*(j+base-2)}", f"ds_read_b128 {Vb(p,1)}, v3 offset:{R*(j+base-2)+672}"]
        E=[f"v_exp_f32 v{S+i}, v{S+i}" for i in range(16)]
        C=[f"v_cvt_pk_bf16_f32 v{P+i}, v{S+2*i}, v{S+2*i+1}" for i in range(8)]
        groups=[E[0:4], [E[4],C[0],E[5],C[1],E[6],E[7]], [E[8],C[2],E[9],C[3],E[10],E[11]], [E[12],C[4],E[13],C[5],E[14],E[15],C[6],C[7]]]
        for x in ex:
            if NOKV: tt.lg.append(None); continue
            tt(x)
        for k in range(4):
            tt(mf[k])
            for x in groups[k]: tt(x)
    stamp(a,3)
    for j in range(8): tile(a,j,0,nov=(j<2))
    a("s_cmp_eq_u32 s74, 1")
    def bar2(t2): t2.raw("    s_barrier")
    a.cond_block("s_cbranch_scc0 K2_NOB2","K2_NOB2",bar2)
    a("s_min_u32 s63, s52, 4"); a("s_sub_u32 s62, s52, s63"); a("s_mul_i32 s62, s62, 160"); a("s_add_u32 s62, s62, s63")
    a("s_mul_i32 s63, s56, 5"); a("s_add_u32 s62, s62, s63"); a("s_add_u32 s62, s62, 160"); a("s_lshl_b32 s62, s62, 10"); a(f"s_add_u32 s62, s62, {L.WOF}")
    for i in range(8):
        a(f"buffer_load_dwordx4 {r4(136+4*i)}, v1, s[48:51], s62 offen","wo"); a("s_add_u32 s62, s62, 20480")
    a("s_mov_b32 s73, 0"); a(f"s_mov_b32 s72, {BMASK}")
    def body(tt):
        for j in range(8): tile(tt,j,8)
    def tail(tt):
        for r in (1,2,3): tt(f"v_add_u32 v{r}, {8*R}, v{r}")
        tt("s_bitcmp1_b32 s72, s73")
        def bar(t2):
            t2.raw("    s_barrier")
        tt.cond_block("s_cbranch_scc0 K2_NOBAR","K2_NOBAR",bar)
        tt("s_add_u32 s73, s73, 1"); tt("s_cmp_lg_u32 s73, 7"); tt("s_cbranch_scc1 K2_LOOP")
    a.loop("K2_LOOP", body, tail)
    stamp(a,4)
    a.wait_lg0()
    a(f"v_mfma_f32_32x32x16_bf16 {r16(OO)}, {Vb(1,0)}, {r4(PP[1])}, {r16(OO)}")
    a(f"v_mfma_f32_32x32x16_bf16 {r16(OO)}, {Vb(1,1)}, {r4(PP[1]+4)}, {r16(OO)}")
    a(f"v_lshlrev_b32 {t(5)}, 10, {t(3)}"); a(f"v_lshl_add_u32 {t(5)}, {t(4)}, 9, {t(5)}"); a(f"v_lshl_add_u32 {t(5)}, {t(2)}, 4, {t(5)}")
    a(f"s_mul_i32 s61, s55, {40*1024}"); a(f"s_add_u32 s61, s61, {L.OF}")
    a("s_lshl_b32 s63, s52, 12"); a("s_add_u32 s62, s61, s63")
    a(f"v_lshrrev_b32 {t(10)}, 1, {t(3)}"); a(f"v_lshlrev_b32 {t(10)}, 10, {t(10)}"); a(f"v_and_b32 {t(11)}, 1, {t(3)}")
    a(f"v_lshl_add_u32 {t(10)}, {t(11)}, 9, {t(10)}"); a(f"v_lshl_add_u32 {t(10)}, {t(2)}, 4, {t(10)}")
    a("s_lshr_b32 s64, s52, 1"); a("s_lshl_b32 s64, s64, 11"); a("s_add_u32 s64, s64, s61"); a("s_add_u32 s64, s64, 32768")
    a("s_and_b32 s63, s52, 1"); a("s_lshl_b32 s63, s63, 3"); a("s_add_u32 s64, s64, s63")
    a(f"v_rcp_f32 {t(6)}, v{OO+12}")
    for i in range(12): a(f"v_mul_f32 v{OO+i}, {t(6)}, v{OO+i}")
    for i in range(6): a(f"v_cvt_pk_bf16_f32 v{SS[0]+i}, v{OO+2*i}, v{OO+2*i+1}")
    a(f"buffer_store_dwordx4 {r4(SS[0])}, {t(5)}, s[48:51], s62 offen sc0 sc1")
    a("v_cmp_gt_u32 vcc, 32, v0")
    a("s_and_saveexec_b64 s[78:79], vcc")
    a(f"buffer_store_dwordx2 v[{SS[0]+4}:{SS[0]+5}], {t(10)}, s[48:51], s64 offen sc0 sc1")
    a("s_mov_b64 exec, -1")
    a("v_lshlrev_b32 v1, 4, v0")
    a.wait_vm0(); stamp(a,1); a("s_barrier")
    stamp(a,2)
    a("s_cmp_lg_u32 s52, 0"); a("s_cbranch_scc1 K2_FLAGOK")
    a("s_lshl_b32 s63, s55, 7"); a(f"s_add_u32 s63, s63, {L.FLG}"); a("s_add_u32 s62, s63, s56")
    a.raw(f"""    s_mov_b64 exec, 1
    v_mov_b32 v2, 1
    v_mov_b32 v3, 0
    s_nop 1
    buffer_store_byte v2, v3, s[48:51], s62 offen sc0 sc1
K2_POLL:
    buffer_load_dword v2, v3, s[48:51], s63 offen sc1
    s_waitcnt vmcnt(0)
    v_readfirstlane_b32 s62, v2
    s_nop 3
    s_cmp_eq_u32 s62, 0x01010101
    s_cbranch_scc1 K2_POLLOK
    s_sleep 1
    s_branch K2_POLL
K2_POLLOK:
    s_mov_b64 exec, -1""")
    a.label("K2_FLAGOK")
    a.settle()
    a("s_barrier")
    stamp(a,5)
    a("s_lshl_b32 s62, s52, 10"); a("s_add_u32 s63, s62, s61"); a(f"s_add_u32 s62, s62, {OL}")
    for m in range(5):
        a("s_mov_b32 m0, s62"); a("s_add_u32 s62, s62, 8192")
        a("buffer_load_dwordx4 v1, s[48:51], s63 offen sc1 lds"); a("s_add_u32 s63, s63, 8192")
    a(f"v_add_u32 v2, {OL}, v1")
    a("s_min_u32 s63, s52, 4"); a("s_sub_u32 s62, s52, s63")
    a("s_mul_i32 s64, s62, 10240"); a("s_lshl_b32 s63, s63, 10"); a("s_add_u32 s64, s64, s63"); a(f"s_add_u32 s64, s64, {WL}")
    a("v_add_u32 v3, s64, v1")
    a.wait_vm0(); a("s_barrier")
    stamp(a,6)
    AC=SS[0]
    a("s_cmp_ge_u32 s52, 4"); a("s_cbranch_scc1 K2_P2B")
    hz=a.hz_get()
    for k in range(8): a(f"ds_read_b128 {r4(12+4*k)}, v2 offset:{1024*(8+k)}", f"b{k}")
    for k in range(4):
        a(f"ds_read_b128 {r4(44+4*k)}, v3 offset:{5120*k}", f"l{k}"); a(f"ds_read_b128 {r4(76+4*k)}, v2 offset:{1024*k}", f"l{k}")
    for k in range(8):
        a.wait_lg(f"b{k}")
        a(f"v_mfma_f32_32x32x16_bf16 {r16(AC)}, {r4(136+4*k)}, {r4(12+4*k)}, {'0' if k==0 else r16(AC)}")
        if k>=4:
            kk=k
            a(f"ds_read_b128 {r4(92+4*(kk-4))}, v3 offset:{5120*kk}", f"l{kk}"); a(f"ds_read_b128 {r4(108+4*(kk-4))}, v2 offset:{1024*kk}", f"l{kk}")
    for k in range(8):
        a.wait_lg(f"l{k}")
        A,B=(44+4*k,76+4*k) if k<4 else (92+4*(k-4),108+4*(k-4))
        a(f"v_mfma_f32_32x32x16_bf16 {r16(AC)}, {r4(A)}, {r4(B)}, {r16(AC)}")
    a("s_lshl_b32 s63, s52, 13")
    a("s_branch K2_P2W")
    a.label("K2_P2B")
    a.hz_set(hz); a.lg=[]
    a("s_lshl_b32 s63, s62, 13"); a("v_add_u32 v4, s63, v2")
    a("s_lshl_b32 s63, s62, 11"); a("v_add_u32 v5, s63, v2")
    for k in range(8): a(f"ds_read_b128 {r4(12+4*k)}, v4 offset:{1024*(8+k)}", f"b{k}")
    for k in range(2):
        a(f"ds_read_b128 {r4(44+4*k)}, v3 offset:{5120*k}", f"l{k}"); a(f"ds_read_b128 {r4(76+4*k)}, v5 offset:{1024*k}", f"l{k}")
    for k in range(8):
        a.wait_lg(f"b{k}")
        a(f"v_mfma_f32_32x32x16_bf16 {r16(AC)}, {r4(136+4*k)}, {r4(12+4*k)}, {'0' if k==0 else r16(AC)}")
    for k in range(2):
        a.wait_lg(f"l{k}")
        a(f"v_mfma_f32_32x32x16_bf16 {r16(AC)}, {r4(44+4*k)}, {r4(76+4*k)}, {r16(AC)}")
    a("s_lshl_b32 s63, s62, 12"); a("s_add_u32 s63, s63, 32768")
    a.label("K2_P2W")
    a.settle()
    a("v_add_u32 v2, s63, v1")
    for g in range(4): a(f"ds_write_b128 v2, {r4(AC+4*g)} offset:{1024*g}")
    a.wait_lg0(); a("s_barrier")
    a("s_branch K2_END")

    a.label("K2_GEMM")
    a.ev={}; a.vm=[]; a.lg=[]
    srd(a,36,16,2048*1280)
    a("s_sub_u32 s53, s52, 8")
    a("v_lshlrev_b32 v1, 4, v0"); a("v_add_u32 v2, 4096, v1")
    a(f"s_mul_i32 s60, s55, {96*1024}"); a(f"s_mul_i32 s63, s53, {24*1024}"); a("s_add_u32 s60, s60, s63"); a(f"s_add_u32 s60, s60, {L.HF}")
    a(f"s_mul_i32 s61, s53, {24*20480}"); a(f"s_mul_i32 s63, s56, 5120"); a("s_add_u32 s61, s61, s63"); a(f"s_add_u32 s61, s61, {L.W2F}")
    def ld(t, s):
        b=84+24*s
        t(f"buffer_load_dwordx4 {r4(b)}, v1, s[48:51], s60 offen", f"s{s}")
        for c in range(4): t(f"buffer_load_dwordx4 {r4(b+4+4*c)}, v1, s[48:51], s61 offen offset:{1024*c}", f"s{s}")
        t(f"buffer_load_dwordx4 {r4(b+20)}, v2, s[48:51], s61 offen", f"s{s}")
        t("s_add_u32 s60, s60, 1024"); t("s_add_u32 s61, s61, 20480")
    a("s_barrier")
    a("s_lshl_b32 s62, s53, 10"); a("s_add_u32 s62, s62, 24576"); a(f"s_add_u32 s63, s62, {L.KV+2*R}")
    for m in range(34):
        a("s_mov_b32 m0, s62")
        a("s_add_u32 s62, s62, 4096")
        a("buffer_load_dwordx4 v1, s[48:51], s63 offen lds", "kv")
        a("s_add_u32 s63, s63, 4096")
    for s in range(3): ld(a,s)
    for r in range(4,84): a(f"v_mov_b32 v{r}, 0")
    stamp(a,1)
    a.wait_vm("kv")
    a("s_barrier")
    stamp(a,2)
    def mm(t, s):
        b=84+24*s
        t.wait_vm(f"s{s}")
        for c in range(5): t(f"v_mfma_f32_32x32x16_bf16 {r16(4+16*c)}, {r4(b+4+4*c)}, {r4(b)}, {r16(4+16*c)}")
    def gbody(t):
        for s in range(3): mm(t,s); ld(t,s)
    def gtail(t):
        t("s_sub_u32 s73, s73, 1"); t("s_cmp_lg_u32 s73, 0"); t("s_cbranch_scc1 K2_GLOOP")
    a("s_mov_b32 s73, 7")
    if not NOGEMM: a.loop("K2_GLOOP", gbody, gtail)
    for s in range(3): mm(a,s)
    stamp(a,3)
    a("v_and_b32 v3, 31, v0"); a("s_lshl_b32 s63, s55, 5"); a("v_add_u32 v3, s63, v3"); a("v_mul_u32_u24 v3, 1280, v3")
    a("v_lshrrev_b32 v162, 5, v0"); a("v_lshl_add_u32 v3, v162, 3, v3")
    a("s_mul_i32 s62, s56, 320"); a("s_lshl_b32 s63, s53, 4"); a("s_add_u32 s62, s62, s63")
    for c in range(5): a(f"buffer_load_dwordx2 v[{152+2*c}:{153+2*c}], v3, s[36:39], s62 offen offset:{64*c}","x")
    a("s_mov_b32 s64, s62")
    a("s_mul_i32 s63, s53, 20480"); a("v_add_u32 v162, s63, v1")
    a("s_lshl_b32 s63, s53, 10"); a("v_add_u32 v163, s63, v1"); a("v_add_u32 v164, 40960, v163")
    a("s_mul_i32 s65, s56, 5120"); a(f"s_add_u32 s65, s65, {L.WOF}")
    a("s_barrier")
    stamp(a,4)
    for c in range(5):
        for g in range(4): a(f"ds_write_b128 v162, {r4(4+16*c+4*g)} offset:{(c*4+g)*1024}")
    def wodma(m):
        a(f"s_add_u32 s62, s53, {4*m}"); a("s_mul_i32 s63, s62, 52"); a("s_lshr_b32 s63, s63, 8"); a("s_mul_i32 s63, s63, 15360")
        a("s_lshl_b32 s62, s62, 10"); a("s_add_u32 s63, s63, s62"); a("s_add_u32 s63, s63, s65"); a(f"s_add_u32 m0, s62, {WL}")
        a("buffer_load_dwordx4 v1, s[48:51], s63 offen lds","wd")
    for m in range(9): wodma(m)
    a.wait_lg0()
    a("s_lshl_b32 s62, s53, 10"); a("s_add_u32 s62, s62, s65"); a(f"s_add_u32 s62, s62, {16*20480}")
    for i in range(24):
        a(f"buffer_load_dwordx4 {r4(4+4*i)}, v1, s[48:51], s62 offen","wr"); a("s_add_u32 s62, s62, 20480")
    a("s_barrier")
    stamp(a,5)
    wodma(9)
    a.wait_vm("x")
    for c in range(5):
        tb=120+16*(c&1)
        if c==0:
            for cc in range(2):
                for s_ in range(4): a(f"ds_read_b128 {r4(120+16*cc+4*s_)}, v{163+(s_>>1)} offset:{(s_&1)*20480+cc*4096}", f"r{cc}")
        a.wait_lg(f"r{c}")
        y=100+4*c
        a(f"v_lshlrev_b32 v{y}, 16, v{152+2*c}"); a(f"v_and_b32 v{y+1}, 0xffff0000, v{152+2*c}")
        a(f"v_lshlrev_b32 v{y+2}, 16, v{153+2*c}"); a(f"v_and_b32 v{y+3}, 0xffff0000, v{153+2*c}")
        for i in range(4):
            a(f"v_add_f32 v{tb+i}, v{tb+i}, v{tb+4+i}"); a(f"v_add_f32 v{tb+8+i}, v{tb+8+i}, v{tb+12+i}")
        for i in range(4): a(f"v_add_f32 v{tb+i}, v{tb+i}, v{tb+8+i}")
        for i in range(4): a(f"v_add_f32 v{y+i}, v{y+i}, v{tb+i}")
        if c+2<5:
            for s_ in range(4): a(f"ds_read_b128 {r4(tb+4*s_)}, v{163+(s_>>1)} offset:{(s_&1)*20480+(c+2)*4096}", f"r{c+2}")
    srd(a,36,18,2048*1280)
    a(f"v_add_u32 v2, {OL+16384}, v1")
    a.wait_vm0()
    a("s_barrier")
    a("s_barrier")
    a("s_barrier")
    NB=6
    for k in range(NB): a(f"ds_read_b128 {r4(136+4*k)}, v2 offset:{1024*k}", f"b{k}")
    for k in range(24):
        a.wait_lg(f"b{k}")
        a(f"v_mfma_f32_32x32x16_bf16 {r16(120)}, {r4(4+4*k)}, {r4(136+4*(k%NB))}, {'0' if k==0 else r16(120)}")
        if k>=1 and k-1+NB<24: a(f"ds_read_b128 {r4(136+4*((k-1)%NB))}, v2 offset:{1024*(k-1+NB)}", f"b{k-1+NB}")
    a("s_lshl_b32 s63, s53, 13"); a("s_add_u32 s63, s63, 4096"); a("v_add_u32 v2, s63, v1")
    for g in range(4): a(f"ds_write_b128 v2, {r4(120+4*g)} offset:{1024*g}")
    a.wait_lg0(); a("s_barrier")
    for sl in range(12): a(f"ds_read_b128 {r4(4+4*sl)}, v163 offset:{4096*sl}", f"f{sl}")
    for c in range(5):
        y=100+4*c
        srcs=[2*c,2*c+1] if c<4 else [8,9,10,11]
        a.wait_lg(f"f{srcs[-1]}")
        for sl in srcs:
            for i in range(4): a(f"v_add_f32 v{y+i}, v{y+i}, v{4+4*sl+i}")
        a(f"v_cvt_pk_bf16_f32 v{y}, v{y}, v{y+1}"); a(f"v_cvt_pk_bf16_f32 v{y+1}, v{y+2}, v{y+3}")
        a(f"buffer_store_dwordx2 v[{y}:{y+1}], v3, s[36:39], s64 offen offset:{64*c}")
    a.label("K2_END")
    if DIAG:
        a.raw("    s_cmp_ge_u32 s2, 256\n    s_cbranch_scc1 K2_END2")
        stamp(a,7); stamp(a,9,True)
        dump(a,1,"s52",vtmp=165,wmul=4)
        a.label("K2_END2")
    a("s_endpgm")
    return a.text(), dict(vgpr=168, sgpr=102, lds=163840, block=768, grid=256)

def k3():
    a=Asm()
    a.raw(".globl k3_kernel\n.p2align 8\n.type k3_kernel,@function\nk3_kernel:")
    a("s_cmp_ge_u32 s2, 256"); a("s_cbranch_scc1 K3_END")
    stamp(a,0); stamp(a,8,True)
    a("s_load_dwordx2 s[16:17], s[0:1], 72")
    a("s_load_dwordx2 s[34:35], s[0:1], 88")
    a("v_lshrrev_b32 v1, 6, v0"); a("v_readfirstlane_b32 s53, v1"); a("v_and_b32 v0, 63, v0")
    wg_decode(a)
    a("v_lshlrev_b32 v1, 4, v0"); a("v_add_u32 v2, 4096, v1")
    a(f"s_mul_i32 s60, s55, {40*1024}"); a(f"s_mul_i32 s63, s53, {10*1024}"); a("s_add_u32 s60, s60, s63"); a(f"s_add_u32 s60, s60, {L.OF}")
    a(f"s_mul_i32 s61, s53, {10*20480}"); a(f"s_mul_i32 s63, s56, 5120"); a("s_add_u32 s61, s61, s63"); a(f"s_add_u32 s61, s61, {L.WOF}")
    a("s_waitcnt lgkmcnt(0)")
    srd(a,48,34,L.WS_END); srd(a,36,16,2048*1280)
    for s in range(10):
        b=8+24*s
        a(f"buffer_load_dwordx4 {r4(b)}, v1, s[48:51], s60 offen", f"s{s}")
        for c in range(4): a(f"buffer_load_dwordx4 {r4(b+4+4*c)}, v1, s[48:51], s61 offen offset:{1024*c}", f"s{s}")
        a(f"buffer_load_dwordx4 {r4(b+20)}, v2, s[48:51], s61 offen", f"s{s}")
        a("s_add_u32 s60, s60, 1024"); a("s_add_u32 s61, s61, 20480")
    a("s_mul_i32 s62, s2, 20480"); a("s_lshl_b32 s63, s53, 10"); a("s_add_u32 s62, s62, s63"); a(f"s_add_u32 s62, s62, {L.Y0}")
    a("s_mul_i32 s63, s53, 20480"); a("v_add_u32 v4, s63, v1")
    a("s_lshl_b32 s63, s53, 10"); a("v_add_u32 v5, s63, v1"); a("v_add_u32 v6, 40960, v5")
    a("v_and_b32 v3, 31, v0"); a("s_lshl_b32 s63, s55, 5"); a("v_add_u32 v3, s63, v3"); a("v_mul_u32_u24 v3, 1280, v3")
    a("v_lshrrev_b32 v7, 5, v0"); a("v_lshl_add_u32 v3, v7, 3, v3")
    a("s_mul_i32 s64, s56, 320"); a("s_lshl_b32 s63, s53, 4"); a("s_add_u32 s64, s64, s63")
    stamp(a,1)
    for s in range(10):
        b=8+24*s
        a.wait_vm(f"s{s}")
        if s==0: stamp(a,2)
        for c in range(5):
            C="0" if s==0 else f"a[{16*c}:{16*c+15}]"
            a(f"v_mfma_f32_32x32x16_bf16 a[{16*c}:{16*c+15}], {r4(b+4+4*c)}, {r4(b)}, {C}")
        if s==1:
            for c in range(5):
                a(f"buffer_load_dwordx4 {r4(8+4*c)}, v1, s[48:51], s62 offen", "y")
                a("s_add_u32 s62, s62, 4096")
    stamp(a,3)
    for c in range(5):
        for g in range(4): a(f"ds_write_b128 v4, a[{16*c+4*g}:{16*c+4*g+3}] offset:{(c*4+g)*1024}")
    a.wait_lg0(); a("s_barrier")
    for c in range(5):
        for s in range(4): a(f"ds_read_b128 {r4(88+16*c+4*s)}, v{5+(s>>1)} offset:{(s&1)*20480+c*4096}", f"r{c}")
    stamp(a,4)
    a.wait_vm("y")
    for c in range(5):
        a.wait_lg(f"r{c}")
        b=88+16*c
        for i in range(4):
            a(f"v_add_f32 v{b+i}, v{b+i}, v{b+4+i}"); a(f"v_add_f32 v{b+8+i}, v{b+8+i}, v{b+12+i}")
        for i in range(4): a(f"v_add_f32 v{b+i}, v{b+i}, v{b+8+i}")
        for i in range(4): a(f"v_add_f32 v{b+i}, v{b+i}, v{8+4*c+i}")
        a(f"v_cvt_pk_bf16_f32 v{b}, v{b}, v{b+1}"); a(f"v_cvt_pk_bf16_f32 v{b+1}, v{b+2}, v{b+3}")
        a(f"buffer_store_dwordx2 v[{b}:{b+1}], v3, s[36:39], s64 offen offset:{64*c}")
    a.label("K3_END")
    if DIAG:
        a.raw("    s_cmp_ge_u32 s2, 256\n    s_cbranch_scc1 K3_END2")
        stamp(a,7); stamp(a,9,True)
        dump(a,2,"s53",vtmp=250)
        a.label("K3_END2")
    a("s_endpgm")
    return a.text(), dict(vgpr=256+80, accum=256, sgpr=102, lds=81920, block=256, grid=256)
```

```python
import numpy as np
T,D,H,DH,F=2048,640,32,20,1536
QF  = 0
HF  = QF + 64*40*1024
REC=2624
KV  = HF + 64*96*1024
KN  = KV + 64*REC
W2F = KN + 1024
WOF = W2F + 96*20*1024
OF  = WOF + 40*20*1024
Y0  = OF + 64*40*1024
STG = Y0 + 256*20*1024
CSG = STG + 2048*8
FLG = CSG + 32*4096
WS_END = FLG + 4096 + 8192
def bf(u16): return (u16.astype(np.uint32)<<16).view(np.float32)
def slot_col(h,j): return 8*(j>>2)+4*h+(j&3)
def dec_frag32(ws,off,ncols):
    nks=ncols//16
    a=ws[off:off+64*nks*1024].view(np.uint16).reshape(64,nks,2,32,8)
    out=np.zeros((T,ncols),np.float32)
    o=out.reshape(64,32,nks,16)
    for h in range(2):
        for j in range(8):
            o[:,:,:,slot_col(h,j)]=bf(a[:,:,h,:,j]).transpose(0,2,1)
    return out
def dec_kv(ws):
    r=ws[KV:KV+64*REC].reshape(64,REC)
    K=np.zeros((T,20),np.float32); V=np.zeros((T,20),np.float32)
    k1=r[:,:1024].copy().view(np.uint16).reshape(64,2,32,8)
    k2=r[:,1024:1280].copy().view(np.uint16).reshape(64,32,4)
    Kr=K.reshape(64,32,20)
    for h in range(2):
        for j in range(8): Kr[:,:,slot_col(h,j)]=bf(k1[:,h,:,j])
    Kr[:,:,16:20]=bf(k2)
    v=r[:,1280:].copy().view(np.uint16).reshape(64,2,2,21,8)
    assert (v[:,:,0,20,:]==0x3f80).all() and (v[:,:,1,20,:]==0).all()
    v=v[:,:,:,:20,:]
    Vr=V.reshape(64,32,20)
    for a in range(2):
        for h in range(2):
            for j in range(8): Vr[:,16*a+slot_col(h,j),:]=bf(v[:,a,h,:,j])
    return K,V
def dec_wf(ws,off,nks,krow):
    a=ws[off:off+nks*20*1024].view(np.uint16).reshape(nks,20,2,32,8)
    W=np.zeros((nks*16,640),np.float32)
    for ks in range(nks):
        for h in range(2):
            for j in range(8):
                W[krow(ks,h,j),:]=bf(a[ks,:,h,:,j]).reshape(640)
    return W
def w2_row(ks,h,j): return 16*ks+slot_col(h,j)
def wo_row(ks,h,j):
    if ks<32: return 20*ks+slot_col(h,j)
    w=(ks-32)>>1; u=(ks-32)&1
    return (8*w+4*(j>>2)+2*u+h)*20+16+(j&3)
def dec_w2f(ws): return dec_wf(ws,W2F,96,w2_row)
def dec_wof(ws): return dec_wf(ws,WOF,40,wo_row)
def dec_of(ws):
    a=ws[OF:OF+64*40*1024].view(np.uint16).reshape(64,40,2,32,8)
    O=np.zeros((T,640),np.float32); Or=O.reshape(64,32,640)
    for ks in range(40):
        for h in range(2):
            for j in range(8): Or[:,:,wo_row(ks,h,j)]=bf(a[:,ks,h,:,j])
    return O
def wg_map(i):
    xc=i&7; li=i>>3
    return 8*xc+(li>>2), li&3
def dec_y0(ws):
    a=ws[Y0:Y0+256*20*1024].view(np.float32).reshape(256,5,4,2,32,4)
    Y=np.zeros((T,640),np.float32)
    for i in range(256):
        tg,sub=wg_map(i)
        for c in range(5):
            for g in range(4):
                for h in range(2):
                    col=160*sub+32*c+8*g+4*h
                    Y[32*tg:32*tg+32,col:col+4]=a[i,c,g,h]
    return Y
```

```python
from asmlib import Asm
import layout as L
from diag import stamp, dump, DIAG
from k1 import srd, f2u
import os
NOKV=os.environ.get('NOKV','0')=='1'
NOGEMM=os.environ.get('NOGEMM','0')=='1'
NOEXEC=os.environ.get('NOEXEC','0')=='1'
NOPRIO=os.environ.get('NOPRIO','0')=='1'
PTOG=os.environ.get('PTOG','0')=='1'
THR=48.0
BMASK=(1<<4)|(1<<5)
R=L.REC
WL=81920
OL=122880

Q1,Q2=4,8
def K1b(p): return f"v[{12+8*p}:{15+8*p}]"
def K2b(p): return f"v[{16+8*p}:{19+8*p}]"
def K2lo(p): return f"v[{16+8*p}:{17+8*p}]"
def Vb(p,x): b=28+8*p+4*x; return f"v[{b}:{b+3}]"
PP=(44,52)
SS=(60,76)
OO=92
CC=108
T0=124
def r16(b): return f"v[{b}:{b+15}]"
def r4(b): return f"v[{b}:{b+3}]"

def wg_decode(a):
    a("s_and_b32 s63, s2, 7"); a("s_lshr_b32 s67, s2, 3")
    a("s_lshl_b32 s55, s63, 3"); a("s_lshr_b32 s68, s67, 2"); a("s_add_u32 s55, s55, s68")
    a("s_and_b32 s56, s67, 3")

def k2():
    a=Asm()
    a.raw(".globl k2_kernel\n.p2align 8\n.type k2_kernel,@function\nk2_kernel:")
    a("s_cmp_ge_u32 s2, 256"); a("s_cbranch_scc1 K2_END")
    stamp(a,0); stamp(a,8,True)
    a("s_load_dwordx2 s[16:17], s[0:1], 0")
    a("s_load_dwordx2 s[18:19], s[0:1], 72")
    a("s_load_dwordx4 s[32:35], s[0:1], 80")
    a("v_lshrrev_b32 v1, 6, v0"); a("v_readfirstlane_b32 s52, v1"); a("v_and_b32 v0, 63, v0")
    wg_decode(a)
    a("s_waitcnt lgkmcnt(0)")
    srd(a,48,34,L.WS_END)
    a("s_cmp_ge_u32 s52, 8"); a("s_cbranch_scc1 K2_GEMM")
    if not NOPRIO: a("s_setprio 2")
    a("s_lshr_b32 s75, s52, 2")
    if PTOG:
        a("s_cmp_eq_u32 s75, 0")
        def hi0(t2): t2.raw("    s_setprio 3")
        a.cond_block("s_cbranch_scc1 K2_NOHI0","K2_NOHI0",hi0)
    t=lambda i: f"v{T0+i}"
    a("v_lshlrev_b32 v1, 4, v0")
    a(f"v_lshlrev_b32 {t(0)}, 2, v0"); a(f"s_mov_b32 s60, {L.KN}")
    a(f"buffer_load_dword {t(1)}, {t(0)}, s[48:51], s60 offen","kn")
    a(f"v_and_b32 {t(2)}, 7, v0"); a("s_lshl_b32 s63, s56, 3"); a(f"v_add_u32 {t(2)}, s63, {t(2)}")
    a(f"v_bfe_u32 {t(3)}, v0, 3, 2")
    a(f"v_lshrrev_b32 {t(4)}, 5, v0")
    a("s_lshl_b32 s63, s52, 2"); a(f"v_add_u32 {t(5)}, s63, {t(3)}")
    a(f"v_mul_u32_u24 {t(5)}, 5, {t(5)}")
    a(f"s_mul_i32 s61, s55, {40*1024}")
    def qaddr(dst, p):
        a(f"v_lshrrev_b32 {t(6)}, 2, {p}"); a(f"v_lshlrev_b32 {t(6)}, 10, {t(6)}")
        a(f"v_and_b32 {t(7)}, 1, {p}"); a(f"v_lshl_add_u32 {t(7)}, {t(7)}, 5, {t(2)}"); a(f"v_lshl_add_u32 {t(6)}, {t(7)}, 4, {t(6)}")
        a(f"v_bfe_u32 {t(7)}, {p}, 1, 1"); a(f"v_lshl_add_u32 {dst}, {t(7)}, 3, {t(6)}")
    a(f"v_add_u32 {t(8)}, {t(5)}, {t(4)}")
    qaddr(t(9),t(8)); a(f"buffer_load_dwordx2 v[{Q1}:{Q1+1}], {t(9)}, s[48:51], s61 offen","q")
    a(f"v_add_u32 {t(8)}, 2, {t(8)}")
    qaddr(t(10),t(8)); a(f"buffer_load_dwordx2 v[{Q1+2}:{Q1+3}], {t(10)}, s[48:51], s61 offen","q")
    a(f"v_add_u32 {t(8)}, 4, {t(5)}")
    qaddr(t(11),t(8)); a(f"buffer_load_dwordx2 v[{Q2}:{Q2+1}], {t(11)}, s[48:51], s61 offen","q")
    a(f"v_and_b32 {t(0)}, 31, v0")
    a(f"v_lshlrev_b32 v2, 3, {t(0)}"); a("v_add_u32 v2, 1024, v2")
    a("v_cmp_gt_u32 vcc, 32, v0"); a(f"v_mov_b32 {t(8)}, {1280+336+320}"); a(f"v_cndmask_b32 v2, {t(8)}, v2, vcc")
    a(f"v_mul_u32_u24 v3, 336, {t(4)}"); a(f"v_lshl_add_u32 v3, {t(0)}, 4, v3"); a("v_add_u32 v3, 1280, v3")
    a(f"v_cmp_gt_u32 vcc, 20, {t(0)}"); a(f"v_cndmask_b32 v3, {t(8)}, v3, vcc")
    a(f"v_and_b32 {t(9)}, 27, {t(0)}"); a(f"v_cmp_eq_u32 vcc, 24, {t(9)}"); a(f"v_mov_b32 {t(8)}, {1280+320}"); a(f"v_cndmask_b32 v3, v3, {t(8)}, vcc")
    a(f"s_mov_b32 s64, {L.KV}"); a(f"s_add_u32 s65, s64, {R}")
    for r in range(36,44): a(f"v_mov_b32 v{r}, 0")
    for tt_ in range(2):
        a(f"buffer_load_dwordx4 {K1b(tt_)}, v1, s[48:51], s64 offen offset:{R*tt_}",f"k{tt_}")
        a(f"buffer_load_dwordx2 {K2lo(tt_)}, v2, s[48:51], s64 offen offset:{R*tt_}",f"k{tt_}")
    a("s_lshl_b32 s62, s52, 10"); a(f"s_add_u32 s63, s62, {L.KV+2*R}")
    for m in range(3):
        a("s_mov_b32 m0, s62")
        a("s_add_u32 s62, s62, 8192")
        a("buffer_load_dwordx4 v1, s[48:51], s63 offen lds", "c0")
        a("s_add_u32 s63, s63, 8192")
    for tt_ in range(2):
        for x in range(2): a(f"buffer_load_dwordx4 {Vb(tt_,x)}, v3, s[48:51], s{64+tt_} offen offset:{672*x}",f"v{tt_}")
    for r in (18,19,26,27): a(f"v_mov_b32 v{r}, 0")
    for r in range(PP[1],PP[1]+8): a(f"v_mov_b32 v{r}, 0")
    for r in range(OO,OO+16): a(f"v_mov_b32 v{r}, 0")
    a.wait_vm("kn")
    for r_ in (8,4,2,1): a(f"v_max_f32_dpp {t(1)}, {t(1)}, {t(1)} row_ror:{r_} row_mask:0xf bank_mask:0xf")
    for op in ("v_permlane16_swap_b32","v_permlane32_swap_b32"):
        a(f"v_mov_b32 {t(8)}, {t(1)}"); a(f"{op} {t(1)}, {t(8)}"); a(f"v_max_f32 {t(1)}, {t(1)}, {t(8)}")
    a.wait_vm("q")
    a("v_cmp_gt_u32 vcc, 32, v0")
    a(f"v_cndmask_b32 v{Q2}, 0, v{Q2}, vcc"); a(f"v_cndmask_b32 v{Q2+1}, 0, v{Q2+1}, vcc")
    a(f"v_mov_b32 v{Q2+2}, 0"); a(f"v_mov_b32 v{Q2+3}, 0")
    a(f"v_mov_b32 {t(6)}, 0")
    for i in range(6): a(f"v_dot2_f32_bf16 {t(6)}, v{Q1+i}, v{Q1+i}, {t(6)}")
    a(f"v_mov_b32 {t(7)}, {t(6)}"); a(f"v_permlane32_swap_b32 {t(6)}, {t(7)}")
    a(f"v_add_f32 {t(6)}, {t(6)}, {t(7)}"); a(f"v_mul_f32 {t(6)}, {t(6)}, {t(1)}")
    a(f"v_sqrt_f32 {t(6)}, {t(6)}"); a(f"v_mul_f32 {t(6)}, 0x{f2u(1.01):08x}, {t(6)}")
    a(f"v_cmp_ge_f32 vcc, 0x{f2u(THR):08x}, {t(6)}")
    a("s_mov_b32 s74, 1")
    a("s_cmp_eq_u64 vcc, exec"); a("s_cbranch_scc1 K2_FAST")
    vm_fast=list(a.vm)
    a.wait_vm0(); a("s_barrier")
    a("s_barrier"); a("s_barrier")
    a("s_mov_b32 s74, 0")
    a(f"v_mov_b32 {t(6)}, 0xff800000")
    for p in range(2):
        a(f"v_mfma_f32_32x32x16_bf16 {r16(SS[0])}, {K1b(p)}, {r4(Q1)}, 0")
        a(f"v_mfma_f32_32x32x8_bf16 {r16(SS[0])}, {K2lo(p)}, v[{Q2}:{Q2+1}], {r16(SS[0])}")
        for i in range(0,16,2): a(f"v_max3_f32 {t(6)}, v{SS[0]+i}, v{SS[0]+i+1}, {t(6)}")
    a(f"v_mov_b32 {t(10)}, v1"); a(f"v_mov_b32 {t(11)}, v2"); a("s_mov_b32 s73, 62")
    a(f"v_mov_b32 v{SS[1]+6}, 0"); a(f"v_mov_b32 v{SS[1]+7}, 0")
    a.settle()
    a.label("K2_PRE")
    a(f"ds_read_b128 {r4(SS[1])}, {t(10)}"); a(f"ds_read_b64 v[{SS[1]+4}:{SS[1]+5}], {t(11)}")
    a(f"v_add_u32 {t(10)}, {R}, {t(10)}"); a(f"v_add_u32 {t(11)}, {R}, {t(11)}")
    a.wait_lg0()
    a(f"v_mfma_f32_32x32x16_bf16 {r16(SS[0])}, {r4(SS[1])}, {r4(Q1)}, 0")
    a(f"v_mfma_f32_32x32x8_bf16 {r16(SS[0])}, v[{SS[1]+4}:{SS[1]+5}], v[{Q2}:{Q2+1}], {r16(SS[0])}")
    for i in range(0,16,2): a(f"v_max3_f32 {t(6)}, v{SS[0]+i}, v{SS[0]+i+1}, {t(6)}")
    a("s_sub_u32 s73, s73, 1"); a("s_cmp_lg_u32 s73, 0")
    a.settle()
    a("s_cbranch_scc1 K2_PRE")
    a(f"v_mov_b32 {t(7)}, {t(6)}"); a(f"v_permlane32_swap_b32 {t(6)}, {t(7)}"); a(f"v_max_f32 {t(6)}, {t(6)}, {t(7)}")
    a.settle()
    a.label("K2_FAST")
    a.vm=vm_fast
    for i in range(16): a(f"v_sub_f32 v{CC+i}, 0, {t(6)}")
    a.wait_vm("k0")
    a(f"v_mfma_f32_32x32x16_bf16 {r16(SS[0])}, {K1b(0)}, {r4(Q1)}, {r16(CC)}")
    a(f"v_mfma_f32_32x32x8_bf16 {r16(SS[0])}, {K2lo(0)}, v[{Q2}:{Q2+1}], {r16(SS[0])}")
    def tile(tt, j, base, nov=False, late=False):
        p=j&1; S=SS[p]; P=PP[p]
        tt.wait_lg0()
        mf=[f"v_mfma_f32_32x32x16_bf16 {r16(SS[1-p])}, {K1b(1-p)}, {r4(Q1)}, {r16(CC)}",
            f"v_mfma_f32_32x32x16_bf16 {r16(OO)}, {Vb(1-p,0)}, {r4(PP[1-p])}, {r16(OO)}",
            f"v_mfma_f32_32x32x8_bf16 {r16(SS[1-p])}, {K2lo(1-p)}, v[{Q2}:{Q2+1}], {r16(SS[1-p])}",
            f"v_mfma_f32_32x32x16_bf16 {r16(OO)}, {Vb(1-p,1)}, {r4(PP[1-p]+4)}, {r16(OO)}"]
        ex=[f"ds_read_b128 {K1b(p)}, v1 offset:{R*(j+base)}", f"ds_read_b64 {K2lo(p)}, v2 offset:{R*(j+base)}"]
        if not nov:
            ex+=[f"ds_read_b128 {Vb(p,0)}, v3 offset:{R*(j+base-2)}", f"ds_read_b128 {Vb(p,1)}, v3 offset:{R*(j+base-2)+672}"]
        E=[f"v_exp_f32 v{S+i}, v{S+i}" for i in range(16)]
        C=[f"v_cvt_pk_bf16_f32 v{P+i}, v{S+2*i}, v{S+2*i+1}" for i in range(8)]
        groups=[E[0:4], [E[4],C[0],E[5],C[1],E[6],E[7]], [E[8],C[2],E[9],C[3],E[10],E[11]], [E[12],C[4],E[13],C[5],E[14],E[15],C[6],C[7]]]
        def rd():
            for x in ex:
                if NOKV: tt.lg.append(None); continue
                tt(x)
        if not late: rd()
        for k in range(4):
            tt(mf[k])
            for x in groups[k]: tt(x)
        if late:
            tt.wait_vm("c0")
            tt("s_cmp_eq_u32 s74, 1")
            def bar1(t2): t2.raw("    s_barrier")
            tt.cond_block("s_cbranch_scc0 K2_NOB1","K2_NOB1",bar1)
            rd()
    stamp(a,3)
    for j in range(8):
        if j==0: a.wait_vm("k1")
        if j==1: a.wait_vm("v0")
        if j==2: a.wait_vm("v1")
        tile(a,j,0,nov=(j<2),late=(j==0))
    a("s_cmp_eq_u32 s74, 1")
    def bar2(t2): t2.raw("    s_barrier")
    a.cond_block("s_cbranch_scc0 K2_NOB2","K2_NOB2",bar2)
    a("s_min_u32 s63, s52, 4"); a("s_sub_u32 s62, s52, s63"); a("s_mul_i32 s62, s62, 160"); a("s_add_u32 s62, s62, s63")
    a("s_mul_i32 s63, s56, 5"); a("s_add_u32 s62, s62, s63"); a("s_add_u32 s62, s62, 160"); a("s_lshl_b32 s62, s62, 10"); a(f"s_add_u32 s62, s62, {L.WOF}")
    for i in range(8):
        a(f"buffer_load_dwordx4 {r4(136+4*i)}, v1, s[48:51], s62 offen","wo"); a("s_add_u32 s62, s62, 20480")
    a("s_mov_b32 s73, 0"); a(f"s_or_b32 s72, s74, {BMASK}")
    def body(tt):
        for j in range(8): tile(tt,j,8)
    def tail(tt):
        for r in (1,2,3): tt(f"v_add_u32 v{r}, {8*R}, v{r}")
        if PTOG:
            tt("s_xor_b32 s75, s75, 1"); tt("s_cmp_eq_u32 s75, 0")
            tt("s_setprio 2")
            def hi(t2): t2.raw("    s_setprio 3")
            tt.cond_block("s_cbranch_scc1 K2_NOHI","K2_NOHI",hi)
        tt("s_bitcmp1_b32 s72, s73")
        def bar(t2):
            t2.raw("    s_barrier")
        tt.cond_block("s_cbranch_scc0 K2_NOBAR","K2_NOBAR",bar)
        tt("s_add_u32 s73, s73, 1"); tt("s_cmp_lg_u32 s73, 7"); tt("s_cbranch_scc1 K2_LOOP")
    a.loop("K2_LOOP", body, tail)
    stamp(a,4)
    a.wait_lg0()
    a(f"v_mfma_f32_32x32x16_bf16 {r16(OO)}, {Vb(1,0)}, {r4(PP[1])}, {r16(OO)}")
    a(f"v_mfma_f32_32x32x16_bf16 {r16(OO)}, {Vb(1,1)}, {r4(PP[1]+4)}, {r16(OO)}")
    a(f"v_lshlrev_b32 {t(5)}, 10, {t(3)}"); a(f"v_lshl_add_u32 {t(5)}, {t(4)}, 9, {t(5)}"); a(f"v_lshl_add_u32 {t(5)}, {t(2)}, 4, {t(5)}")
    a(f"s_mul_i32 s61, s55, {40*1024}"); a(f"s_add_u32 s61, s61, {L.OF}")
    a("s_lshl_b32 s63, s52, 12"); a("s_add_u32 s62, s61, s63")
    a(f"v_lshrrev_b32 {t(10)}, 1, {t(3)}"); a(f"v_lshlrev_b32 {t(10)}, 10, {t(10)}"); a(f"v_and_b32 {t(11)}, 1, {t(3)}")
    a(f"v_lshl_add_u32 {t(10)}, {t(11)}, 9, {t(10)}"); a(f"v_lshl_add_u32 {t(10)}, {t(2)}, 4, {t(10)}")
    a("s_lshr_b32 s64, s52, 1"); a("s_lshl_b32 s64, s64, 11"); a("s_add_u32 s64, s64, s61"); a("s_add_u32 s64, s64, 32768")
    a("s_and_b32 s63, s52, 1"); a("s_lshl_b32 s63, s63, 3"); a("s_add_u32 s64, s64, s63")
    a(f"v_rcp_f32 {t(6)}, v{OO+12}")
    for i in range(12): a(f"v_mul_f32 v{OO+i}, {t(6)}, v{OO+i}")
    for i in range(6): a(f"v_cvt_pk_bf16_f32 v{SS[0]+i}, v{OO+2*i}, v{OO+2*i+1}")
    a(f"buffer_store_dwordx4 {r4(SS[0])}, {t(5)}, s[48:51], s62 offen sc0 sc1")
    a("v_cmp_gt_u32 vcc, 32, v0")
    a("s_and_saveexec_b64 s[78:79], vcc")
    a(f"buffer_store_dwordx2 v[{SS[0]+4}:{SS[0]+5}], {t(10)}, s[48:51], s64 offen sc0 sc1")
    a("s_mov_b64 exec, -1")
    a("v_lshlrev_b32 v1, 4, v0")
    a.wait_vm0(); stamp(a,1); a("s_barrier")
    stamp(a,2)
    a("s_cmp_lg_u32 s52, 0"); a("s_cbranch_scc1 K2_FLAGOK")
    a("s_lshl_b32 s63, s55, 7"); a(f"s_add_u32 s63, s63, {L.FLG}"); a("s_add_u32 s62, s63, s56")
    a.raw(f"""    s_mov_b64 exec, 1
    v_mov_b32 v2, 1
    v_mov_b32 v3, 0
    s_nop 1
    buffer_store_byte v2, v3, s[48:51], s62 offen sc0 sc1
K2_POLL:
    buffer_load_dword v2, v3, s[48:51], s63 offen sc1
    s_waitcnt vmcnt(0)
    v_readfirstlane_b32 s62, v2
    s_nop 3
    s_cmp_eq_u32 s62, 0x01010101
    s_cbranch_scc1 K2_POLLOK
    s_sleep 1
    s_branch K2_POLL
K2_POLLOK:
    s_mov_b64 exec, -1""")
    a.label("K2_FLAGOK")
    a.settle()
    a("s_barrier")
    stamp(a,5)
    a("s_lshl_b32 s62, s52, 10"); a("s_add_u32 s63, s62, s61"); a(f"s_add_u32 s62, s62, {OL}")
    for m in range(5):
        a("s_mov_b32 m0, s62"); a("s_add_u32 s62, s62, 8192")
        a("buffer_load_dwordx4 v1, s[48:51], s63 offen sc1 lds"); a("s_add_u32 s63, s63, 8192")
    a(f"v_add_u32 v2, {OL}, v1")
    a("s_min_u32 s63, s52, 4"); a("s_sub_u32 s62, s52, s63")
    a("s_mul_i32 s64, s62, 10240"); a("s_lshl_b32 s63, s63, 10"); a("s_add_u32 s64, s64, s63"); a(f"s_add_u32 s64, s64, {WL}")
    a("v_add_u32 v3, s64, v1")
    a.wait_vm0(); a("s_barrier")
    stamp(a,6)
    AC=SS[0]
    a("s_cmp_ge_u32 s52, 4"); a("s_cbranch_scc1 K2_P2B")
    hz=a.hz_get()
    for k in range(8): a(f"ds_read_b128 {r4(12+4*k)}, v2 offset:{1024*(8+k)}", f"b{k}")
    for k in range(4):
        a(f"ds_read_b128 {r4(44+4*k)}, v3 offset:{5120*k}", f"l{k}"); a(f"ds_read_b128 {r4(76+4*k)}, v2 offset:{1024*k}", f"l{k}")
    for k in range(8):
        a.wait_lg(f"b{k}")
        a(f"v_mfma_f32_32x32x16_bf16 {r16(AC)}, {r4(136+4*k)}, {r4(12+4*k)}, {'0' if k==0 else r16(AC)}")
        if k>=4:
            kk=k
            a(f"ds_read_b128 {r4(92+4*(kk-4))}, v3 offset:{5120*kk}", f"l{kk}"); a(f"ds_read_b128 {r4(108+4*(kk-4))}, v2 offset:{1024*kk}", f"l{kk}")
    for k in range(8):
        a.wait_lg(f"l{k}")
        A,B=(44+4*k,76+4*k) if k<4 else (92+4*(k-4),108+4*(k-4))
        a(f"v_mfma_f32_32x32x16_bf16 {r16(AC)}, {r4(A)}, {r4(B)}, {r16(AC)}")
    a("s_lshl_b32 s63, s52, 13")
    a("s_branch K2_P2W")
    a.label("K2_P2B")
    a.hz_set(hz); a.lg=[]
    a("s_lshl_b32 s63, s62, 13"); a("v_add_u32 v4, s63, v2")
    a("s_lshl_b32 s63, s62, 11"); a("v_add_u32 v5, s63, v2")
    for k in range(8): a(f"ds_read_b128 {r4(12+4*k)}, v4 offset:{1024*(8+k)}", f"b{k}")
    for k in range(2):
        a(f"ds_read_b128 {r4(44+4*k)}, v3 offset:{5120*k}", f"l{k}"); a(f"ds_read_b128 {r4(76+4*k)}, v5 offset:{1024*k}", f"l{k}")
    for k in range(8):
        a.wait_lg(f"b{k}")
        a(f"v_mfma_f32_32x32x16_bf16 {r16(AC)}, {r4(136+4*k)}, {r4(12+4*k)}, {'0' if k==0 else r16(AC)}")
    for k in range(2):
        a.wait_lg(f"l{k}")
        a(f"v_mfma_f32_32x32x16_bf16 {r16(AC)}, {r4(44+4*k)}, {r4(76+4*k)}, {r16(AC)}")
    a("s_lshl_b32 s63, s62, 12"); a("s_add_u32 s63, s63, 32768")
    a.label("K2_P2W")
    a.settle()
    a("v_add_u32 v2, s63, v1")
    for g in range(4): a(f"ds_write_b128 v2, {r4(AC+4*g)} offset:{1024*g}")
    a.wait_lg0(); a("s_barrier")
    a("s_branch K2_END")

    a.label("K2_GEMM")
    a.ev={}; a.vm=[]; a.lg=[]
    srd(a,36,16,2048*1280)
    a("s_sub_u32 s53, s52, 8")
    a("v_lshlrev_b32 v1, 4, v0"); a("v_add_u32 v2, 4096, v1")
    a(f"s_mul_i32 s60, s55, {96*1024}"); a(f"s_mul_i32 s63, s53, {24*1024}"); a("s_add_u32 s60, s60, s63"); a(f"s_add_u32 s60, s60, {L.HF}")
    a(f"s_mul_i32 s61, s53, {24*20480}"); a(f"s_mul_i32 s63, s56, 5120"); a("s_add_u32 s61, s61, s63"); a(f"s_add_u32 s61, s61, {L.W2F}")
    def ld(t, s):
        b=84+24*s
        t(f"buffer_load_dwordx4 {r4(b)}, v1, s[48:51], s60 offen", f"s{s}")
        for c in range(4): t(f"buffer_load_dwordx4 {r4(b+4+4*c)}, v1, s[48:51], s61 offen offset:{1024*c}", f"s{s}")
        t(f"buffer_load_dwordx4 {r4(b+20)}, v2, s[48:51], s61 offen", f"s{s}")
        t("s_add_u32 s60, s60, 1024"); t("s_add_u32 s61, s61, 20480")
    a("s_barrier")
    a("s_lshl_b32 s62, s53, 10"); a("s_add_u32 s62, s62, 24576"); a(f"s_add_u32 s63, s62, {L.KV+2*R}")
    for m in range(34):
        a("s_mov_b32 m0, s62")
        a("s_add_u32 s62, s62, 4096")
        a("buffer_load_dwordx4 v1, s[48:51], s63 offen lds", "kva" if m<10 else "kv")
        a("s_add_u32 s63, s63, 4096")
    for r in range(4,84): a(f"v_mov_b32 v{r}, 0")
    a.wait_vm("kva")
    stamp(a,1)
    a("s_barrier")
    for s in range(3): ld(a,s)
    a.wait_vm("kv")
    a("s_barrier")
    stamp(a,2)
    def mm(t, s):
        b=84+24*s
        t.wait_vm(f"s{s}")
        for c in range(5): t(f"v_mfma_f32_32x32x16_bf16 {r16(4+16*c)}, {r4(b+4+4*c)}, {r4(b)}, {r16(4+16*c)}")
    def gbody(t):
        for s in range(3): mm(t,s); ld(t,s)
    def gtail(t):
        t("s_sub_u32 s73, s73, 1"); t("s_cmp_lg_u32 s73, 0"); t("s_cbranch_scc1 K2_GLOOP")
    a("s_mov_b32 s73, 7")
    if not NOGEMM: a.loop("K2_GLOOP", gbody, gtail)
    for s in range(3): mm(a,s)
    stamp(a,3)
    a("v_and_b32 v3, 31, v0"); a("s_lshl_b32 s63, s55, 5"); a("v_add_u32 v3, s63, v3"); a("v_mul_u32_u24 v3, 1280, v3")
    a("v_lshrrev_b32 v162, 5, v0"); a("v_lshl_add_u32 v3, v162, 3, v3")
    a("s_mul_i32 s62, s56, 320"); a("s_lshl_b32 s63, s53, 4"); a("s_add_u32 s62, s62, s63")
    for c in range(5): a(f"buffer_load_dwordx2 v[{152+2*c}:{153+2*c}], v3, s[36:39], s62 offen offset:{64*c}","x")
    a("s_mov_b32 s64, s62")
    a("s_mul_i32 s63, s53, 20480"); a("v_add_u32 v162, s63, v1")
    a("s_lshl_b32 s63, s53, 10"); a("v_add_u32 v163, s63, v1"); a("v_add_u32 v164, 40960, v163")
    a("s_mul_i32 s65, s56, 5120"); a(f"s_add_u32 s65, s65, {L.WOF}")
    a("s_barrier")
    stamp(a,4)
    for c in range(5):
        for g in range(4): a(f"ds_write_b128 v162, {r4(4+16*c+4*g)} offset:{(c*4+g)*1024}")
    def wodma(m):
        a(f"s_add_u32 s62, s53, {4*m}"); a("s_mul_i32 s63, s62, 52"); a("s_lshr_b32 s63, s63, 8"); a("s_mul_i32 s63, s63, 15360")
        a("s_lshl_b32 s62, s62, 10"); a("s_add_u32 s63, s63, s62"); a("s_add_u32 s63, s63, s65"); a(f"s_add_u32 m0, s62, {WL}")
        a("buffer_load_dwordx4 v1, s[48:51], s63 offen lds","wd")
    for m in range(9): wodma(m)
    a.wait_lg0()
    a("s_lshl_b32 s62, s53, 10"); a("s_add_u32 s62, s62, s65"); a(f"s_add_u32 s62, s62, {16*20480}")
    for i in range(24):
        a(f"buffer_load_dwordx4 {r4(4+4*i)}, v1, s[48:51], s62 offen","wr"); a("s_add_u32 s62, s62, 20480")
    a("s_barrier")
    stamp(a,5)
    wodma(9)
    a.wait_vm("x")
    for c in range(5):
        tb=120+16*(c&1)
        if c==0:
            for cc in range(2):
                for s_ in range(4): a(f"ds_read_b128 {r4(120+16*cc+4*s_)}, v{163+(s_>>1)} offset:{(s_&1)*20480+cc*4096}", f"r{cc}")
        a.wait_lg(f"r{c}")
        y=100+4*c
        a(f"v_lshlrev_b32 v{y}, 16, v{152+2*c}"); a(f"v_and_b32 v{y+1}, 0xffff0000, v{152+2*c}")
        a(f"v_lshlrev_b32 v{y+2}, 16, v{153+2*c}"); a(f"v_and_b32 v{y+3}, 0xffff0000, v{153+2*c}")
        for i in range(4):
            a(f"v_add_f32 v{tb+i}, v{tb+i}, v{tb+4+i}"); a(f"v_add_f32 v{tb+8+i}, v{tb+8+i}, v{tb+12+i}")
        for i in range(4): a(f"v_add_f32 v{tb+i}, v{tb+i}, v{tb+8+i}")
        for i in range(4): a(f"v_add_f32 v{y+i}, v{y+i}, v{tb+i}")
        if c+2<5:
            for s_ in range(4): a(f"ds_read_b128 {r4(tb+4*s_)}, v{163+(s_>>1)} offset:{(s_&1)*20480+(c+2)*4096}", f"r{c+2}")
    srd(a,36,18,2048*1280)
    a(f"v_add_u32 v2, {OL+16384}, v1")
    a.wait_vm0()
    a("s_barrier")
    a("s_barrier")
    a("s_barrier")
    NB=6
    for k in range(NB): a(f"ds_read_b128 {r4(136+4*k)}, v2 offset:{1024*k}", f"b{k}")
    for k in range(24):
        a.wait_lg(f"b{k}")
        a(f"v_mfma_f32_32x32x16_bf16 {r16(120)}, {r4(4+4*k)}, {r4(136+4*(k%NB))}, {'0' if k==0 else r16(120)}")
        if k>=1 and k-1+NB<24: a(f"ds_read_b128 {r4(136+4*((k-1)%NB))}, v2 offset:{1024*(k-1+NB)}", f"b{k-1+NB}")
    a("s_lshl_b32 s63, s53, 13"); a("s_add_u32 s63, s63, 4096"); a("v_add_u32 v2, s63, v1")
    for g in range(4): a(f"ds_write_b128 v2, {r4(120+4*g)} offset:{1024*g}")
    a.wait_lg0(); a("s_barrier")
    for sl in range(12): a(f"ds_read_b128 {r4(4+4*sl)}, v163 offset:{4096*sl}", f"f{sl}")
    for c in range(5):
        y=100+4*c
        srcs=[2*c,2*c+1] if c<4 else [8,9,10,11]
        a.wait_lg(f"f{srcs[-1]}")
        for sl in srcs:
            for i in range(4): a(f"v_add_f32 v{y+i}, v{y+i}, v{4+4*sl+i}")
        a(f"v_cvt_pk_bf16_f32 v{y}, v{y}, v{y+1}"); a(f"v_cvt_pk_bf16_f32 v{y+1}, v{y+2}, v{y+3}")
        a(f"buffer_store_dwordx2 v[{y}:{y+1}], v3, s[36:39], s64 offen offset:{64*c}")
    a.label("K2_END")
    if DIAG:
        a.raw("    s_cmp_ge_u32 s2, 256\n    s_cbranch_scc1 K2_END2")
        stamp(a,7); stamp(a,9,True)
        dump(a,1,"s52",vtmp=165,wmul=4)
        a.label("K2_END2")
    a("s_endpgm")
    return a.text(), dict(vgpr=168, sgpr=102, lds=163840, block=768, grid=256)

def k3():
    a=Asm()
    a.raw(".globl k3_kernel\n.p2align 8\n.type k3_kernel,@function\nk3_kernel:")
    a("s_cmp_ge_u32 s2, 256"); a("s_cbranch_scc1 K3_END")
    stamp(a,0); stamp(a,8,True)
    a("s_load_dwordx2 s[16:17], s[0:1], 72")
    a("s_load_dwordx2 s[34:35], s[0:1], 88")
    a("v_lshrrev_b32 v1, 6, v0"); a("v_readfirstlane_b32 s53, v1"); a("v_and_b32 v0, 63, v0")
    wg_decode(a)
    a("v_lshlrev_b32 v1, 4, v0"); a("v_add_u32 v2, 4096, v1")
    a(f"s_mul_i32 s60, s55, {40*1024}"); a(f"s_mul_i32 s63, s53, {10*1024}"); a("s_add_u32 s60, s60, s63"); a(f"s_add_u32 s60, s60, {L.OF}")
    a(f"s_mul_i32 s61, s53, {10*20480}"); a(f"s_mul_i32 s63, s56, 5120"); a("s_add_u32 s61, s61, s63"); a(f"s_add_u32 s61, s61, {L.WOF}")
    a("s_waitcnt lgkmcnt(0)")
    srd(a,48,34,L.WS_END); srd(a,36,16,2048*1280)
    for s in range(10):
        b=8+24*s
        a(f"buffer_load_dwordx4 {r4(b)}, v1, s[48:51], s60 offen", f"s{s}")
        for c in range(4): a(f"buffer_load_dwordx4 {r4(b+4+4*c)}, v1, s[48:51], s61 offen offset:{1024*c}", f"s{s}")
        a(f"buffer_load_dwordx4 {r4(b+20)}, v2, s[48:51], s61 offen", f"s{s}")
        a("s_add_u32 s60, s60, 1024"); a("s_add_u32 s61, s61, 20480")
    a("s_mul_i32 s62, s2, 20480"); a("s_lshl_b32 s63, s53, 10"); a("s_add_u32 s62, s62, s63"); a(f"s_add_u32 s62, s62, {L.Y0}")
    a("s_mul_i32 s63, s53, 20480"); a("v_add_u32 v4, s63, v1")
    a("s_lshl_b32 s63, s53, 10"); a("v_add_u32 v5, s63, v1"); a("v_add_u32 v6, 40960, v5")
    a("v_and_b32 v3, 31, v0"); a("s_lshl_b32 s63, s55, 5"); a("v_add_u32 v3, s63, v3"); a("v_mul_u32_u24 v3, 1280, v3")
    a("v_lshrrev_b32 v7, 5, v0"); a("v_lshl_add_u32 v3, v7, 3, v3")
    a("s_mul_i32 s64, s56, 320"); a("s_lshl_b32 s63, s53, 4"); a("s_add_u32 s64, s64, s63")
    stamp(a,1)
    for s in range(10):
        b=8+24*s
        a.wait_vm(f"s{s}")
        if s==0: stamp(a,2)
        for c in range(5):
            C="0" if s==0 else f"a[{16*c}:{16*c+15}]"
            a(f"v_mfma_f32_32x32x16_bf16 a[{16*c}:{16*c+15}], {r4(b+4+4*c)}, {r4(b)}, {C}")
        if s==1:
            for c in range(5):
                a(f"buffer_load_dwordx4 {r4(8+4*c)}, v1, s[48:51], s62 offen", "y")
                a("s_add_u32 s62, s62, 4096")
    stamp(a,3)
    for c in range(5):
        for g in range(4): a(f"ds_write_b128 v4, a[{16*c+4*g}:{16*c+4*g+3}] offset:{(c*4+g)*1024}")
    a.wait_lg0(); a("s_barrier")
    for c in range(5):
        for s in range(4): a(f"ds_read_b128 {r4(88+16*c+4*s)}, v{5+(s>>1)} offset:{(s&1)*20480+c*4096}", f"r{c}")
    stamp(a,4)
    a.wait_vm("y")
    for c in range(5):
        a.wait_lg(f"r{c}")
        b=88+16*c
        for i in range(4):
            a(f"v_add_f32 v{b+i}, v{b+i}, v{b+4+i}"); a(f"v_add_f32 v{b+8+i}, v{b+8+i}, v{b+12+i}")
        for i in range(4): a(f"v_add_f32 v{b+i}, v{b+i}, v{b+8+i}")
        for i in range(4): a(f"v_add_f32 v{b+i}, v{b+i}, v{8+4*c+i}")
        a(f"v_cvt_pk_bf16_f32 v{b}, v{b}, v{b+1}"); a(f"v_cvt_pk_bf16_f32 v{b+1}, v{b+2}, v{b+3}")
        a(f"buffer_store_dwordx2 v[{b}:{b+1}], v3, s[36:39], s64 offen offset:{64*c}")
    a.label("K3_END")
    if DIAG:
        a.raw("    s_cmp_ge_u32 s2, 256\n    s_cbranch_scc1 K3_END2")
        stamp(a,7); stamp(a,9,True)
        dump(a,2,"s53",vtmp=250)
        a.label("K3_END2")
    a("s_endpgm")
    return a.text(), dict(vgpr=256+80, accum=256, sgpr=102, lds=81920, block=256, grid=256)
```

```python
import sys
from k1 import k1
from k2 import k2, k3
ref=open('parallel_sum__grouped_kv_mqa__glu_gated_swiglu__prompt.s.ref').read()
head=[l for l in ref.splitlines() if l.startswith(';') and '@launch' not in l]
ks=[('k1_kernel',)+k1(), ('k2_kernel',)+k2()]
out='\n'.join(head)+'\n'
for n,t,i in ks:
    out+=f"; @launch kernel={n} grid=({i['grid']},1,1) block=({i['block']},1,1) lds={i['lds']}\n"
out+='.amdgcn_target "amdgcn-amd-amdhsa--gfx950"\n.text\n'
def wt(txt):
    o=[]
    for l in txt.split('\n'):
        if 'buffer_store' in l and 's[48:51]' in l and 'sc1' not in l and 's78 offen' not in l: l=l.rstrip()+' sc0 sc1'
        o.append(l)
    return '\n'.join(o)
for n,t,i in ks: out+= wt(t) if n=='k1_kernel' else t
out+='.section .rodata,"a"\n'
for n,t,i in ks:
    acc=i.get('accum', (i['vgpr']+3)//4*4)
    out+=f""".p2align 6
.amdhsa_kernel {n}
  .amdhsa_next_free_vgpr {i['vgpr']}
  .amdhsa_next_free_sgpr {i['sgpr']}
  .amdhsa_accum_offset {acc}
  .amdhsa_group_segment_fixed_size 0
  .amdhsa_kernarg_size 96
  .amdhsa_user_sgpr_count 2
  .amdhsa_user_sgpr_kernarg_segment_ptr 1
  .amdhsa_system_sgpr_workgroup_id_x 1
.end_amdhsa_kernel
"""
dst = sys.argv[1] if len(sys.argv)>1 else 'parallel_sum__grouped_kv_mqa__glu_gated_swiglu__prompt.s'
open(dst,'w').write(out)
print('wrote',dst,len(out))
```

```python
from asmlib import Asm
import layout as L
from diag import stamp as stamp0, dump, DIAG
import os as _os
SB=_os.environ.get('SB','0')=='1'
def stamp(a,i,real=False):
    if _os.environ.get('FUSED','1')=='1' and i not in (0,8): return
    if SB and i in (2,3,5,6): return
    if SB and i==4: i=5
    stamp0(a,i,real)
def stampb(a,i):
    if SB: stamp0(a,i)
import math, struct, os
def f2u(x): return struct.unpack('<I',struct.pack('<f',x))[0]
LOG2E=math.log2(math.e)
NT=os.environ.get('NT','')
NOPF=os.environ.get('NOPF','1')=='1'
NODMA=os.environ.get('NODMA','0')=='1'
NOREAD=os.environ.get('NOREAD','0')=='1'
NOCS=os.environ.get('NOCS','0')=='1'
NOMF=os.environ.get('NOMF','0')=='1'

FUSED=os.environ.get('FUSED','1')=='1'
KNAME='parallel_sum__grouped_kv_mqa__glu_gated_swiglu__prompt_kernel' if FUSED else 'k1_kernel'
SLOT=49152
CSP=147456
KV_WK=98304; KV_WV=126976; KV_ST=155648

def srd(a, d, lo, size, add=0):
    if add:
        a(f"s_add_u32 s{d}, s{lo}, {add}"); a(f"s_addc_u32 s{d+1}, s{lo+1}, 0")
    else:
        a(f"s_mov_b32 s{d}, s{lo}"); a(f"s_mov_b32 s{d+1}, s{lo+1}")
    a(f"s_mov_b32 s{d+2}, {size}"); a(f"s_mov_b32 s{d+3}, 0x00020000")

XF=24
WF=40
ACC=64
TMP=128
SL=136
AUG=152
def xf(st,ts): b=XF+st*8+ts*4; return f"v[{b}:{b+3}]"
def wf(st,m): b=WF+st*8+m*4; return f"v[{b}:{b+3}]"
def acc(ts,m): b=ACC+(ts*2+m)*16; return f"v[{b}:{b+15}]"
def ops_of(fn):
    t=Asm(); fn(t)
    L0=[l.strip() for l in t.lines if not l.strip().startswith('s_nop')]
    out=[]; grp=None
    for l in L0:
        if l.startswith('s_and_saveexec'): grp=[l]; continue
        if grp is not None:
            grp.append(l)
            if l.startswith('s_mov_b64 exec'): out.append('\n'.join(grp)); grp=None
            continue
        out.append(l)
    return out

def x_dma_setup(a):
    a("v_lshrrev_b32 v1, 3, v0")
    a("s_lshl_b32 s63, s55, 8"); a("s_lshl_b32 s67, s52, 5"); a("s_add_u32 s63, s63, s67")
    a("v_add_u32 v1, s63, v1")
    a("v_mul_u32_u24 v1, 1280, v1")
    a("v_and_b32 v2, 7, v0"); a("v_lshrrev_b32 v3, 4, v0")
    a("v_xor_b32 v2, v2, v3")
    a("v_xor_b32 v4, 4, v2")
    a("v_lshl_add_u32 v5, v2, 4, v1")
    a("v_lshl_add_u32 v6, v4, 4, v1")
    a("v_mov_b32 v1, v5")
    a(f"v_add_u32 v2, {9216}, v6")
    a(f"v_add_u32 v3, {2*9216}, v5")
    a(f"v_add_u32 v4, {3*9216}, v6")

def x_dma(a, tag, lds_sgpr):
    a(f"s_add_u32 m0, {lds_sgpr}, s64")
    for e in range(4):
        a(f"buffer_load_dwordx4 v{1+e}, s[36:39], s57 offen offset:{1024*e} {NT} lds", tag)

def xread_setup(a, rowbase_sgpr):
    a("v_and_b32 v10, 31, v0")
    a("v_lshrrev_b32 v11, 1, v10"); a("v_and_b32 v11, 7, v11")
    a("v_lshrrev_b32 v12, 5, v0")
    a(f"v_add_u32 v10, {rowbase_sgpr}, v10"); a("v_lshlrev_b32 v10, 7, v10")
    for ks in range(4):
        a(f"v_add_u32 v13, {2*ks}, v12"); a("v_xor_b32 v13, v13, v11")
        a(f"v_lshl_add_u32 v{6+ks}, v13, 4, v10")

def stats_math(a, s0, q0, negm, rinv):
    c=f2u(1.0/640)
    a(f"v_mul_f32 {s0}, 0x{c:08x}, {s0}"); a(f"v_mul_f32 {q0}, 0x{c:08x}, {q0}")
    a(f"v_fma_f32 {q0}, -{s0}, {s0}, {q0}"); a(f"v_max_f32 {q0}, 0, {q0}")
    a(f"v_cvt_pk_bf16_f32 {negm}, {s0}, {s0}"); a(f"v_xor_b32 {negm}, 0x80008000, {negm}")
    a(f"v_cvt_pk_bf16_f32 {q0}, {q0}, {q0}"); a(f"v_lshlrev_b32 {q0}, 16, {q0}")
    a(f"v_add_f32 {q0}, 0x{f2u(1e-5):08x}, {q0}")
    a(f"v_cvt_pk_bf16_f32 {q0}, {q0}, {q0}"); a(f"v_lshlrev_b32 {q0}, 16, {q0}")
    a(f"v_sqrt_f32 {q0}, {q0}")
    a(f"v_cvt_pk_bf16_f32 {q0}, {q0}, {q0}"); a(f"v_lshlrev_b32 {q0}, 16, {q0}")
    a(f"v_rcp_f32 {rinv}, {q0}")

def stat_ops(regs, tb=TMP):
    o=[]
    for n,r in enumerate(regs):
        A=tb+2*(n&1); B=A+1
        o+= [f"v_lshlrev_b32 v{A}, 16, v{r}", f"v_and_b32 v{B}, 0xffff0000, v{r}",
             f"v_add_f32 v17, v17, v{A}", f"v_add_f32 v18, v18, v{B}",
             f"v_fmac_f32 v19, v{A}, v{A}", f"v_fmac_f32 v20, v{B}, v{B}"]
    return o
def cs_ops(pairs, tb=TMP+4):
    o=[]
    for n,(r,ac) in enumerate(pairs):
        A=tb+2*(n&1); B=A+1
        o+= [f"v_lshlrev_b32 v{A}, 16, v{r}", f"v_and_b32 v{B}, 0xffff0000, v{r}",
             f"v_add_f32 v{ac}, v{ac}, v{A}", f"v_add_f32 v{ac}, v{ac}, v{B}"]
    return o

def share_issue(a):
    a("s_lshl_b32 s63, s55, 8"); a("s_lshl_b32 s67, s56, 3"); a("s_add_u32 s63, s63, s67"); a("s_add_u32 s63, s63, s52")
    a("v_mov_b32 v23, s63"); a("s_mul_i32 s63, s63, 1280")
    a(f"v_lshlrev_b32 v{TMP}, 5, v0"); a(f"v_mov_b32 v{TMP+1}, 0x7f000000"); a("v_cmp_gt_u32 vcc, 40, v0"); a(f"v_cndmask_b32 v{TMP}, v{TMP+1}, v{TMP}, vcc")
    for i in range(2):
        a(f"buffer_load_dwordx4 v[{SL+4*i}:{SL+4*i+3}], v{TMP}, s[36:39], s63 offen offset:{16*i} {NT}", "sl")
def share_finish(t):
    t("v_add_f32 v17, v17, v18"); t("v_add_f32 v19, v19, v20")
    for r in (8,4,2,1):
        t(f"v_add_f32_dpp v17, v17, v17 row_ror:{r} row_mask:0xf bank_mask:0xf")
        t(f"v_add_f32_dpp v19, v19, v19 row_ror:{r} row_mask:0xf bank_mask:0xf")
    for bc,rm in ((15,0xa),(31,0xc)):
        t(f"v_add_f32_dpp v17, v17, v17 row_bcast:{bc} row_mask:0x{rm:x} bank_mask:0xf")
        t(f"v_add_f32_dpp v19, v19, v19 row_bcast:{bc} row_mask:0x{rm:x} bank_mask:0xf")
    stats_math(t,"v17","v19",f"v{TMP}",f"v{TMP+1}")
    t("v_lshlrev_b32 v23, 3, v23")
    t("v_cmp_eq_u32 vcc, 63, v0")
    t("s_and_saveexec_b64 s[78:79], vcc")
    t(f"buffer_store_dwordx2 v[{TMP}:{TMP+1}], v23, s[48:51], s76 offen sc0 sc1","ss")
    t("s_mov_b64 exec, s[78:79]")
def get_nonce(a, lab, v0=TMP+6):
    a.raw(f"""    v_mov_b32 v{v0+1}, 0
{lab}:
    buffer_load_dword v{v0}, v{v0+1}, s[72:75], 0 offen sc1
    s_waitcnt vmcnt(0)
    v_readfirstlane_b32 s3, v{v0}
    s_nop 3
    s_cmp_lg_u32 s3, 0
    s_cbranch_scc1 {lab}_OK
    s_sleep 2
    s_branch {lab}
{lab}_OK:""")
SIGN=[0]
def signal_pre(a): signal(a, True)
def signal(a, pre=False):
    if FUSED:
        SIGN[0]+=1
        if pre:
            a.raw(f"    v_readfirstlane_b32 s3, v3\n    v_mov_b32 v{TMP+7}, 0\n    s_nop 3\n    s_cmp_lg_u32 s3, 0\n    s_cbranch_scc1 K1_NC{SIGN[0]}_OK")
        get_nonce(a, f"K1_NC{SIGN[0]}")
        a.raw("    s_mov_b64 exec, 1")
        a.raw(f"    v_mov_b32 v{TMP+6}, s3\n    s_lshl_b32 s63, s2, 2\n    s_add_u32 s63, s63, {L.FLG+2048}\n    s_nop 1")
        a.raw(f"    buffer_store_dword v{TMP+6}, v{TMP+7}, s[48:51], s63 offen sc0 sc1")
        a.raw("    s_mov_b64 exec, -1")
        return
    a.raw("    s_mov_b64 exec, 1")
    a.raw(f"    v_mov_b32 v{TMP+6}, 1\n    v_mov_b32 v{TMP+7}, 0\n    s_nop 1")
    a.raw(f"    buffer_store_byte v{TMP+6}, v{TMP+7}, s[72:75], s2 offen sc0 sc1")
    a.raw("    s_mov_b64 exec, -1")

def aug_w(a, cs, d, t0, t1):
    a(f"v_cvt_pk_bf16_f32 {t0}, {cs}, {cs}"); a(f"v_lshlrev_b32 {t1}, 16, {t0}")
    a(f"v_sub_f32 {cs}, {cs}, {t1}")
    a(f"v_cvt_pk_bf16_f32 v{d}, {cs}, {cs}"); a(f"v_lshlrev_b32 {t1}, 16, v{d}")
    a(f"v_sub_f32 {cs}, {cs}, {t1}")
    a(f"v_and_b32 {t0}, 0xffff, {t0}"); a(f"v_or_b32 v{d}, {t0}, {t1}")
    a(f"v_cvt_pk_bf16_f32 v{d+1}, {cs}, 0")
    a(f"v_mov_b32 v{d+2}, 0"); a(f"v_mov_b32 v{d+3}, 0")
def aug_x(a, negm, d):
    a(f"v_cndmask_b32 v{d}, 0, {negm}, vcc")
    a(f"v_and_b32 v{d+1}, 0xffff, v{d}")
    a(f"v_mov_b32 v{d+2}, 0"); a(f"v_mov_b32 v{d+3}, 0")

OOL={}
Asm.ool=OOL
def k1():
    a=Asm()
    a.raw(f".globl {KNAME}\n.p2align 8\n.type {KNAME},@function\n{KNAME}:")
    a("s_cmp_ge_u32 s2, 256"); a("s_cbranch_scc1 "+("K2_END" if FUSED else "K1_END"))
    stamp(a,0); stamp(a,8,True)
    a("s_load_dwordx16 s[16:31], s[0:1], 0")
    a("s_load_dwordx2 s[32:33], s[0:1], 64")
    a("s_load_dwordx4 s[12:15], s[0:1], 80")
    a("v_lshrrev_b32 v1, 6, v0"); a("v_readfirstlane_b32 s52, v1"); a("v_and_b32 v0, 63, v0")
    a("s_and_b32 s53, s52, 3"); a("s_lshr_b32 s54, s52, 2")
    a("s_and_b32 s63, s2, 7"); a("s_lshr_b32 s67, s2, 3")
    a("s_lshr_b32 s77, s67, 2"); a("s_and_b32 s68, s67, 3")
    a("s_lshr_b32 s69, s63, 1")
    a("s_mul_i32 s56, s69, 6"); a("s_add_u32 s56, s56, s77"); a("s_sub_u32 s56, s56, 2")
    a("s_lshl_b32 s70, s69, 1"); a("s_add_u32 s70, s70, s77"); a("s_add_u32 s70, s70, 24")
    a("s_cmp_lt_u32 s77, 2"); a("s_cselect_b32 s56, s70, s56")
    a("s_and_b32 s55, s63, 1"); a("s_lshl_b32 s55, s55, 2"); a("s_add_u32 s55, s55, s68")
    a(f"s_mov_b32 s76, {L.STG}")
    a("s_mov_b32 s71, 0")
    a("s_mov_b32 s66, 0x3f803f80")
    a("s_lshl_b32 s64, s52, 12")
    a("v_lshlrev_b32 v16, 4, v0")
    for r in range(17,23): a(f"v_mov_b32 v{r}, 0")
    a("s_waitcnt lgkmcnt(0)")
    srd(a,48,14,L.WS_END)
    srd(a,36,16,2048*1280)
    srd(a,72,12,256)
    a("s_mov_b32 s57, 0")
    if FUSED:
        a("s_or_b32 s63, s2, s52"); a("s_cmp_lg_u32 s63, 0"); a("s_cbranch_scc1 K1_NONONCE")
        a.raw("""    s_memrealtime s[4:5]
    s_waitcnt lgkmcnt(0)
    s_or_b32 s4, s4, 1
    s_mov_b64 exec, 1
    v_mov_b32 v1, s4
    v_mov_b32 v2, 0
    s_nop 1
    buffer_store_dword v1, v2, s[72:75], 0 offen sc0 sc1
    s_mov_b64 exec, -1""")
        a.label("K1_NONONCE")
        a("s_lshl_b32 s26, s55, 7"); a("s_lshl_b32 s63, s56, 2"); a("s_add_u32 s26, s26, s63")
        a("s_lshl_b32 s63, s55, 2"); a("s_add_u32 s63, s63, 1024"); a("s_cmp_eq_u32 s56, 29"); a("s_cselect_b32 s26, s63, s26")
        a("s_sub_u32 s67, s56, 30"); a("s_lshl_b32 s67, s67, 5"); a("s_add_u32 s63, s63, s67"); a("s_add_u32 s63, s63, 32")
        a("s_cmp_ge_u32 s56, 30"); a("s_cselect_b32 s26, s63, s26"); a(f"s_add_u32 s26, s26, {L.FLG}")
    a("s_cmp_lt_u32 s56, 29"); a("s_cbranch_scc1 K1_REG")
    if FUSED:
        a("s_cmp_lt_u32 s52, 8"); a("s_cbranch_scc1 K1_NR8")
        a("s_barrier")
        a("s_cmp_ge_u32 s56, 30"); a("s_cbranch_scc1 PB_G")
        a("s_barrier"); a("s_barrier")
        a("s_branch PB_G")
        a.label("K1_NR8")
    else:
        a("s_cmp_ge_u32 s52, 8"); a("s_cbranch_scc1 K1_END")
    a("s_cmp_ge_u32 s56, 30"); a("s_cbranch_scc1 K1_RELAY")
    x_dma_setup(a)
    a("s_branch K1_KV")
    a.label("K1_REG")
    a("s_cmp_ge_u32 s56, 24"); a("s_cbranch_scc1 K1_QSET")
    srd(a,40,28,640*3072); srd(a,44,30,640*3072)
    a("s_mov_b32 s69, 3072"); a("s_lshl_b32 s70, s56, 7")
    a("s_branch K1_SETDONE")
    a.label("K1_QSET")
    srd(a,40,18,640*1280); srd(a,44,18,640*1280-128,add=128)
    a("s_mov_b32 s69, 1280"); a("s_sub_u32 s70, s56, 24"); a("s_lshl_b32 s70, s70, 8")
    a.label("K1_SETDONE")
    a.settle()
    a("s_lshl_b32 s59, s69, 6")
    a("s_cmp_ge_u32 s52, 8"); a("s_cbranch_scc1 K1_LOADER")
    share_issue(a)
    a("s_bitcmp1_b32 s52, 0")
    a("s_cselect_b32 s8, s44, s40"); a("s_cselect_b32 s9, s45, s41"); a("s_cselect_b32 s10, s46, s42"); a("s_mov_b32 s11, 0x00020000")
    a("s_mul_i32 s63, s55, 80"); a("s_lshr_b32 s67, s52, 1"); a("s_mul_i32 s67, s67, 20"); a("s_add_u32 s63, s63, s67"); a("s_mul_i32 s63, s63, s69"); a("s_add_u32 s63, s63, s70")
    a("v_lshrrev_b32 v24, 3, v0"); a("v_mul_lo_u32 v24, v24, s69"); a("v_and_b32 v25, 7, v0"); a("v_lshl_add_u32 v24, v25, 4, v24")
    a("s_lshl_b32 s67, s69, 3")
    a("v_cmp_gt_u32 vcc, 32, v0"); a("v_mov_b32 v26, 0x7f000000"); a("v_cndmask_b32 v26, v26, v24, vcc")
    a(f"buffer_load_dwordx4 v[{SL+8}:{SL+11}], v24, s[8:11], s63 offen","cl"); a("s_add_u32 s63, s63, s67")
    a(f"buffer_load_dwordx4 v[{SL+12}:{SL+15}], v24, s[8:11], s63 offen","cl"); a("s_add_u32 s63, s63, s67")
    a(f"buffer_load_dwordx4 v[{SL+16}:{SL+19}], v26, s[8:11], s63 offen","cl")
    if not NOPF:
        a("s_cmp_ge_u32 s52, 3"); a("s_cbranch_scc1 K1_PFW")
        a("v_and_b32 v4, 31, v0"); a("s_lshl_b32 s63, s55, 8"); a("s_lshl_b32 s67, s77, 5"); a("s_add_u32 s63, s63, s67")
        a("v_add_u32 v4, s63, v4"); a("v_mul_u32_u24 v4, 1280, v4")
        a(f"v_lshrrev_b32 v3, 5, v0"); a(f"v_lshl_add_u32 v4, v3, 7, v4")
        a("s_mov_b32 s8, s36"); a("s_mov_b32 s9, s37"); a("s_mov_b32 s10, s38")
        a("s_lshl_b32 s4, s52, 8"); a("s_add_u32 s28, s4, 768"); a("s_cmp_eq_u32 s52, 2"); a("s_cselect_b32 s28, 0x7f000000, s28")
        a("s_branch K1_PFD")
        a.label("K1_PFW")
        a("s_bitcmp1_b32 s52, 0")
        a("s_cselect_b32 s8, s40, s44"); a("s_cselect_b32 s9, s41, s45"); a("s_mov_b32 s10, s46")
        a("v_lshrrev_b32 v4, 4, v0"); a("v_lshlrev_b32 v4, 6, v4"); a("v_and_b32 v3, 15, v0"); a("v_add_u32 v4, v4, v3")
        a("s_lshl_b32 s63, s68, 4"); a("v_add_u32 v4, s63, v4"); a("v_mul_lo_u32 v4, v4, s69")
        a("s_mul_i32 s63, s59, 6"); a("s_add_u32 s28, s70, s63"); a("s_mov_b32 s4, s70")
        a("s_cmp_lt_u32 s52, 5"); a("s_cbranch_scc1 K1_PFD")
        a("s_lshl_b32 s63, s59, 2"); a("s_add_u32 s4, s70, s63"); a("s_mov_b32 s28, 0x7f000000")
        a("s_cmp_eq_u32 s52, 7"); a("s_cselect_b32 s4, 0x7f000000, s4")
        a("v_cmp_gt_u32 vcc, 32, v0"); a("v_mov_b32 v3, 0x7f000000"); a("v_cndmask_b32 v4, v3, v4, vcc")
        a.label("K1_PFD")
        a("s_mov_b32 s11, 0x00020000")
        a.settle()
        a(f"buffer_load_dword v3, v4, s[8:11], s4 offen {NT}","pfa")
    a("s_lshl_b32 s63, s53, 6"); a("s_lshl_b32 s67, s54, 5"); a("s_add_u32 s63, s63, s67")
    xread_setup(a, "s63")
    a("s_lshl_b32 s67, s54, 13"); a("s_sub_u32 s80, 4096, s67") if False else None
    a("s_lshl_b32 s67, s54, 13"); a("s_sub_u32 s7, 4096, s67")
    a("v_lshrrev_b32 v11, 5, v0")
    a("v_and_b32 v12, 15, v0"); a("v_lshrrev_b32 v13, 2, v12")
    a("v_and_b32 v12, 3, v12")
    a("v_lshl_add_u32 v14, v11, 3, v13")
    a("v_lshlrev_b32 v14, 7, v14")
    a("v_lshrrev_b32 v15, 4, v0"); a("v_and_b32 v15, 1, v15"); a("v_lshlrev_b32 v15, 1, v15")
    a("v_lshrrev_b32 v11, 1, v12"); a("v_add_u32 v15, v15, v11")
    a("s_lshl_b32 s67, s54, 2"); a("v_add_u32 v15, s67, v15")
    a("v_lshrrev_b32 v13, 1, v13"); a("v_lshlrev_b32 v13, 2, v13"); a("v_xor_b32 v15, v15, v13")
    a("v_lshl_add_u32 v14, v15, 4, v14")
    a("v_and_b32 v12, 1, v12"); a("v_lshl_add_u32 v14, v12, 3, v14")
    a("v_add_u32 v10, 32768, v14")
    a("v_lshlrev_b32 v2, 2, v0"); a(f"s_mov_b32 s27, {L.FLG+2048}")
    a("s_cmp_eq_u32 s52, 0"); a("s_cselect_b32 s6, 4, 99"); a("s_cselect_b32 s5, 1, 99")
    a("s_lshl_b32 s58, s54, 1"); a("s_add_u32 s58, s58, s53"); a("s_and_b32 s58, s58, 3")
    def set_read_addrs(a):
        for ks in range(4):
            a(f"v_add_u32 v{11+ks}, s61, v{6+ks}")
            a(f"v_add_u32 v{56+ks}, s7, v{11+ks}")
        a("v_add_u32 v15, s61, v10")
        a(f"s_add_u32 s61, s61, {SLOT}"); a(f"s_cmp_eq_u32 s61, {3*SLOT}"); a("s_cselect_b32 s61, 0, s61")
    def reads(ks):
        st=ks&1
        R=[(f"ds_read_b128 {xf(st,0)}, v{11+ks}", f"f{st}")]
        for m in range(2):
            b=WF+st*8+m*4
            for jj in range(2):
                R.append((f"ds_read_b64_tr_b16 v[{b+2*jj}:{b+2*jj+1}], v15 offset:{m*8192+(16*ks+4*jj)*128}", f"f{st}"))
        R.insert(3,(f"ds_read_b128 {xf(st,1)}, v{56+ks}", f"f{st}"))
        return R
    a("s_mov_b32 s61, 0")
    a("s_barrier")
    stamp(a,2)
    CL=SL+8; CA=SL+20
    def cs_part(t):
        for i in range(4):
            t(f"v_lshlrev_b32 v{CA+2*i}, 16, v{CL+i}"); t(f"v_and_b32 v{CA+2*i+1}, 0xffff0000, v{CL+i}")
        for r in (1,2):
            for i in range(4):
                A=TMP+4+2*(i&1)
                t(f"v_lshlrev_b32 v{A}, 16, v{CL+4*r+i}"); t(f"v_and_b32 v{A+1}, 0xffff0000, v{CL+4*r+i}")
                t(f"v_add_f32 v{CA+2*i}, v{CA+2*i}, v{A}"); t(f"v_add_f32 v{CA+2*i+1}, v{CA+2*i+1}, v{A+1}")
        for i in range(8): t(f"v_add_f32_dpp v{CA+i}, v{CA+i}, v{CA+i} row_ror:8 row_mask:0xf bank_mask:0xf")
        for op in ("v_permlane16_swap_b32","v_permlane32_swap_b32"):
            for i in range(8): t(f"v_mov_b32 v{CL+i}, v{CA+i}")
            for i in range(8): t(f"{op} v{CA+i}, v{CL+i}")
            for i in range(8): t(f"v_add_f32 v{CA+i}, v{CA+i}, v{CL+i}")
        t("s_and_b32 s63, s52, 1"); t("s_lshl_b32 s63, s63, 10"); t("s_lshr_b32 s67, s52, 1"); t("s_lshl_b32 s67, s67, 2"); t("s_add_u32 s63, s63, s67"); t(f"s_add_u32 s63, s63, {CSP}")
        t("v_and_b32 v5, 7, v0"); t("v_lshlrev_b32 v5, 7, v5"); t("v_add_u32 v5, s63, v5")
        for e in range(8): t(f"ds_write_b32 v5, v{CA+e} offset:{16*e}")
    def cs_pub(a):
        a("s_cmp_ge_u32 s52, 2"); a("s_cbranch_scc1 K1_CSPUB")
        a("s_lshl_b32 s63, s52, 10"); a(f"s_add_u32 s63, s63, {CSP}"); a("v_add_u32 v5, s63, v16")
        a.raw(f"    ds_read_b128 v[{CA}:{CA+3}], v5")
        a("s_lshl_b32 s63, s56, 12"); a("s_lshl_b32 s67, s52, 11"); a("s_add_u32 s63, s63, s67"); a("s_lshl_b32 s67, s55, 2"); a("s_add_u32 s63, s63, s67"); a(f"s_add_u32 s63, s63, {L.CSG}")
        a("v_lshlrev_b32 v5, 5, v0")
        a.raw("    s_waitcnt lgkmcnt(0)")
        a(f"v_add_f32 v{CA}, v{CA}, v{CA+1}"); a(f"v_add_f32 v{CA+2}, v{CA+2}, v{CA+3}"); a(f"v_add_f32 v{CA}, v{CA}, v{CA+2}")
        a.raw(f"    buffer_store_dword v{CA}, v5, s[48:51], s63 offen sc0 sc1")
        if FUSED: a.raw("    v_mov_b32 v4, 0\n    s_nop 0\n    buffer_load_dword v3, v4, s[72:75], 0 offen sc1")
        a.label("K1_CSPUB")
        a.settle()
    set_read_addrs(a)
    for t,tag in reads(0): a(t,tag)
    uid=[0]
    def cswrite(t):
        t(f"v_and_b32 v{TMP}, 31, v0")
        t(f"v_lshlrev_b32 v{TMP+2}, 6, v{TMP}"); t("s_lshl_b32 s63, s54, 12"); t(f"s_add_u32 s63, s63, {CSP}"); t(f"v_add_u32 v{TMP+2}, s63, v{TMP+2}")
    def staddr(t):
        t(f"v_and_b32 v{TMP}, 31, v0")
        t("s_lshl_b32 s63, s55, 8"); t("s_lshl_b32 s67, s53, 6"); t("s_add_u32 s63, s63, s67"); t("s_lshl_b32 s67, s54, 5"); t("s_add_u32 s63, s63, s67")
        t(f"v_add_u32 v{TMP}, s63, v{TMP}"); t(f"v_lshlrev_b32 v{TMP}, 3, v{TMP}"); t(f"v_xor_b32 v{TMP+1}, 256, v{TMP}")
    AX=(8,12); AW=(SL+4,SL+20)
    def aug_xpart(t):
        aug_x(t,"v60",AX[0]); aug_x(t,"v62",AX[1])
    def aug_wpart(t):
        for m in range(2):
            b=SL+16*m
            for st_ in (1,2,4):
                for i in range(0,8,2*st_): t(f"v_add_f32 v{b+i}, v{b+i}, v{b+i+st_}")
            aug_w(t, f"v{b}", AW[m], f"v{b+1}", f"v{b+2}")
    def stage(a, first, dma_tag, wait_tag, nxt, mode=0, fill=None, sig=False, post=None):
        for ks in range(4):
            st=ks&1
            if ks==3:
                a.wait_lg0()
                if mode==2 and FUSED: a("s_barrier")
                if nxt:
                    if wait_tag: a.wait_vm(wait_tag)
                    if mode==1:
                        a("s_cmp_lg_u32 s52, 0"); a("s_cbranch_scc1 K1_POLLOK")
                        a.label("K1_POLL")
                        if FUSED:
                            a.raw("""    s_waitcnt vmcnt(0)
    v_xor_b32 v160, s3, v160
    v_xor_b32 v161, s3, v161
    v_xor_b32 v162, s3, v162
    v_xor_b32 v163, s3, v163
    v_or3_b32 v160, v160, v161, v162
    v_or_b32 v160, v160, v163
    v_cmp_eq_u32 vcc, 0, v160
    s_nop 3
    s_cmp_eq_u64 vcc, exec
    s_cbranch_scc1 K1_POLLOK""")
                            a.raw(f"    s_sleep 2\n    buffer_load_dwordx4 v[160:163], v16, s[48:51], s27 offen sc1\n    s_branch K1_POLL")
                        else:
                            a.raw("    s_waitcnt vmcnt(0)\n    v_cmp_eq_u32 vcc, 0x01010101, v1\n    s_nop 3\n    s_cmp_eq_u64 vcc, exec\n    s_cbranch_scc1 K1_POLLOK")
                            a.raw(f"    s_sleep 2\n    buffer_load_dword v1, v2, s[72:75], 0 offen sc1\n    s_branch K1_POLL")
                        a.label("K1_POLLOK")
                    a("s_barrier")
                    if post: post(a)
                    if sig:
                        uid[0]+=1
                        a("s_cmp_eq_u32 s62, s6")
                        a.cond_block(f"s_cbranch_scc0 K1_SG{uid[0]}", f"K1_SG{uid[0]}", signal_pre)
                        a("s_cmp_eq_u32 s62, s5")
                        def pl(t): t.raw("    buffer_load_dwordx4 v[160:163], v16, s[48:51], s27 offen sc1" if FUSED else "    buffer_load_dword v1, v2, s[72:75], 0 offen sc1")
                        a.cond_block(f"s_cbranch_scc0 K1_PL{uid[0]}", f"K1_PL{uid[0]}", pl)
                    set_read_addrs(a)
                if mode==1:
                    for o in ops_of(staddr): a(o)
                    a(f"buffer_load_dwordx2 v[60:61], v{TMP}, s[48:51], s76 offen sc1","st")
                    a(f"buffer_load_dwordx2 v[62:63], v{TMP+1}, s[48:51], s76 offen sc1","st")
                    a(f"v_and_b32 v{TMP}, 31, v0"); a(f"v_lshlrev_b32 v{TMP}, 5, v{TMP}")
                    a("s_lshl_b32 s63, s56, 12"); a("s_lshl_b32 s67, s54, 10"); a("s_add_u32 s63, s63, s67"); a(f"s_add_u32 s63, s63, {L.CSG}")
                    for m in range(2):
                        for i in range(2): a(f"buffer_load_dwordx4 v[{SL+16*m+4*i}:{SL+16*m+4*i+3}], v{TMP}, s[48:51], s63 offen offset:{2048*m+16*i} sc1","st")
                R = reads(0) if nxt else []
            else:
                a.wait_lg(f"f{st}")
                R = reads(ks+1)
            F=[]
            if mode==2:
                if ks==0:
                    a.wait_vm0(); AUGW=ops_of(aug_wpart)
                if ks<3:
                    n=(len(AUGW)+2-ks)//(3-ks); F=AUGW[:n]; AUGW=AUGW[n:]
                if ks==3: F=ops_of(aug_xpart)
            elif fill is not None:
                n=(len(fill)+3-ks)//(4-ks) if ks<3 else len(fill)
                F=fill[:n]; del fill[:n]
            nr=(len(R)+2)//3; nf=(len(F)+3)//4
            k=0
            for ts,m in ((0,0),(0,1),(1,0),(1,1)):
                c = "0" if (first and ks==0) else acc(ts,m)
                if not NOMF: a(f"v_mfma_f32_32x32x16_bf16 {acc(ts,m)}, {wf(st,m)}, {xf(st,ts)}, {c}")
                for t,tag in ([] if NOREAD else R[nr*k:nr*k+nr]): a(t,tag)
                if mode==2 and ks==3 and k==0: a.wait_vm0(); a("v_cmp_gt_u32 vcc, 32, v0")
                for d in F[nf*k:nf*k+nf]:
                    for dd in d.split('\n'): a(dd, "ss" if dd.startswith("buffer_store") else None)
                k+=1
    a.wait_vm("cl")
    class Fill:
        def __init__(s,parts): s.p=parts; s.i=0
        def __len__(s): return len(s.p[s.i])*(4-s.i) if s.i<3 else len(s.p[s.i])
        def __getitem__(s,sl): return list(s.p[s.i])
        def __delitem__(s,sl): s.i+=1
    FA=ops_of(cs_part); FB=stat_ops(range(SL,SL+8))+ops_of(share_finish)
    n=(len(FA)+6)//7
    stage(a, True, None, None, True, fill=Fill([FA[0:n],FA[n:2*n],FA[2*n:3*n],FA[3*n:4*n]]))
    stamp(a,1)
    stage(a, False, None, None, True, fill=Fill([FA[4*n:5*n],FA[5*n:6*n],FA[6*n:],[]]), post=cs_pub)
    stage(a, False, None, None, True, fill=FB)
    a("s_mov_b32 s62, 4")
    a.vm=["ss"]
    def body(t):
        stage(t, False, None, "ss", True, 0, sig=True)
        t.vm=["ss"]
    def tail(t):
        t("s_sub_u32 s62, s62, 1"); t("s_cmp_lg_u32 s62, 0"); t("s_cbranch_scc1 K1_LOOP")
    a.loop("K1_LOOP", body, tail)
    stamp(a,4)
    stage(a, False, None, None, True, 1)
    stamp(a,3); stampb(a,6)
    stage(a, False, None, None, True)
    stamp(a,6)
    stage(a, False, None, None, False, 2)
    stamp(a,5)
    for ts in range(2):
        for m in range(2):
            a(f"v_mfma_f32_32x32x16_bf16 {acc(ts,m)}, v[{AW[m]}:{AW[m]+3}], v[{AX[ts]}:{AX[ts]+3}], {acc(ts,m)}")
    a("s_lshl_b32 s4, s55, 3"); a("s_lshl_b32 s63, s53, 1"); a("s_add_u32 s4, s4, s63"); a("s_add_u32 s4, s4, s54")
    a("s_xor_b32 s5, s4, 1")
    a("s_cmp_ge_u32 s56, 24"); a("s_cbranch_scc1 K1_QEPI")
    hz=a.hz_get()
    a("s_lshl_b32 s63, s56, 1"); a("s_add_u32 s63, s63, s54"); a("s_lshl_b32 s63, s63, 11")
    a(f"s_add_u32 s63, s63, {L.HF}")
    for ts in range(2):
        a(f"s_mul_i32 s{8+ts}, s{4+ts}, {96*1024}"); a(f"s_add_u32 s{8+ts}, s{8+ts}, s63")
    for ts in range(2):
        rv = "v61" if ts==0 else "v63"
        a(f"v_mul_f32 v24, 0x{f2u(-LOG2E):08x}, {rv}"); a(f"v_mul_f32 v25, {rv}, {rv}")
        G=ACC+ts*32; U=G+16
        for half in range(2):
            idx=range(8*half,8*half+8)
            for i in idx: a(f"v_mul_f32 v{28+i%8}, v24, v{G+i}")
            for i in idx: a(f"v_exp_f32 v{28+i%8}, v{28+i%8}")
            for i in idx: a(f"v_mul_f32 v{G+i}, v{G+i}, v{U+i}")
            for i in idx: a(f"v_add_f32 v{28+i%8}, 1.0, v{28+i%8}")
            for i in idx: a(f"v_rcp_f32 v{28+i%8}, v{28+i%8}")
            for i in idx: a(f"v_mul_f32 v{G+i}, v25, v{G+i}")
            for i in idx: a(f"v_mul_f32 v{G+i}, v{G+i}, v{28+i%8}")
            d=36+4*((2*ts+half)&3)
            for i in range(4): a(f"v_cvt_pk_bf16_f32 v{d+i}, v{G+8*half+2*i}, v{G+8*half+2*i+1}")
            a(f"buffer_store_dwordx4 v[{d}:{d+3}], v16, s[48:51], s{8+ts} offen offset:{1024*half}")
    a("s_branch K1_END")
    a.label("K1_QEPI")
    a.hz_set(hz)
    a("s_sub_u32 s63, s56, 24"); a("s_lshl_b32 s63, s63, 2"); a("s_add_u32 s63, s63, s54"); a("s_lshl_b32 s63, s63, 11")
    for ts in range(2):
        a(f"s_mul_i32 s{8+ts}, s{4+ts}, {40*1024}"); a(f"s_add_u32 s{8+ts}, s{8+ts}, s63")
        a(f"s_add_u32 s{10+ts}, s{8+ts}, 4096")
    qs=(20**-0.5)*LOG2E
    n=0
    for ts in range(2):
        rv = "v61" if ts==0 else "v63"
        a(f"v_mul_f32 v24, 0x{f2u(qs):08x}, {rv}")
        for m in range(2):
            B=ACC+(ts*2+m)*16
            for half in range(2):
                for i in range(8): a(f"v_mul_f32 v{B+8*half+i}, v24, v{B+8*half+i}")
                d=28+4*(n&7); n+=1
                for i in range(4): a(f"v_cvt_pk_bf16_f32 v{d+i}, v{B+8*half+2*i}, v{B+8*half+2*i+1}")
                a(f"buffer_store_dwordx4 v[{d}:{d+3}], v16, s[48:51], s{8+2*m+ts} offen offset:{1024*half}")
    a("s_branch K1_END")

    live=set(l.split()[-1] for l in a.lines if 's_cbranch_scc1 K1_CS' in l)
    for lab,lines in OOL.items():
        if lab in live:
            a.label(lab); a.lines+=lines
    a.label("K1_LOADER")
    a.ev={}; a.vm=[]; a.lg=[]
    if os.environ.get('LPRIO','0')!='0': a("s_setprio "+os.environ['LPRIO'])
    a("s_sub_u32 s53, s52, 8")
    a("s_and_b32 s54, s53, 1"); a("s_lshr_b32 s4, s53, 1")
    a("v_lshrrev_b32 v1, 3, v0"); a("v_mul_u32_u24 v1, 1280, v1")
    a("v_and_b32 v2, 7, v0"); a("v_lshrrev_b32 v3, 4, v0"); a("v_xor_b32 v2, v2, v3"); a("v_xor_b32 v4, 4, v2")
    a("v_lshl_add_u32 v5, v2, 4, v1"); a("v_lshl_add_u32 v6, v4, 4, v1")
    a("v_mov_b32 v1, v5"); a(f"v_add_u32 v2, {9216}, v6"); a(f"v_add_u32 v3, {2*9216}, v5"); a(f"v_add_u32 v4, {3*9216}, v6")
    a("s_lshl_b32 s57, s55, 8"); a("s_lshl_b32 s63, s53, 6"); a("s_add_u32 s57, s57, s63"); a("s_mul_i32 s57, s57, 1280")
    a("v_lshrrev_b32 v5, 3, v0"); a("v_mul_lo_u32 v5, v5, s69")
    a("v_lshrrev_b32 v10, 4, v0"); a("v_and_b32 v10, 1, v10"); a("v_lshlrev_b32 v10, 2, v10")
    a("v_and_b32 v11, 7, v0"); a("v_xor_b32 v10, v10, v11"); a("v_lshl_add_u32 v5, v10, 4, v5")
    a("s_lshl_b32 s63, s69, 3"); a("s_sub_u32 s63, s63, 1024")
    a("v_add_u32 v6, s63, v5"); a("v_add_u32 v7, s63, v6"); a("v_add_u32 v8, s63, v7")
    a("s_cmp_eq_u32 s54, 0")
    a("s_cselect_b32 s8, s40, s44"); a("s_cselect_b32 s9, s41, s45"); a("s_cselect_b32 s10, s42, s46"); a("s_mov_b32 s11, 0x00020000")
    a("s_lshl_b32 s63, s69, 5"); a("s_mul_i32 s63, s63, s4"); a("s_add_u32 s58, s70, s63")
    a("s_lshl_b32 s64, s53, 13")
    a("s_lshl_b32 s66, s54, 13"); a("s_lshl_b32 s63, s4, 12"); a("s_add_u32 s66, s66, s63"); a("s_add_u32 s66, s66, 32768")
    a("v_and_b32 v9, 7, v0"); a("s_lshl_b32 s63, s68, 4"); a("s_lshl_b32 s67, s4, 3"); a("s_add_u32 s63, s63, s67"); a("v_add_u32 v9, s63, v9"); a("v_mul_lo_u32 v9, v9, s69")
    a("v_cmp_gt_u32 vcc, 8, v0")
    a("s_lshl_b32 s5, s59, 1"); a("s_add_u32 s5, s5, s70"); a("s_mov_b32 s6, s59")
    a("v_mov_b32 v11, 0x7fffff00"); a("v_cndmask_b32 v9, v11, v9, vcc")
    for r in range(24,32): a(f"v_mov_b32 v{r}, 0")
    a("v_lshrrev_b32 v15, 2, v10"); a("v_lshlrev_b32 v15, 12, v15"); a("v_and_b32 v14, 3, v10"); a("v_lshl_add_u32 v15, v14, 9, v15")
    a("v_lshrrev_b32 v14, 3, v0"); a("v_lshl_add_u32 v15, v14, 2, v15")
    a("s_lshl_b32 s63, s54, 11"); a("s_lshl_b32 s67, s4, 5"); a("s_add_u32 s63, s63, s67"); a(f"s_add_u32 s63, s63, {CSP}"); a("v_add_u32 v15, s63, v15")
    a("s_mov_b32 s60, 0"); a("s_mov_b32 s61, 0")
    def pf(a, tag):
        if True: return
        a(f"buffer_load_dword v12, v9, s[8:11], s5 offen {NT}", tag); a("s_add_u32 s5, s5, s6")
    def ldma(a, tag):
        a("s_add_u32 m0, s60, s66")
        a("s_nop 0")
        for e in range(4): a(f"buffer_load_dwordx4 v{5+e}, s[8:11], s58 offen offset:{1024*e} {NT} lds", tag)
        for gq in range(2):
            a(f"s_add_u32 s63, s64, {4096*gq}"); a("s_add_u32 m0, s60, s63")
            a(f"s_add_u32 s67, s57, {40960*gq}")
            for e in range(4): a(f"buffer_load_dwordx4 v{1+e}, s[36:39], s67 offen offset:{1024*e} {NT} lds", tag)
        a("s_add_u32 s57, s57, 128"); a("s_add_u32 s58, s58, s59")
        a(f"s_add_u32 s60, s60, {SLOT}"); a(f"s_cmp_eq_u32 s60, {3*SLOT}"); a("s_cselect_b32 s60, 0, s60")
        pf(a, tag)
    def csread(a):
        a("s_add_u32 s63, s61, s66"); a("v_add_u32 v13, s63, v16")
        for e in range(4): a(f"ds_read_b128 v[{32+4*e}:{35+4*e}], v13 offset:{1024*e}")
        a(f"s_add_u32 s61, s61, {SLOT}"); a(f"s_cmp_eq_u32 s61, {3*SLOT}"); a("s_cselect_b32 s61, 0, s61")
    def csadd(a):
        a.wait_lg0()
        if NOCS: return
        for e in range(4):
            for i in range(4):
                r=32+4*e+i; A=48+2*(i&1)
                a(f"v_lshlrev_b32 v{A}, 16, v{r}"); a(f"v_and_b32 v{A+1}, 0xffff0000, v{r}")
                a(f"v_add_f32 v{24+2*i}, v{24+2*i}, v{A}"); a(f"v_add_f32 v{25+2*i}, v{25+2*i}, v{A+1}")
    def ldma2(a, tag):
        n=len(a.vm); ldma(a, tag)
        for i in range(4): a.vm[n+i]=tag+"w"
    ldma2(a,"d0"); ldma2(a,"A")
    a.wait_vm("d0"); a("s_barrier")
    ldma2(a,"B")
    a("s_mov_b32 s62, 7")
    ren={"B":"A","C":"B","Bw":"Aw","Cw":"Bw","Aw":"Aw"}
    def lbody(t):
        t.wait_vm("A"); t("s_barrier")
        ldma2(t,"C")
        t.vm=[ren[x] for x in t.vm]
    def ltail(t):
        t("s_sub_u32 s62, s62, 1"); t("s_cmp_lg_u32 s62, 0"); t("s_cbranch_scc1 K1_LLOOP")
    a.loop("K1_LLOOP", lbody, ltail)
    if FUSED:
        a("v_and_b32 v3, 7, v0"); a("v_lshlrev_b32 v3, 2, v3"); a(f"s_mov_b32 s27, {L.FLG+1024}"); a("v_mov_b32 v5, 0")
        a("buffer_load_dword v6, v5, s[72:75], 0 offen sc1"); a("buffer_load_dword v4, v3, s[48:51], s27 offen sc1")
    a.wait_vm("A"); a("s_barrier")
    if FUSED:
        a.wait_vm0()
        a("v_readfirstlane_b32 s3, v6")
    a.wait_vm("B")
    a("s_barrier")
    if FUSED:
        a("s_cmp_lg_u32 s3, 0"); a("s_cbranch_scc1 PB_G2"); a("s_branch PB_G")
    else: a("s_endpgm")

    def share_now(a, lab):
        share_issue(a)
        a.wait_vm0()
        for i in range(8):
            a(f"v_dot2_f32_bf16 v{17+(i&1)}, v{SL+i}, s66, v{17+(i&1)}")
            a(f"v_dot2_f32_bf16 v{19+(i&1)}, v{SL+i}, v{SL+i}, v{19+(i&1)}")
        share_finish(a)
        a.wait_vm0(); a("s_barrier")
        a("s_cmp_eq_u32 s52, 0")
        a.cond_block(f"s_cbranch_scc0 {lab}", lab, signal)
        for r in range(17,21): a(f"v_mov_b32 v{r}, 0")

    a.label("K1_KV")
    a.ev={}; a.vm=[]; a.lg=[]
    srd(a,40,20,25600); srd(a,44,22,25600)
    a("s_lshl_b32 s63, s52, 10")
    for m in range(4):
        if m==3:
            a("s_cmp_ge_u32 s52, 4"); a("s_cbranch_scc1 K1_KV_W3")
        a(f"s_add_u32 s67, s63, {8192*m}")
        a(f"s_add_u32 m0, s67, {KV_WK}")
        a("s_nop 0")
        a(f"buffer_load_dwordx4 v16, s[40:43], s67 offen {NT} lds", "w")
        a(f"s_add_u32 m0, s67, {KV_WV}")
        a("s_nop 0")
        a(f"buffer_load_dwordx4 v16, s[44:47], s67 offen {NT} lds", "w")
    a.label("K1_KV_W3")
    def dmak(a, tag):
        x_dma(a, tag, "s60")
        a("s_add_u32 s57, s57, 128")
        a("s_add_u32 s60, s60, 32768"); a(f"s_cmp_eq_u32 s60, {3*32768}"); a("s_cselect_b32 s60, 0, s60")
    a("s_mov_b32 s60, 0")
    for s in range(3): dmak(a, f"d{s}")
    share_now(a,"K1_KVSG")
    a("s_lshl_b32 s63, s52, 5")
    xread_setup(a, "s63")
    a("v_lshrrev_b32 v11, 5, v0"); a("v_and_b32 v12, 15, v0"); a("v_lshrrev_b32 v13, 2, v12"); a("v_and_b32 v12, 3, v12")
    a("v_lshl_add_u32 v14, v11, 3, v13"); a("v_mul_u32_u24 v14, 40, v14")
    a("v_lshrrev_b32 v15, 4, v0"); a("v_and_b32 v15, 1, v15"); a("v_lshl_add_u32 v14, v15, 5, v14")
    a("v_lshl_add_u32 v14, v12, 3, v14"); a(f"v_add_u32 v15, {KV_WK}, v14")
    for r in range(64,96): a(f"v_mov_b32 v{r}, 0")
    a("s_mov_b32 s61, 0")
    def set_ra(a):
        for ks in range(4): a(f"v_add_u32 v{11+ks}, s61, v{6+ks}")
        a("s_add_u32 s61, s61, 32768"); a(f"s_cmp_eq_u32 s61, {3*32768}"); a("s_cselect_b32 s61, 0, s61")
    def kreads(ks):
        st=ks&1; R=[(f"ds_read_b128 {xf(st,0)}, v{11+ks}", f"f{st}")]
        for m in range(2):
            b=WF+st*8+m*4
            for jj in range(2):
                R.append((f"ds_read_b64_tr_b16 v[{b+2*jj}:{b+2*jj+1}], v15 offset:{m*(KV_WV-KV_WK)+(16*ks+4*jj)*40}", f"f{st}"))
        return R
    set_ra(a)
    for t,tag in kreads(0): a(t,tag)
    def kstage(a, dma_tag, wait_tag, nxt):
        for ks in range(4):
            st=ks&1
            if ks==3:
                a.wait_lg0()
                if nxt:
                    a.wait_vm(wait_tag)
                    if dma_tag: dmak(a, dma_tag)
                    set_ra(a)
                    a("v_add_u32 v15, 2560, v15")
                R = kreads(0) if nxt else []
            else:
                a.wait_lg(f"f{st}"); R=kreads(ks+1)
            xb=XF+st*8
            a(f"v_mfma_f32_32x32x16_bf16 v[64:79], {wf(st,0)}, {xf(st,0)}, v[64:79]")
            for t,tag in R[:3]: a(t,tag)
            a(f"v_mfma_f32_32x32x16_bf16 v[80:95], {xf(st,0)}, {wf(st,1)}, v[80:95]")
            for t,tag in R[3:]: a(t,tag)
            if not FUSED:
                for o in stat_ops(range(xb,xb+4)): a(o)
            uid[0]+=1
            lab=f"K1_KCS{uid[0]}"
            def cs(a):
                for o in cs_ops([(WF+st*8+m*4+i,21+m) for i in range(4) for m in range(2)]): a(o)
            a(f"s_cmp_eq_u32 s5, {ks}")
            a.cond_block(f"s_cbranch_scc0 {lab}", lab, cs)
        a("s_xor_b32 s5, s5, s6")
    a("s_xor_b32 s6, s53, 0xff"); a("s_cmp_eq_u32 s54, 0"); a("s_cselect_b32 s5, s53, 0xff")
    a.vm=["A"]*4+["B"]*4
    def kbody(t):
        kstage(t,"C","A",True); t.vm=[{"B":"A","C":"B"}[x] for x in t.vm]
    def ktail(t):
        t("s_sub_u32 s62, s62, 1"); t("s_cmp_lg_u32 s62, 0"); t("s_cbranch_scc1 K1_KVLOOP")
    a("s_mov_b32 s62, 7")
    a.loop("K1_KVLOOP", kbody, ktail)
    kstage(a,None,"A",True); kstage(a,None,"B",True); kstage(a,None,None,False)
    if FUSED:
        a("v_and_b32 v24, 31, v0")
        a("v_lshlrev_b32 v26, 6, v24"); a("v_lshrrev_b32 v27, 5, v0"); a("s_lshl_b32 s67, s52, 1"); a("v_add_u32 v27, s67, v27")
        a("v_lshl_add_u32 v27, v27, 2, v26")
        a(f"s_mov_b32 s27, {L.FLG+2048}")
        a("s_cmp_lg_u32 s52, 0"); a("s_cbranch_scc1 K1_KVPOK")
        a.raw("""K1_KVP:
    buffer_load_dwordx4 v[160:163], v16, s[48:51], s27 offen sc1
    s_waitcnt vmcnt(0)
    v_xor_b32 v160, s3, v160
    v_xor_b32 v161, s3, v161
    v_xor_b32 v162, s3, v162
    v_xor_b32 v163, s3, v163
    v_or3_b32 v160, v160, v161, v162
    v_or_b32 v160, v160, v163
    v_cmp_eq_u32 vcc, 0, v160
    s_nop 3
    s_cmp_eq_u64 vcc, exec
    s_cbranch_scc1 K1_KVPOK
    s_sleep 2
    s_branch K1_KVP""")
        a.label("K1_KVPOK")
        a.settle()
        a.wait_lg0(); a("s_barrier")
        a("s_lshl_b32 s63, s55, 8"); a("s_lshl_b32 s67, s52, 5"); a("s_add_u32 s63, s63, s67"); a("v_add_u32 v25, s63, v24"); a("v_lshlrev_b32 v25, 3, v25")
        a("buffer_load_dwordx2 v[60:61], v25, s[48:51], s76 offen sc1","kst")
        a("s_lshl_b32 s63, s52, 7"); a(f"s_add_u32 s63, s63, {KV_ST}"); a("v_lshlrev_b32 v25, 2, v24"); a("v_add_u32 v25, s63, v25")
    else:
        a("v_add_f32 v17, v17, v18"); a("v_add_f32 v19, v19, v20")
        a("v_mov_b32 v24, v17"); a("v_mov_b32 v25, v19")
        a("v_permlane32_swap_b32 v17, v24"); a("v_permlane32_swap_b32 v19, v25")
        a("v_add_f32 v17, v17, v24"); a("v_add_f32 v19, v19, v25")
        stats_math(a,"v17","v19","v60","v61")
        a("v_and_b32 v24, 31, v0"); a("s_lshl_b32 s63, s52, 7"); a(f"s_add_u32 s63, s63, {KV_ST}"); a("v_lshlrev_b32 v25, 2, v24"); a("v_add_u32 v25, s63, v25")
        a(f"ds_write_b32 v25, v61")
        a("v_lshlrev_b32 v26, 6, v24"); a("v_lshrrev_b32 v27, 5, v0"); a("s_lshl_b32 s67, s52, 1"); a("v_add_u32 v27, s67, v27")
        a("v_lshl_add_u32 v27, v27, 2, v26")
        a.wait_lg0(); a("s_barrier")
    a("ds_write_b32 v27, v21"); a("ds_write_b32 v27, v22 offset:2048")
    a.wait_lg0(); a("s_barrier")
    for m in range(2):
        for i in range(4): a(f"ds_read_b128 v[{112+16*m+4*i}:{115+16*m+4*i}], v26 offset:{2048*m+16*i}")
    a.wait_lg0()
    for m in range(2):
        b=112+16*m
        for st_ in (1,2,4,8):
            for i in range(0,16,2*st_): a(f"v_add_f32 v{b+i}, v{b+i}, v{b+i+st_}")
        a(f"v_mov_b32 v{21+m}, v{b}")
    if FUSED:
        a.wait_vm("kst"); a("ds_write_b32 v25, v61")
    a("v_cmp_gt_u32 vcc, 32, v0")
    aug_x(a,"v60",44)
    aug_w(a,"v21",48,"v26","v27"); aug_w(a,"v22",52,"v26","v27")
    a("v_mfma_f32_32x32x16_bf16 v[64:79], v[48:51], v[44:47], v[64:79]")
    a("v_mfma_f32_32x32x16_bf16 v[80:95], v[44:47], v[52:55], v[80:95]")
    a("v_lshrrev_b32 v26, 5, v0"); a("v_lshlrev_b32 v26, 4, v26"); a("v_add_u32 v26, s63, v26")
    a.wait_lg0()
    for g in range(4): a(f"ds_read_b128 v[{28+4*g}:{31+4*g}], v26 offset:{32*g}")
    a("s_lshl_b32 s4, s55, 3"); a("s_add_u32 s4, s4, s52"); a(f"s_mul_i32 s5, s4, {L.REC}"); a(f"s_add_u32 s5, s5, {L.KV}")
    for i in range(12): a(f"v_mul_f32 v{64+i}, v61, v{64+i}")
    for i in range(6): a(f"v_cvt_pk_bf16_f32 v{96+i}, v{64+2*i}, v{65+2*i}")
    a("buffer_store_dwordx4 v[96:99], v16, s[48:51], s5 offen")
    a("v_cndmask_b32 v100, 0, v100, vcc"); a("v_cndmask_b32 v101, 0, v101, vcc")
    a("v_mov_b32 v102, 0")
    for i in range(6): a(f"v_dot2_f32_bf16 v102, v{96+i}, v{96+i}, v102")
    a("v_lshlrev_b32 v27, 3, v0")
    a("s_and_saveexec_b64 s[78:79], vcc")
    a("buffer_store_dwordx2 v[100:101], v27, s[48:51], s5 offen offset:1024")
    a("s_mov_b64 exec, s[78:79]")
    a("v_mov_b32 v103, v102"); a("v_permlane32_swap_b32 v102, v103"); a("v_add_f32 v102, v102, v103")
    a.wait_lg0()
    for x in (1,2,4,8,16):
        a(f"ds_swizzle_b32 v103, v102 offset:0x{(x<<10)|0x1f:04x}"); a.wait_lg0(); a("v_max_f32 v102, v102, v103")
    a("s_lshl_b32 s6, s4, 2"); a(f"s_add_u32 s6, s6, {L.KN}")
    a("v_mov_b32 v104, 0")
    a("v_cmp_eq_u32 vcc, 0, v0")
    a("s_and_saveexec_b64 s[78:79], vcc")
    a("buffer_store_dword v102, v104, s[48:51], s6 offen")
    a("s_mov_b64 exec, s[78:79]")
    for i in range(16): a(f"v_mul_f32 v{80+i}, v{28+i}, v{80+i}")
    for i in range(8): a(f"v_cvt_pk_bf16_f32 v{104+i}, v{80+2*i}, v{81+2*i}")
    a("v_lshrrev_b32 v26, 5, v0"); a("v_mul_u32_u24 v26, 336, v26"); a("v_lshl_add_u32 v26, v24, 4, v26")
    a("v_cmp_gt_u32 vcc, 32, v0"); a("v_mov_b32 v27, 0x3f803f80"); a("v_cndmask_b32 v27, 0, v27, vcc")
    a("v_cmp_gt_u32 vcc, 20, v24")
    for i in range(8): a(f"v_cndmask_b32 v{104+i}, v27, v{104+i}, vcc")
    a("v_cmp_gt_u32 vcc, 21, v24")
    a("s_and_saveexec_b64 s[78:79], vcc")
    a("buffer_store_dwordx4 v[104:107], v26, s[48:51], s5 offen offset:1280")
    a("buffer_store_dwordx4 v[108:111], v26, s[48:51], s5 offen offset:1952")
    a("s_mov_b64 exec, s[78:79]")
    a("s_branch K1_ENDL")

    a.label("K1_RELAY")
    a.ev={}; a.vm=[]; a.lg=[]
    a("s_sub_u32 s70, s56, 30"); a("s_lshl_b32 s70, s70, 3"); a("s_add_u32 s70, s70, s55")
    a("s_lshl_b32 s70, s70, 1"); a("s_add_u32 s70, s70, s54")
    a("s_mul_i32 s69, s53, 320")
    for i in range(5):
        a(f"v_add_u32 v10, {64*i}, v0"); a("v_mul_u32_u24 v11, 3277, v10"); a("v_lshrrev_b32 v11, 16, v11")
        a("v_mul_u32_u24 v12, 20, v11"); a("v_sub_u32 v12, v10, v12")
        a("v_lshlrev_b32 v12, 4, v12"); a("v_add_u32 v12, s69, v12")
        a("v_mul_u32_u24 v13, 1280, v11"); a(f"v_add_u32 v{60+i}, v13, v12")
        a("v_lshrrev_b32 v13, 3, v11"); a("v_mul_u32_u24 v13, 80, v13")
        a("v_bfe_u32 v14, v11, 2, 1"); a("v_mul_u32_u24 v14, 20, v14"); a("v_and_b32 v15, 3, v11")
        a("v_add3_u32 v13, v13, v14, v15"); a("v_mul_u32_u24 v13, 1280, v13"); a(f"v_add_u32 v{65+i}, v13, v12")
    a("s_mul_i32 s65, s52, 20480")
    a("v_lshrrev_b32 v11, 5, v0"); a("v_and_b32 v12, 15, v0"); a("v_lshrrev_b32 v13, 2, v12"); a("v_and_b32 v12, 3, v12")
    a("v_lshl_add_u32 v14, v11, 2, v13"); a("v_mul_u32_u24 v14, 320, v14")
    a("v_lshrrev_b32 v15, 4, v0"); a("v_and_b32 v15, 1, v15"); a("v_lshl_add_u32 v14, v15, 5, v14")
    a("v_lshl_add_u32 v14, v12, 3, v14"); a("v_add_u32 v30, s65, v14")
    def issue(a, r):
        a(f"s_add_u32 s4, s70, {32*r}")
        a(f"s_add_u32 s6, s65, {5120*(r&3)}")
        a("s_cmp_ge_u32 s4, 96"); a(f"s_cbranch_scc1 K1_RI_WO{r}")
        srd(a,40,32,1536*1280)
        a(f"s_mul_i32 s5, s4, {16*1280}")
        a(f"s_branch K1_RI_REG{r}")
        a.label(f"K1_RI_WO{r}")
        srd(a,40,24,640*1280)
        a("s_sub_u32 s4, s4, 96")
        a(f"s_mul_i32 s5, s4, {20*1280}")
        a("s_cmp_lt_u32 s4, 32"); a(f"s_cbranch_scc1 K1_RI_REG{r}")
        a("s_sub_u32 s4, s4, 32"); a("s_lshr_b32 s5, s4, 1"); a("s_lshl_b32 s5, s5, 3"); a("s_and_b32 s4, s4, 1"); a("s_lshl_b32 s4, s4, 1")
        a("s_add_u32 s5, s5, s4"); a("s_mul_i32 s5, s5, 20"); a("s_add_u32 s5, s5, 16"); a("s_mul_i32 s5, s5, 1280")
        for i in range(5):
            a(f"s_add_u32 m0, s6, {1024*i}"); a("s_nop 0")
            a.raw(f"    buffer_load_dwordx4 v{65+i}, s[40:43], s5 offen {NT} lds")
        a(f"s_branch K1_RI_DONE{r}")
        a.label(f"K1_RI_REG{r}")
        for i in range(5):
            a(f"s_add_u32 m0, s6, {1024*i}"); a("s_nop 0")
            a(f"buffer_load_dwordx4 v{60+i}, s[40:43], s5 offen {NT} lds", f"u{r}")
        a.label(f"K1_RI_DONE{r}")
    def process(a, r):
        a(f"s_add_u32 s4, s70, {32*r}"); a("s_mul_i32 s4, s4, 20480"); a("s_mul_i32 s5, s53, 5120")
        a("s_add_u32 s4, s4, s5"); a(f"s_add_u32 s4, s4, {L.W2F}"); a("s_add_u32 s5, s4, 4096")
        for c in range(5):
            for jj in range(2):
                a(f"ds_read_b64_tr_b16 v[{32+4*c+2*jj}:{33+4*c+2*jj}], v30 offset:{5120*(r&3)+2560*jj+64*c}", f"c{c}")
        for c in range(5):
            a.wait_lg(f"c{c}")
            a(f"buffer_store_dwordx4 v[{32+4*c}:{35+4*c}], v16, s[48:51], {'s4' if c<4 else 's5'} offen offset:{1024*(c&3)}", "st")
    assert L.W2F+96*20480==L.WOF
    if not FUSED:
        a("s_cmp_ge_u32 s70, 2"); a("s_cbranch_scc1 K1_NOZ")
        for i in range(4): a(f"v_mov_b32 v{32+i}, 0")
        a("s_lshl_b32 s4, s52, 10"); a(f"s_add_u32 s4, s4, {L.FLG}")
        a.raw("    buffer_store_dwordx4 v[32:35], v16, s[48:51], s4 offen")
        a.label("K1_NOZ")
        a.settle()
    for r in range(4): issue(a,r)
    a.settle()
    share_now(a,"K1_RLSG")
    process(a,0)
    a("s_cmp_ge_u32 s70, 8"); a("s_cbranch_scc1 K1_RI_NO5")
    issue(a,4)
    a.label("K1_RI_NO5")
    a.wait_vm0()
    for r in range(1,4): process(a,r)
    a("s_cmp_ge_u32 s70, 8"); a("s_cbranch_scc1 K1_ENDL")
    a.settle()
    process(a,4)
    a.label("K1_ENDL")
    if FUSED: a.raw("    s_waitcnt lgkmcnt(0)\n    s_barrier")
    a.label("K1_END")
    if FUSED:
        return a.text(), dict(vgpr=168, sgpr=102, lds=163840, block=768, grid=256)
    if DIAG:
        a.raw("    s_cmp_ge_u32 s2, 256\n    s_cbranch_scc1 K1_END2\n    s_cmp_ge_u32 s52, 8\n    s_cbranch_scc1 K1_END2")
        stamp(a,7); stamp(a,9,True)
        dump(a,0,"s52",vtmp=160)
        a.label("K1_END2")
    a("s_endpgm")
    return a.text(), dict(vgpr=168, sgpr=102, lds=163840, block=768, grid=256)
```

```python
from asmlib import Asm
import layout as L
from diag import stamp, dump, DIAG
from k1 import srd, f2u, FUSED, get_nonce
import os
NOKV=os.environ.get('NOKV','0')=='1'
NOGEMM=os.environ.get('NOGEMM','0')=='1'
NOEXEC=os.environ.get('NOEXEC','0')=='1'
NOPRIO=os.environ.get('NOPRIO','0')=='1'
PTOG=os.environ.get('PTOG','0')=='1'
THR=48.0
BMASK=(1<<4)|(1<<5)
R=L.REC
WL=81920
OL=122880

Q1,Q2=4,8
def K1b(p): return f"v[{12+8*p}:{15+8*p}]"
def K2b(p): return f"v[{16+8*p}:{19+8*p}]"
def K2lo(p): return f"v[{16+8*p}:{17+8*p}]"
def Vb(p,x): b=28+8*p+4*x; return f"v[{b}:{b+3}]"
PP=(44,52)
SS=(60,76)
OO=92
CC=108
T0=124
def r16(b): return f"v[{b}:{b+15}]"
def r4(b): return f"v[{b}:{b+3}]"

def wg_decode(a):
    a("s_and_b32 s63, s2, 7"); a("s_lshr_b32 s67, s2, 3")
    a("s_lshl_b32 s55, s63, 3"); a("s_lshr_b32 s68, s67, 2"); a("s_add_u32 s55, s55, s68")
    a("s_and_b32 s56, s67, 3")

def k2():
    a=Asm()
    if FUSED:
        stamp(a,1)
        a("s_and_b32 s63, s2, 7"); a("s_lshl_b32 s63, s63, 7"); a("s_add_u32 s63, s63, 96")
        a("v_lshlrev_b32 v2, 2, v0"); a("v_add_u32 v3, s63, v2"); a(f"v_add_u32 v2, {1024-20}, v2")
        a("v_cmp_gt_u32 vcc, 5, v0"); a("v_cndmask_b32 v2, v2, v3, vcc")
        a("v_mov_b32 v3, s63"); a("v_cmp_gt_u32 vcc, 13, v0"); a("v_cndmask_b32 v2, v3, v2, vcc")
        a(f"s_mov_b32 s27, {L.FLG}")
        a("s_cmp_lg_u32 s52, 0"); a("s_cbranch_scc1 PA_NP")
        a.raw("    buffer_load_dword v1, v2, s[48:51], s27 offen sc1")
        a.label("PA_NP")
        a.settle()
        a("s_load_dwordx2 s[16:17], s[0:1], 0")
        a("s_load_dwordx2 s[18:19], s[0:1], 72")
        wg_decode(a)
        a.raw("    s_waitcnt vmcnt(0) lgkmcnt(0)\n    s_barrier")
        a("s_cmp_lg_u32 s52, 0"); a("s_cbranch_scc1 PA_OK")
        a.raw("""    s_mov_b64 exec, 1
    v_mov_b32 v3, s3
    v_mov_b32 v4, 0
    s_nop 1
    buffer_store_dword v3, v4, s[48:51], s26 offen sc0 sc1
    s_mov_b64 exec, -1
PA_POLL:
    v_cmp_eq_u32 vcc, s3, v1
    s_nop 3
    s_cmp_eq_u64 vcc, exec
    s_cbranch_scc1 PA_OK
    s_sleep 1
    buffer_load_dword v1, v2, s[48:51], s27 offen sc1
    s_waitcnt vmcnt(0)
    s_branch PA_POLL""")
        a.label("PA_OK")
        a.settle()
        a("s_barrier")
        stamp(a,2)
    else:
        a.raw(".globl k2_kernel\n.p2align 8\n.type k2_kernel,@function\nk2_kernel:")
        a("s_cmp_ge_u32 s2, 256"); a("s_cbranch_scc1 K2_END")
        stamp(a,0); stamp(a,8,True)
        a("s_load_dwordx2 s[16:17], s[0:1], 0")
        a("s_load_dwordx2 s[18:19], s[0:1], 72")
        a("s_load_dwordx4 s[32:35], s[0:1], 80")
        a("v_lshrrev_b32 v1, 6, v0"); a("v_readfirstlane_b32 s52, v1"); a("v_and_b32 v0, 63, v0")
        wg_decode(a)
        a("s_waitcnt lgkmcnt(0)")
        srd(a,48,34,L.WS_END)
        a("s_cmp_ge_u32 s52, 8"); a("s_cbranch_scc1 K2_GEMM")
    if not NOPRIO: a("s_setprio 2")
    a("s_lshr_b32 s75, s52, 2")
    if PTOG:
        a("s_cmp_eq_u32 s75, 0")
        def hi0(t2): t2.raw("    s_setprio 3")
        a.cond_block("s_cbranch_scc1 K2_NOHI0","K2_NOHI0",hi0)
    t=lambda i: f"v{T0+i}"
    a("v_lshlrev_b32 v1, 4, v0")
    a(f"v_lshlrev_b32 {t(0)}, 2, v0"); a(f"s_mov_b32 s60, {L.KN}")
    a(f"buffer_load_dword {t(1)}, {t(0)}, s[48:51], s60 offen","kn")
    a(f"v_and_b32 {t(2)}, 7, v0"); a("s_lshl_b32 s63, s56, 3"); a(f"v_add_u32 {t(2)}, s63, {t(2)}")
    a(f"v_bfe_u32 {t(3)}, v0, 3, 2")
    a(f"v_lshrrev_b32 {t(4)}, 5, v0")
    a("s_lshl_b32 s63, s52, 2"); a(f"v_add_u32 {t(5)}, s63, {t(3)}")
    a(f"v_mul_u32_u24 {t(5)}, 5, {t(5)}")
    a(f"s_mul_i32 s61, s55, {40*1024}")
    def qaddr(dst, p):
        a(f"v_lshrrev_b32 {t(6)}, 2, {p}"); a(f"v_lshlrev_b32 {t(6)}, 10, {t(6)}")
        a(f"v_and_b32 {t(7)}, 1, {p}"); a(f"v_lshl_add_u32 {t(7)}, {t(7)}, 5, {t(2)}"); a(f"v_lshl_add_u32 {t(6)}, {t(7)}, 4, {t(6)}")
        a(f"v_bfe_u32 {t(7)}, {p}, 1, 1"); a(f"v_lshl_add_u32 {dst}, {t(7)}, 3, {t(6)}")
    a(f"v_add_u32 {t(8)}, {t(5)}, {t(4)}")
    qaddr(t(9),t(8)); a(f"buffer_load_dwordx2 v[{Q1}:{Q1+1}], {t(9)}, s[48:51], s61 offen","q")
    a(f"v_add_u32 {t(8)}, 2, {t(8)}")
    qaddr(t(10),t(8)); a(f"buffer_load_dwordx2 v[{Q1+2}:{Q1+3}], {t(10)}, s[48:51], s61 offen","q")
    a(f"v_add_u32 {t(8)}, 4, {t(5)}")
    qaddr(t(11),t(8)); a(f"buffer_load_dwordx2 v[{Q2}:{Q2+1}], {t(11)}, s[48:51], s61 offen","q")
    a(f"v_and_b32 {t(0)}, 31, v0")
    a(f"v_lshlrev_b32 v2, 3, {t(0)}"); a("v_add_u32 v2, 1024, v2")
    a("v_cmp_gt_u32 vcc, 32, v0"); a(f"v_mov_b32 {t(8)}, {1280+336+320}"); a(f"v_cndmask_b32 v2, {t(8)}, v2, vcc")
    a(f"v_mul_u32_u24 v3, 336, {t(4)}"); a(f"v_lshl_add_u32 v3, {t(0)}, 4, v3"); a("v_add_u32 v3, 1280, v3")
    a(f"v_cmp_gt_u32 vcc, 20, {t(0)}"); a(f"v_cndmask_b32 v3, {t(8)}, v3, vcc")
    a(f"v_and_b32 {t(9)}, 27, {t(0)}"); a(f"v_cmp_eq_u32 vcc, 24, {t(9)}"); a(f"v_mov_b32 {t(8)}, {1280+320}"); a(f"v_cndmask_b32 v3, v3, {t(8)}, vcc")
    a(f"s_mov_b32 s64, {L.KV}"); a(f"s_add_u32 s65, s64, {R}")
    for r in range(36,44): a(f"v_mov_b32 v{r}, 0")
    for tt_ in range(2):
        a(f"buffer_load_dwordx4 {K1b(tt_)}, v1, s[48:51], s64 offen offset:{R*tt_}",f"k{tt_}")
        a(f"buffer_load_dwordx2 {K2lo(tt_)}, v2, s[48:51], s64 offen offset:{R*tt_}",f"k{tt_}")
    a("s_lshl_b32 s62, s52, 10"); a(f"s_add_u32 s63, s62, {L.KV+2*R}")
    for m in range(0 if FUSED else 3):
        a("s_mov_b32 m0, s62")
        a("s_add_u32 s62, s62, 8192")
        a("buffer_load_dwordx4 v1, s[48:51], s63 offen lds", "c0")
        a("s_add_u32 s63, s63, 8192")
    for tt_ in range(2):
        for x in range(2): a(f"buffer_load_dwordx4 {Vb(tt_,x)}, v3, s[48:51], s{64+tt_} offen offset:{672*x}",f"v{tt_}")
    for r in (18,19,26,27): a(f"v_mov_b32 v{r}, 0")
    for r in range(PP[1],PP[1]+8): a(f"v_mov_b32 v{r}, 0")
    for r in range(OO,OO+16): a(f"v_mov_b32 v{r}, 0")
    a.wait_vm("kn")
    for r_ in (8,4,2,1): a(f"v_max_f32_dpp {t(1)}, {t(1)}, {t(1)} row_ror:{r_} row_mask:0xf bank_mask:0xf")
    for op in ("v_permlane16_swap_b32","v_permlane32_swap_b32"):
        a(f"v_mov_b32 {t(8)}, {t(1)}"); a(f"{op} {t(1)}, {t(8)}"); a(f"v_max_f32 {t(1)}, {t(1)}, {t(8)}")
    a.wait_vm("q")
    a("v_cmp_gt_u32 vcc, 32, v0")
    a(f"v_cndmask_b32 v{Q2}, 0, v{Q2}, vcc"); a(f"v_cndmask_b32 v{Q2+1}, 0, v{Q2+1}, vcc")
    a(f"v_mov_b32 v{Q2+2}, 0"); a(f"v_mov_b32 v{Q2+3}, 0")
    a(f"v_mov_b32 {t(6)}, 0")
    for i in range(6): a(f"v_dot2_f32_bf16 {t(6)}, v{Q1+i}, v{Q1+i}, {t(6)}")
    a(f"v_mov_b32 {t(7)}, {t(6)}"); a(f"v_permlane32_swap_b32 {t(6)}, {t(7)}")
    a(f"v_add_f32 {t(6)}, {t(6)}, {t(7)}"); a(f"v_mul_f32 {t(6)}, {t(6)}, {t(1)}")
    a(f"v_sqrt_f32 {t(6)}, {t(6)}"); a(f"v_mul_f32 {t(6)}, 0x{f2u(1.01):08x}, {t(6)}")
    a(f"v_cmp_ge_f32 vcc, 0x{f2u(THR):08x}, {t(6)}")
    a("s_mov_b32 s74, 1")
    a("s_cmp_eq_u64 vcc, exec"); a("s_cbranch_scc1 K2_FAST")
    vm_fast=list(a.vm)
    a.wait_vm0(); a("s_barrier")
    a("s_barrier"); a("s_barrier")
    a("s_mov_b32 s74, 0")
    a(f"v_mov_b32 {t(6)}, 0xff800000")
    for p in range(2):
        a(f"v_mfma_f32_32x32x16_bf16 {r16(SS[0])}, {K1b(p)}, {r4(Q1)}, 0")
        a(f"v_mfma_f32_32x32x8_bf16 {r16(SS[0])}, {K2lo(p)}, v[{Q2}:{Q2+1}], {r16(SS[0])}")
        for i in range(0,16,2): a(f"v_max3_f32 {t(6)}, v{SS[0]+i}, v{SS[0]+i+1}, {t(6)}")
    a(f"v_mov_b32 {t(10)}, v1"); a(f"v_mov_b32 {t(11)}, v2"); a("s_mov_b32 s73, 62")
    a(f"v_mov_b32 v{SS[1]+6}, 0"); a(f"v_mov_b32 v{SS[1]+7}, 0")
    a.settle()
    a.label("K2_PRE")
    a(f"ds_read_b128 {r4(SS[1])}, {t(10)}"); a(f"ds_read_b64 v[{SS[1]+4}:{SS[1]+5}], {t(11)}")
    a(f"v_add_u32 {t(10)}, {R}, {t(10)}"); a(f"v_add_u32 {t(11)}, {R}, {t(11)}")
    a.wait_lg0()
    a(f"v_mfma_f32_32x32x16_bf16 {r16(SS[0])}, {r4(SS[1])}, {r4(Q1)}, 0")
    a(f"v_mfma_f32_32x32x8_bf16 {r16(SS[0])}, v[{SS[1]+4}:{SS[1]+5}], v[{Q2}:{Q2+1}], {r16(SS[0])}")
    for i in range(0,16,2): a(f"v_max3_f32 {t(6)}, v{SS[0]+i}, v{SS[0]+i+1}, {t(6)}")
    a("s_sub_u32 s73, s73, 1"); a("s_cmp_lg_u32 s73, 0")
    a.settle()
    a("s_cbranch_scc1 K2_PRE")
    a(f"v_mov_b32 {t(7)}, {t(6)}"); a(f"v_permlane32_swap_b32 {t(6)}, {t(7)}"); a(f"v_max_f32 {t(6)}, {t(6)}, {t(7)}")
    a.settle()
    a.label("K2_FAST")
    a.vm=vm_fast
    for i in range(16): a(f"v_sub_f32 v{CC+i}, 0, {t(6)}")
    a.wait_vm("k0")
    a(f"v_mfma_f32_32x32x16_bf16 {r16(SS[0])}, {K1b(0)}, {r4(Q1)}, {r16(CC)}")
    a(f"v_mfma_f32_32x32x8_bf16 {r16(SS[0])}, {K2lo(0)}, v[{Q2}:{Q2+1}], {r16(SS[0])}")
    def tile(tt, j, base, nov=False, late=False):
        p=j&1; S=SS[p]; P=PP[p]
        tt.wait_lg0()
        mf=[f"v_mfma_f32_32x32x16_bf16 {r16(SS[1-p])}, {K1b(1-p)}, {r4(Q1)}, {r16(CC)}",
            f"v_mfma_f32_32x32x16_bf16 {r16(OO)}, {Vb(1-p,0)}, {r4(PP[1-p])}, {r16(OO)}",
            f"v_mfma_f32_32x32x8_bf16 {r16(SS[1-p])}, {K2lo(1-p)}, v[{Q2}:{Q2+1}], {r16(SS[1-p])}",
            f"v_mfma_f32_32x32x16_bf16 {r16(OO)}, {Vb(1-p,1)}, {r4(PP[1-p]+4)}, {r16(OO)}"]
        ex=[f"ds_read_b128 {K1b(p)}, v1 offset:{R*(j+base)}", f"ds_read_b64 {K2lo(p)}, v2 offset:{R*(j+base)}"]
        if not nov:
            ex+=[f"ds_read_b128 {Vb(p,0)}, v3 offset:{R*(j+base-2)}", f"ds_read_b128 {Vb(p,1)}, v3 offset:{R*(j+base-2)+672}"]
        E=[f"v_exp_f32 v{S+i}, v{S+i}" for i in range(16)]
        C=[f"v_cvt_pk_bf16_f32 v{P+i}, v{S+2*i}, v{S+2*i+1}" for i in range(8)]
        groups=[E[0:4], [E[4],C[0],E[5],C[1],E[6],E[7]], [E[8],C[2],E[9],C[3],E[10],E[11]], [E[12],C[4],E[13],C[5],E[14],E[15],C[6],C[7]]]
        def rd():
            for x in ex:
                if NOKV: tt.lg.append(None); continue
                tt(x)
        if not late: rd()
        for k in range(4):
            tt(mf[k])
            for x in groups[k]: tt(x)
        if late:
            tt.wait_vm("c0")
            tt("s_cmp_eq_u32 s74, 1")
            def bar1(t2): t2.raw("    s_barrier")
            tt.cond_block("s_cbranch_scc0 K2_NOB1","K2_NOB1",bar1)
            rd()
    stamp(a,3)
    for j in range(8):
        if j==0: a.wait_vm("k1")
        if j==1: a.wait_vm("v0")
        if j==2: a.wait_vm("v1")
        tile(a,j,0,nov=(j<2),late=(j==0))
    a("s_cmp_eq_u32 s74, 1")
    def bar2(t2): t2.raw("    s_barrier")
    a.cond_block("s_cbranch_scc0 K2_NOB2","K2_NOB2",bar2)
    a("s_min_u32 s63, s52, 4"); a("s_sub_u32 s62, s52, s63"); a("s_mul_i32 s62, s62, 160"); a("s_add_u32 s62, s62, s63")
    a("s_mul_i32 s63, s56, 5"); a("s_add_u32 s62, s62, s63"); a("s_add_u32 s62, s62, 160"); a("s_lshl_b32 s62, s62, 10"); a(f"s_add_u32 s62, s62, {L.WOF}")
    for i in range(8):
        a(f"buffer_load_dwordx4 {r4(136+4*i)}, v1, s[48:51], s62 offen","wo"); a("s_add_u32 s62, s62, 20480")
    a("s_mov_b32 s73, 0"); a(f"s_or_b32 s72, s74, {BMASK}")
    def body(tt):
        for j in range(8): tile(tt,j,8)
    def tail(tt):
        for r in (1,2,3): tt(f"v_add_u32 v{r}, {8*R}, v{r}")
        if PTOG:
            tt("s_xor_b32 s75, s75, 1"); tt("s_cmp_eq_u32 s75, 0")
            tt("s_setprio 2")
            def hi(t2): t2.raw("    s_setprio 3")
            tt.cond_block("s_cbranch_scc1 K2_NOHI","K2_NOHI",hi)
        tt("s_bitcmp1_b32 s72, s73")
        def bar(t2):
            t2.raw("    s_barrier")
        tt.cond_block("s_cbranch_scc0 K2_NOBAR","K2_NOBAR",bar)
        tt("s_add_u32 s73, s73, 1"); tt("s_cmp_lg_u32 s73, 7"); tt("s_cbranch_scc1 K2_LOOP")
    a.loop("K2_LOOP", body, tail)
    stamp(a,4)
    a.wait_lg0()
    a(f"v_mfma_f32_32x32x16_bf16 {r16(OO)}, {Vb(1,0)}, {r4(PP[1])}, {r16(OO)}")
    a(f"v_mfma_f32_32x32x16_bf16 {r16(OO)}, {Vb(1,1)}, {r4(PP[1]+4)}, {r16(OO)}")
    a(f"v_lshlrev_b32 {t(5)}, 10, {t(3)}"); a(f"v_lshl_add_u32 {t(5)}, {t(4)}, 9, {t(5)}"); a(f"v_lshl_add_u32 {t(5)}, {t(2)}, 4, {t(5)}")
    a(f"s_mul_i32 s61, s55, {40*1024}"); a(f"s_add_u32 s61, s61, {L.OF}")
    a("s_lshl_b32 s63, s52, 12"); a("s_add_u32 s62, s61, s63")
    a(f"v_lshrrev_b32 {t(10)}, 1, {t(3)}"); a(f"v_lshlrev_b32 {t(10)}, 10, {t(10)}"); a(f"v_and_b32 {t(11)}, 1, {t(3)}")
    a(f"v_lshl_add_u32 {t(10)}, {t(11)}, 9, {t(10)}"); a(f"v_lshl_add_u32 {t(10)}, {t(2)}, 4, {t(10)}")
    a("s_lshr_b32 s64, s52, 1"); a("s_lshl_b32 s64, s64, 11"); a("s_add_u32 s64, s64, s61"); a("s_add_u32 s64, s64, 32768")
    a("s_and_b32 s63, s52, 1"); a("s_lshl_b32 s63, s63, 3"); a("s_add_u32 s64, s64, s63")
    a(f"v_rcp_f32 {t(6)}, v{OO+12}")
    for i in range(12): a(f"v_mul_f32 v{OO+i}, {t(6)}, v{OO+i}")
    for i in range(6): a(f"v_cvt_pk_bf16_f32 v{SS[0]+i}, v{OO+2*i}, v{OO+2*i+1}")
    a(f"buffer_store_dwordx4 {r4(SS[0])}, {t(5)}, s[48:51], s62 offen sc0 sc1")
    a("v_cmp_gt_u32 vcc, 32, v0")
    a("s_and_saveexec_b64 s[78:79], vcc")
    a(f"buffer_store_dwordx2 v[{SS[0]+4}:{SS[0]+5}], {t(10)}, s[48:51], s64 offen sc0 sc1")
    a("s_mov_b64 exec, -1")
    a("v_lshlrev_b32 v1, 4, v0")
    a.wait_vm0()
    if not FUSED: stamp(a,1)
    a("s_barrier")
    if not FUSED: stamp(a,2)
    a("s_cmp_lg_u32 s52, 0"); a("s_cbranch_scc1 K2_FLAGOK")
    if FUSED:
        a("s_lshl_b32 s63, s55, 7"); a(f"s_add_u32 s63, s63, {L.FLG+4096}"); a("s_lshl_b32 s62, s56, 2"); a("s_add_u32 s62, s62, s63")
        a.raw(f"""    v_and_b32 v3, 3, v0
    v_lshlrev_b32 v3, 2, v3
    s_mov_b64 exec, 1
    v_mov_b32 v2, s3
    s_nop 1
    buffer_store_dword v2, v3, s[48:51], s62 offen sc0 sc1
    s_mov_b64 exec, -1
K2_POLL:
    buffer_load_dword v2, v3, s[48:51], s63 offen sc1
    s_waitcnt vmcnt(0)
    v_cmp_eq_u32 vcc, s3, v2
    s_nop 3
    s_cmp_eq_u64 vcc, exec
    s_cbranch_scc1 K2_FLAGOK
    s_sleep 1
    s_branch K2_POLL""")
    else:
        a("s_lshl_b32 s63, s55, 7"); a(f"s_add_u32 s63, s63, {L.FLG}"); a("s_add_u32 s62, s63, s56")
        a.raw(f"""    s_mov_b64 exec, 1
    v_mov_b32 v2, 1
    v_mov_b32 v3, 0
    s_nop 1
    buffer_store_byte v2, v3, s[48:51], s62 offen sc0 sc1
K2_POLL:
    buffer_load_dword v2, v3, s[48:51], s63 offen sc1
    s_waitcnt vmcnt(0)
    v_readfirstlane_b32 s62, v2
    s_nop 3
    s_cmp_eq_u32 s62, 0x01010101
    s_cbranch_scc1 K2_POLLOK
    s_sleep 1
    s_branch K2_POLL
K2_POLLOK:
    s_mov_b64 exec, -1""")
    a.label("K2_FLAGOK")
    a.settle()
    a("s_barrier")
    stamp(a,5)
    a("s_lshl_b32 s62, s52, 10"); a("s_add_u32 s63, s62, s61"); a(f"s_add_u32 s62, s62, {OL}")
    for m in range(5):
        a("s_mov_b32 m0, s62"); a("s_add_u32 s62, s62, 8192")
        a("buffer_load_dwordx4 v1, s[48:51], s63 offen sc1 lds"); a("s_add_u32 s63, s63, 8192")
    a(f"v_add_u32 v2, {OL}, v1")
    a("s_min_u32 s63, s52, 4"); a("s_sub_u32 s62, s52, s63")
    a("s_mul_i32 s64, s62, 10240"); a("s_lshl_b32 s63, s63, 10"); a("s_add_u32 s64, s64, s63"); a(f"s_add_u32 s64, s64, {WL}")
    a("v_add_u32 v3, s64, v1")
    a.wait_vm0(); a("s_barrier")
    stamp(a,6)
    AC=SS[0]
    a("s_cmp_ge_u32 s52, 4"); a("s_cbranch_scc1 K2_P2B")
    hz=a.hz_get()
    for k in range(8): a(f"ds_read_b128 {r4(12+4*k)}, v2 offset:{1024*(8+k)}", f"b{k}")
    for k in range(4):
        a(f"ds_read_b128 {r4(44+4*k)}, v3 offset:{5120*k}", f"l{k}"); a(f"ds_read_b128 {r4(76+4*k)}, v2 offset:{1024*k}", f"l{k}")
    for k in range(8):
        a.wait_lg(f"b{k}")
        a(f"v_mfma_f32_32x32x16_bf16 {r16(AC)}, {r4(136+4*k)}, {r4(12+4*k)}, {'0' if k==0 else r16(AC)}")
        if k>=4:
            kk=k
            a(f"ds_read_b128 {r4(92+4*(kk-4))}, v3 offset:{5120*kk}", f"l{kk}"); a(f"ds_read_b128 {r4(108+4*(kk-4))}, v2 offset:{1024*kk}", f"l{kk}")
    for k in range(8):
        a.wait_lg(f"l{k}")
        A,B=(44+4*k,76+4*k) if k<4 else (92+4*(k-4),108+4*(k-4))
        a(f"v_mfma_f32_32x32x16_bf16 {r16(AC)}, {r4(A)}, {r4(B)}, {r16(AC)}")
    a("s_lshl_b32 s63, s52, 13")
    a("s_branch K2_P2W")
    a.label("K2_P2B")
    a.hz_set(hz); a.lg=[]
    a("s_lshl_b32 s63, s62, 13"); a("v_add_u32 v4, s63, v2")
    a("s_lshl_b32 s63, s62, 11"); a("v_add_u32 v5, s63, v2")
    for k in range(8): a(f"ds_read_b128 {r4(12+4*k)}, v4 offset:{1024*(8+k)}", f"b{k}")
    for k in range(2):
        a(f"ds_read_b128 {r4(44+4*k)}, v3 offset:{5120*k}", f"l{k}"); a(f"ds_read_b128 {r4(76+4*k)}, v5 offset:{1024*k}", f"l{k}")
    for k in range(8):
        a.wait_lg(f"b{k}")
        a(f"v_mfma_f32_32x32x16_bf16 {r16(AC)}, {r4(136+4*k)}, {r4(12+4*k)}, {'0' if k==0 else r16(AC)}")
    for k in range(2):
        a.wait_lg(f"l{k}")
        a(f"v_mfma_f32_32x32x16_bf16 {r16(AC)}, {r4(44+4*k)}, {r4(76+4*k)}, {r16(AC)}")
    a("s_lshl_b32 s63, s62, 12"); a("s_add_u32 s63, s63, 32768")
    a.label("K2_P2W")
    a.settle()
    a("v_add_u32 v2, s63, v1")
    for g in range(4): a(f"ds_write_b128 v2, {r4(AC+4*g)} offset:{1024*g}")
    a.wait_lg0(); a("s_barrier")
    a("s_branch K2_END")

    a.label("PB_G" if FUSED else "K2_GEMM")
    a.ev={}; a.vm=[]; a.lg=[]
    if FUSED:
        get_nonce(a,"PB_NC",4)
        a("v_and_b32 v3, 7, v0"); a("v_lshlrev_b32 v3, 2, v3"); a(f"s_mov_b32 s27, {L.FLG+1024}")
        a.raw("""    buffer_load_dword v4, v3, s[48:51], s27 offen sc1
    s_waitcnt vmcnt(0)""")
        a.label("PB_G2")
        a.settle()
        a("s_load_dwordx2 s[16:17], s[0:1], 0")
        a("s_load_dwordx2 s[18:19], s[0:1], 72")
        wg_decode(a)
        a.raw("""    v_cmp_eq_u32 vcc, s3, v4
    s_nop 3
    s_cmp_eq_u64 vcc, exec
    s_cselect_b32 s74, 1, 0
    s_waitcnt lgkmcnt(0)""")
    srd(a,36,16,2048*1280)
    a("s_sub_u32 s53, s52, 8")
    a("v_lshlrev_b32 v1, 4, v0"); a("v_add_u32 v2, 4096, v1")
    a(f"s_mul_i32 s60, s55, {96*1024}"); a(f"s_mul_i32 s63, s53, {24*1024}"); a("s_add_u32 s60, s60, s63"); a(f"s_add_u32 s60, s60, {L.HF}")
    a(f"s_mul_i32 s61, s53, {24*20480}"); a(f"s_mul_i32 s63, s56, 5120"); a("s_add_u32 s61, s61, s63"); a(f"s_add_u32 s61, s61, {L.W2F}")
    def ld(t, s):
        b=84+24*s
        t(f"buffer_load_dwordx4 {r4(b)}, v1, s[48:51], s60 offen", f"s{s}")
        for c in range(4): t(f"buffer_load_dwordx4 {r4(b+4+4*c)}, v1, s[48:51], s61 offen offset:{1024*c}", f"s{s}")
        t(f"buffer_load_dwordx4 {r4(b+20)}, v2, s[48:51], s61 offen", f"s{s}")
        t("s_add_u32 s60, s60, 1024"); t("s_add_u32 s61, s61, 20480")
    def kvd(t, tag):
        t("s_mov_b32 m0, s62"); t("s_add_u32 s62, s62, 4096")
        t("buffer_load_dwordx4 v1, s[48:51], s63 offen lds", tag); t("s_add_u32 s63, s63, 4096")
    if FUSED:
        a("s_lshl_b32 s62, s53, 10"); a(f"s_add_u32 s63, s62, {L.KV+2*R}")
        a("s_barrier")
        a("s_cmp_eq_u32 s74, 0"); a("s_cbranch_scc1 PB_NR1")
        t=Asm()
        for m in range(16): kvd(t,None)
        a.lines+=t.lines
        a.label("PB_NR1")
        a("s_barrier"); a("s_barrier")
        a("s_cmp_eq_u32 s74, 1"); a("s_cbranch_scc1 PB_R2")
        a.raw("""PB_KVP:
    buffer_load_dword v4, v3, s[48:51], s27 offen sc1
    s_waitcnt vmcnt(0)
    v_cmp_eq_u32 vcc, s3, v4
    s_nop 3
    s_cmp_eq_u64 vcc, exec
    s_cbranch_scc1 PB_KVOK
    s_sleep 1
    s_branch PB_KVP
PB_KVOK:""")
        a.lines+=t.lines
        a.label("PB_R2")
        a.settle()
        a.vm=["c0"]*6+["kva"]*10
        a.wait_vm("c0"); a("s_barrier")
        for m in range(24): kvd(a,"kv")
        for r in range(4,84): a(f"v_mov_b32 v{r}, 0")
        a.wait_vm("kva")
        a("s_barrier")
        a("s_and_b32 s63, s2, 7"); a("s_lshl_b32 s63, s63, 7")
        a("v_lshlrev_b32 v3, 2, v0"); a("v_add_u32 v84, s63, v3"); a(f"v_add_u32 v3, {1024+32-96}, v3")
        a("v_cmp_gt_u32 vcc, 24, v0"); a("v_cndmask_b32 v3, v3, v84, vcc")
        a("v_mov_b32 v84, s63"); a("v_cmp_gt_u32 vcc, 40, v0"); a("v_cndmask_b32 v3, v84, v3, vcc")
        a(f"s_mov_b32 s27, {L.FLG}")
        a.wait_vm0()
        a.raw("    buffer_load_dword v84, v3, s[48:51], s27 offen sc1")
        a("s_barrier")
        a.raw("""PB_HP:
    s_waitcnt vmcnt(0)
    v_cmp_eq_u32 vcc, s3, v84
    s_nop 3
    s_cmp_eq_u64 vcc, exec
    s_cbranch_scc1 PB_HOK
    s_sleep 1
    buffer_load_dword v84, v3, s[48:51], s27 offen sc1
    s_branch PB_HP
PB_HOK:""")
        a.settle()
        for s in range(3): ld(a,s)
    else:
        a("s_barrier")
        a("s_lshl_b32 s62, s53, 10"); a("s_add_u32 s62, s62, 24576"); a(f"s_add_u32 s63, s62, {L.KV+2*R}")
        for m in range(34): kvd(a, "kva" if m<10 else "kv")
        for r in range(4,84): a(f"v_mov_b32 v{r}, 0")
        a.wait_vm("kva")
        a("s_barrier")
        for s in range(3): ld(a,s)
        a.wait_vm("kv")
        a("s_barrier")
    stamp(a,2)
    def mm(t, s):
        b=84+24*s
        t.wait_vm(f"s{s}")
        for c in range(5): t(f"v_mfma_f32_32x32x16_bf16 {r16(4+16*c)}, {r4(b+4+4*c)}, {r4(b)}, {r16(4+16*c)}")
    def gbody(t):
        for s in range(3): mm(t,s); ld(t,s)
    def gtail(t):
        t("s_sub_u32 s73, s73, 1"); t("s_cmp_lg_u32 s73, 0"); t("s_cbranch_scc1 K2_GLOOP")
    a("s_mov_b32 s73, 7")
    if not NOGEMM: a.loop("K2_GLOOP", gbody, gtail)
    for s in range(3): mm(a,s)
    stamp(a,3)
    a("v_and_b32 v3, 31, v0"); a("s_lshl_b32 s63, s55, 5"); a("v_add_u32 v3, s63, v3"); a("v_mul_u32_u24 v3, 1280, v3")
    a("v_lshrrev_b32 v162, 5, v0"); a("v_lshl_add_u32 v3, v162, 3, v3")
    a("s_mul_i32 s62, s56, 320"); a("s_lshl_b32 s63, s53, 4"); a("s_add_u32 s62, s62, s63")
    for c in range(5): a(f"buffer_load_dwordx2 v[{152+2*c}:{153+2*c}], v3, s[36:39], s62 offen offset:{64*c}","x")
    a("s_mov_b32 s64, s62")
    a("s_mul_i32 s63, s53, 20480"); a("v_add_u32 v162, s63, v1")
    a("s_lshl_b32 s63, s53, 10"); a("v_add_u32 v163, s63, v1"); a("v_add_u32 v164, 40960, v163")
    a("s_mul_i32 s65, s56, 5120"); a(f"s_add_u32 s65, s65, {L.WOF}")
    a("s_barrier")
    stamp(a,4)
    for c in range(5):
        for g in range(4): a(f"ds_write_b128 v162, {r4(4+16*c+4*g)} offset:{(c*4+g)*1024}")
    def wodma(m):
        a(f"s_add_u32 s62, s53, {4*m}"); a("s_mul_i32 s63, s62, 52"); a("s_lshr_b32 s63, s63, 8"); a("s_mul_i32 s63, s63, 15360")
        a("s_lshl_b32 s62, s62, 10"); a("s_add_u32 s63, s63, s62"); a("s_add_u32 s63, s63, s65"); a(f"s_add_u32 m0, s62, {WL}")
        a("buffer_load_dwordx4 v1, s[48:51], s63 offen lds","wd")
    for m in range(9): wodma(m)
    a.wait_lg0()
    a("s_lshl_b32 s62, s53, 10"); a("s_add_u32 s62, s62, s65"); a(f"s_add_u32 s62, s62, {16*20480}")
    for i in range(24):
        a(f"buffer_load_dwordx4 {r4(4+4*i)}, v1, s[48:51], s62 offen","wr"); a("s_add_u32 s62, s62, 20480")
    a("s_barrier")
    stamp(a,5)
    wodma(9)
    a.wait_vm("x")
    for c in range(5):
        tb=120+16*(c&1)
        if c==0:
            for cc in range(2):
                for s_ in range(4): a(f"ds_read_b128 {r4(120+16*cc+4*s_)}, v{163+(s_>>1)} offset:{(s_&1)*20480+cc*4096}", f"r{cc}")
        a.wait_lg(f"r{c}")
        y=100+4*c
        a(f"v_lshlrev_b32 v{y}, 16, v{152+2*c}"); a(f"v_and_b32 v{y+1}, 0xffff0000, v{152+2*c}")
        a(f"v_lshlrev_b32 v{y+2}, 16, v{153+2*c}"); a(f"v_and_b32 v{y+3}, 0xffff0000, v{153+2*c}")
        for i in range(4):
            a(f"v_add_f32 v{tb+i}, v{tb+i}, v{tb+4+i}"); a(f"v_add_f32 v{tb+8+i}, v{tb+8+i}, v{tb+12+i}")
        for i in range(4): a(f"v_add_f32 v{tb+i}, v{tb+i}, v{tb+8+i}")
        for i in range(4): a(f"v_add_f32 v{y+i}, v{y+i}, v{tb+i}")
        if c+2<5:
            for s_ in range(4): a(f"ds_read_b128 {r4(tb+4*s_)}, v{163+(s_>>1)} offset:{(s_&1)*20480+(c+2)*4096}", f"r{c+2}")
    srd(a,36,18,2048*1280)
    a(f"v_add_u32 v2, {OL+16384}, v1")
    a.wait_vm0()
    a("s_barrier")
    a("s_barrier")
    a("s_barrier")
    NB=6
    for k in range(NB): a(f"ds_read_b128 {r4(136+4*k)}, v2 offset:{1024*k}", f"b{k}")
    for k in range(24):
        a.wait_lg(f"b{k}")
        a(f"v_mfma_f32_32x32x16_bf16 {r16(120)}, {r4(4+4*k)}, {r4(136+4*(k%NB))}, {'0' if k==0 else r16(120)}")
        if k>=1 and k-1+NB<24: a(f"ds_read_b128 {r4(136+4*((k-1)%NB))}, v2 offset:{1024*(k-1+NB)}", f"b{k-1+NB}")
    a("s_lshl_b32 s63, s53, 13"); a("s_add_u32 s63, s63, 4096"); a("v_add_u32 v2, s63, v1")
    for g in range(4): a(f"ds_write_b128 v2, {r4(120+4*g)} offset:{1024*g}")
    a.wait_lg0(); a("s_barrier")
    for sl in range(12): a(f"ds_read_b128 {r4(4+4*sl)}, v163 offset:{4096*sl}", f"f{sl}")
    for c in range(5):
        y=100+4*c
        srcs=[2*c,2*c+1] if c<4 else [8,9,10,11]
        a.wait_lg(f"f{srcs[-1]}")
        for sl in srcs:
            for i in range(4): a(f"v_add_f32 v{y+i}, v{y+i}, v{4+4*sl+i}")
        a(f"v_cvt_pk_bf16_f32 v{y}, v{y}, v{y+1}"); a(f"v_cvt_pk_bf16_f32 v{y+1}, v{y+2}, v{y+3}")
        a(f"buffer_store_dwordx2 v[{y}:{y+1}], v3, s[36:39], s64 offen offset:{64*c}")
    a.label("K2_END")
    if DIAG:
        a.raw("    s_cmp_ge_u32 s2, 256\n    s_cbranch_scc1 K2_END2")
        stamp(a,7); stamp(a,9,True)
        dump(a,1,"s52",vtmp=165,wmul=4)
        a.label("K2_END2")
    a("s_endpgm")
    return a.text(), dict(vgpr=168, sgpr=102, lds=163840, block=768, grid=256)

def k3():
    a=Asm()
    a.raw(".globl k3_kernel\n.p2align 8\n.type k3_kernel,@function\nk3_kernel:")
    a("s_cmp_ge_u32 s2, 256"); a("s_cbranch_scc1 K3_END")
    stamp(a,0); stamp(a,8,True)
    a("s_load_dwordx2 s[16:17], s[0:1], 72")
    a("s_load_dwordx2 s[34:35], s[0:1], 88")
    a("v_lshrrev_b32 v1, 6, v0"); a("v_readfirstlane_b32 s53, v1"); a("v_and_b32 v0, 63, v0")
    wg_decode(a)
    a("v_lshlrev_b32 v1, 4, v0"); a("v_add_u32 v2, 4096, v1")
    a(f"s_mul_i32 s60, s55, {40*1024}"); a(f"s_mul_i32 s63, s53, {10*1024}"); a("s_add_u32 s60, s60, s63"); a(f"s_add_u32 s60, s60, {L.OF}")
    a(f"s_mul_i32 s61, s53, {10*20480}"); a(f"s_mul_i32 s63, s56, 5120"); a("s_add_u32 s61, s61, s63"); a(f"s_add_u32 s61, s61, {L.WOF}")
    a("s_waitcnt lgkmcnt(0)")
    srd(a,48,34,L.WS_END); srd(a,36,16,2048*1280)
    for s in range(10):
        b=8+24*s
        a(f"buffer_load_dwordx4 {r4(b)}, v1, s[48:51], s60 offen", f"s{s}")
        for c in range(4): a(f"buffer_load_dwordx4 {r4(b+4+4*c)}, v1, s[48:51], s61 offen offset:{1024*c}", f"s{s}")
        a(f"buffer_load_dwordx4 {r4(b+20)}, v2, s[48:51], s61 offen", f"s{s}")
        a("s_add_u32 s60, s60, 1024"); a("s_add_u32 s61, s61, 20480")
    a("s_mul_i32 s62, s2, 20480"); a("s_lshl_b32 s63, s53, 10"); a("s_add_u32 s62, s62, s63"); a(f"s_add_u32 s62, s62, {L.Y0}")
    a("s_mul_i32 s63, s53, 20480"); a("v_add_u32 v4, s63, v1")
    a("s_lshl_b32 s63, s53, 10"); a("v_add_u32 v5, s63, v1"); a("v_add_u32 v6, 40960, v5")
    a("v_and_b32 v3, 31, v0"); a("s_lshl_b32 s63, s55, 5"); a("v_add_u32 v3, s63, v3"); a("v_mul_u32_u24 v3, 1280, v3")
    a("v_lshrrev_b32 v7, 5, v0"); a("v_lshl_add_u32 v3, v7, 3, v3")
    a("s_mul_i32 s64, s56, 320"); a("s_lshl_b32 s63, s53, 4"); a("s_add_u32 s64, s64, s63")
    stamp(a,1)
    for s in range(10):
        b=8+24*s
        a.wait_vm(f"s{s}")
        if s==0: stamp(a,2)
        for c in range(5):
            C="0" if s==0 else f"a[{16*c}:{16*c+15}]"
            a(f"v_mfma_f32_32x32x16_bf16 a[{16*c}:{16*c+15}], {r4(b+4+4*c)}, {r4(b)}, {C}")
        if s==1:
            for c in range(5):
                a(f"buffer_load_dwordx4 {r4(8+4*c)}, v1, s[48:51], s62 offen", "y")
                a("s_add_u32 s62, s62, 4096")
    stamp(a,3)
    for c in range(5):
        for g in range(4): a(f"ds_write_b128 v4, a[{16*c+4*g}:{16*c+4*g+3}] offset:{(c*4+g)*1024}")
    a.wait_lg0(); a("s_barrier")
    for c in range(5):
        for s in range(4): a(f"ds_read_b128 {r4(88+16*c+4*s)}, v{5+(s>>1)} offset:{(s&1)*20480+c*4096}", f"r{c}")
    stamp(a,4)
    a.wait_vm("y")
    for c in range(5):
        a.wait_lg(f"r{c}")
        b=88+16*c
        for i in range(4):
            a(f"v_add_f32 v{b+i}, v{b+i}, v{b+4+i}"); a(f"v_add_f32 v{b+8+i}, v{b+8+i}, v{b+12+i}")
        for i in range(4): a(f"v_add_f32 v{b+i}, v{b+i}, v{b+8+i}")
        for i in range(4): a(f"v_add_f32 v{b+i}, v{b+i}, v{8+4*c+i}")
        a(f"v_cvt_pk_bf16_f32 v{b}, v{b}, v{b+1}"); a(f"v_cvt_pk_bf16_f32 v{b+1}, v{b+2}, v{b+3}")
        a(f"buffer_store_dwordx2 v[{b}:{b+1}], v3, s[36:39], s64 offen offset:{64*c}")
    a.label("K3_END")
    if DIAG:
        a.raw("    s_cmp_ge_u32 s2, 256\n    s_cbranch_scc1 K3_END2")
        stamp(a,7); stamp(a,9,True)
        dump(a,2,"s53",vtmp=250)
        a.label("K3_END2")
    a("s_endpgm")
    return a.text(), dict(vgpr=256+80, accum=256, sgpr=102, lds=81920, block=256, grid=256)
```

```python
import sys
from k1 import k1, FUSED, KNAME
from k2 import k2, k3
ref=open('parallel_sum__grouped_kv_mqa__glu_gated_swiglu__prompt.s.ref').read()
head=[l for l in ref.splitlines() if l.startswith(';') and '@launch' not in l]
def wt(txt):
    o=[]
    for l in txt.split('\n'):
        if 'buffer_store' in l and 's[48:51]' in l and 'sc1' not in l and 's78 offen' not in l: l=l.rstrip()+' sc0 sc1'
        o.append(l)
    return '\n'.join(o)
def sc1loads(txt):
    o=[]
    for l in txt.split('\n'):
        if 'buffer_load' in l and 's[48:51]' in l and 'sc1' not in l:
            l = l.rstrip()[:-4]+' sc1 lds' if l.rstrip().endswith(' lds') else l.rstrip()+' sc1'
        o.append(l)
    return '\n'.join(o)
out='\n'.join(head)+'\n'
if FUSED:
    t1,i1=k1(); t2,i2=k2()
    ks=[(KNAME, wt(t1)+sc1loads(t2), i1)]
    out+=f"; @launch grid=({i1['grid']},1,1) block=({i1['block']},1,1) lds={i1['lds']}\n"
else:
    t1,i1=k1()
    ks=[('k1_kernel',wt(t1),i1), ('k2_kernel',)+k2()]
    for n,t,i in ks:
        out+=f"; @launch kernel={n} grid=({i['grid']},1,1) block=({i['block']},1,1) lds={i['lds']}\n"
out+='.amdgcn_target "amdgcn-amd-amdhsa--gfx950"\n.text\n'
for n,t,i in ks: out+=t
out+='.section .rodata,"a"\n'
for n,t,i in ks:
    acc=i.get('accum', (i['vgpr']+3)//4*4)
    out+=f""".p2align 6
.amdhsa_kernel {n}
  .amdhsa_next_free_vgpr {i['vgpr']}
  .amdhsa_next_free_sgpr {i['sgpr']}
  .amdhsa_accum_offset {acc}
  .amdhsa_group_segment_fixed_size 0
  .amdhsa_kernarg_size 96
  .amdhsa_user_sgpr_count 2
  .amdhsa_user_sgpr_kernarg_segment_ptr 1
  .amdhsa_system_sgpr_workgroup_id_x 1
.end_amdhsa_kernel
"""
dst = sys.argv[1] if len(sys.argv)>1 else 'parallel_sum__grouped_kv_mqa__glu_gated_swiglu__prompt.s'
open(dst,'w').write(out)
print('wrote',dst,len(out))
```

```python
from asmlib import Asm
import layout as L
from diag import stamp as stamp0, dump, DIAG
import os as _os
SB=_os.environ.get('SB','0')=='1'
def stamp(a,i,real=False):
    if _os.environ.get('FUSED','1')=='1' and _os.environ.get('FST','0')!='1' and i not in (0,8): return
    if SB and i in (2,3,5,6): return
    if SB and i==4: i=5
    stamp0(a,i,real)
def stampb(a,i):
    if SB: stamp0(a,i)
import math, struct, os
def f2u(x): return struct.unpack('<I',struct.pack('<f',x))[0]
LOG2E=math.log2(math.e)
NT=os.environ.get('NT','')
NOPF=os.environ.get('NOPF','1')=='1'
NODMA=os.environ.get('NODMA','0')=='1'
NOREAD=os.environ.get('NOREAD','0')=='1'
NOCS=os.environ.get('NOCS','0')=='1'
NOMF=os.environ.get('NOMF','0')=='1'

FUSED=os.environ.get('FUSED','1')=='1'
KNAME='parallel_sum__grouped_kv_mqa__glu_gated_swiglu__prompt_kernel' if FUSED else 'k1_kernel'
CNT=163328
SLOT=49152
CSP=147456
KV_WK=98304; KV_WV=126976; KV_ST=155648

def srd(a, d, lo, size, add=0):
    if add:
        a(f"s_add_u32 s{d}, s{lo}, {add}"); a(f"s_addc_u32 s{d+1}, s{lo+1}, 0")
    else:
        a(f"s_mov_b32 s{d}, s{lo}"); a(f"s_mov_b32 s{d+1}, s{lo+1}")
    a(f"s_mov_b32 s{d+2}, {size}"); a(f"s_mov_b32 s{d+3}, 0x00020000")

XF=24
WF=40
ACC=64
TMP=128
SL=136
AUG=152
def xf(st,ts): b=XF+st*8+ts*4; return f"v[{b}:{b+3}]"
def wf(st,m): b=WF+st*8+m*4; return f"v[{b}:{b+3}]"
def acc(ts,m): b=ACC+(ts*2+m)*16; return f"v[{b}:{b+15}]"
def ops_of(fn):
    t=Asm(); fn(t)
    L0=[l.strip() for l in t.lines if not l.strip().startswith('s_nop')]
    out=[]; grp=None
    for l in L0:
        if l.startswith('s_and_saveexec'): grp=[l]; continue
        if grp is not None:
            grp.append(l)
            if l.startswith('s_mov_b64 exec'): out.append('\n'.join(grp)); grp=None
            continue
        out.append(l)
    return out

def x_dma_setup(a):
    a("v_lshrrev_b32 v1, 3, v0")
    a("s_lshl_b32 s63, s55, 8"); a("s_lshl_b32 s67, s52, 5"); a("s_add_u32 s63, s63, s67")
    a("v_add_u32 v1, s63, v1")
    a("v_mul_u32_u24 v1, 1280, v1")
    a("v_and_b32 v2, 7, v0"); a("v_lshrrev_b32 v3, 4, v0")
    a("v_xor_b32 v2, v2, v3")
    a("v_xor_b32 v4, 4, v2")
    a("v_lshl_add_u32 v5, v2, 4, v1")
    a("v_lshl_add_u32 v6, v4, 4, v1")
    a("v_mov_b32 v1, v5")
    a(f"v_add_u32 v2, {9216}, v6")
    a(f"v_add_u32 v3, {2*9216}, v5")
    a(f"v_add_u32 v4, {3*9216}, v6")

def x_dma(a, tag, lds_sgpr):
    a(f"s_add_u32 m0, {lds_sgpr}, s64")
    for e in range(4):
        a(f"buffer_load_dwordx4 v{1+e}, s[36:39], s57 offen offset:{1024*e} {NT} lds", tag)

def xread_setup(a, rowbase_sgpr):
    a("v_and_b32 v10, 31, v0")
    a("v_lshrrev_b32 v11, 1, v10"); a("v_and_b32 v11, 7, v11")
    a("v_lshrrev_b32 v12, 5, v0")
    a(f"v_add_u32 v10, {rowbase_sgpr}, v10"); a("v_lshlrev_b32 v10, 7, v10")
    for ks in range(4):
        a(f"v_add_u32 v13, {2*ks}, v12"); a("v_xor_b32 v13, v13, v11")
        a(f"v_lshl_add_u32 v{6+ks}, v13, 4, v10")

def stats_math(a, s0, q0, negm, rinv):
    c=f2u(1.0/640)
    a(f"v_mul_f32 {s0}, 0x{c:08x}, {s0}"); a(f"v_mul_f32 {q0}, 0x{c:08x}, {q0}")
    a(f"v_fma_f32 {q0}, -{s0}, {s0}, {q0}"); a(f"v_max_f32 {q0}, 0, {q0}")
    a(f"v_cvt_pk_bf16_f32 {negm}, {s0}, {s0}"); a(f"v_xor_b32 {negm}, 0x80008000, {negm}")
    a(f"v_cvt_pk_bf16_f32 {q0}, {q0}, {q0}"); a(f"v_lshlrev_b32 {q0}, 16, {q0}")
    a(f"v_add_f32 {q0}, 0x{f2u(1e-5):08x}, {q0}")
    a(f"v_cvt_pk_bf16_f32 {q0}, {q0}, {q0}"); a(f"v_lshlrev_b32 {q0}, 16, {q0}")
    a(f"v_sqrt_f32 {q0}, {q0}")
    a(f"v_cvt_pk_bf16_f32 {q0}, {q0}, {q0}"); a(f"v_lshlrev_b32 {q0}, 16, {q0}")
    a(f"v_rcp_f32 {rinv}, {q0}")

def stat_ops(regs, tb=TMP):
    o=[]
    for n,r in enumerate(regs):
        A=tb+2*(n&1); B=A+1
        o+= [f"v_lshlrev_b32 v{A}, 16, v{r}", f"v_and_b32 v{B}, 0xffff0000, v{r}",
             f"v_add_f32 v17, v17, v{A}", f"v_add_f32 v18, v18, v{B}",
             f"v_fmac_f32 v19, v{A}, v{A}", f"v_fmac_f32 v20, v{B}, v{B}"]
    return o
def cs_ops(pairs, tb=TMP+4):
    o=[]
    for n,(r,ac) in enumerate(pairs):
        A=tb+2*(n&1); B=A+1
        o+= [f"v_lshlrev_b32 v{A}, 16, v{r}", f"v_and_b32 v{B}, 0xffff0000, v{r}",
             f"v_add_f32 v{ac}, v{ac}, v{A}", f"v_add_f32 v{ac}, v{ac}, v{B}"]
    return o

def share_issue(a):
    a("s_lshl_b32 s63, s55, 8"); a("s_lshl_b32 s67, s56, 3"); a("s_add_u32 s63, s63, s67"); a("s_add_u32 s63, s63, s52")
    a("v_mov_b32 v23, s63"); a("s_mul_i32 s63, s63, 1280")
    a(f"v_lshlrev_b32 v{TMP}, 5, v0"); a(f"v_mov_b32 v{TMP+1}, 0x7f000000"); a("v_cmp_gt_u32 vcc, 40, v0"); a(f"v_cndmask_b32 v{TMP}, v{TMP+1}, v{TMP}, vcc")
    for i in range(2):
        a(f"buffer_load_dwordx4 v[{SL+4*i}:{SL+4*i+3}], v{TMP}, s[36:39], s63 offen offset:{16*i} {NT}", "sl")
def share_finish(t):
    t("v_add_f32 v17, v17, v18"); t("v_add_f32 v19, v19, v20")
    for r in (8,4,2,1):
        t(f"v_add_f32_dpp v17, v17, v17 row_ror:{r} row_mask:0xf bank_mask:0xf")
        t(f"v_add_f32_dpp v19, v19, v19 row_ror:{r} row_mask:0xf bank_mask:0xf")
    for bc,rm in ((15,0xa),(31,0xc)):
        t(f"v_add_f32_dpp v17, v17, v17 row_bcast:{bc} row_mask:0x{rm:x} bank_mask:0xf")
        t(f"v_add_f32_dpp v19, v19, v19 row_bcast:{bc} row_mask:0x{rm:x} bank_mask:0xf")
    stats_math(t,"v17","v19",f"v{TMP}",f"v{TMP+1}")
    t("v_lshlrev_b32 v23, 3, v23")
    t("v_cmp_eq_u32 vcc, 63, v0")
    t("s_and_saveexec_b64 s[78:79], vcc")
    t(f"buffer_store_dwordx2 v[{TMP}:{TMP+1}], v23, s[48:51], s76 offen sc0 sc1","ss")
    t("s_mov_b64 exec, s[78:79]")
def get_nonce(a, lab, v0=TMP+6):
    a.raw(f"""    v_mov_b32 v{v0+1}, 0
{lab}:
    buffer_load_dword v{v0}, v{v0+1}, s[72:75], 0 offen sc1
    s_waitcnt vmcnt(0)
    v_readfirstlane_b32 s3, v{v0}
    s_nop 3
    s_cmp_lg_u32 s3, 0
    s_cbranch_scc1 {lab}_OK
    s_sleep 2
    s_branch {lab}
{lab}_OK:""")
SIGN=[0]
def signal_pre(a): signal(a, True)
def signal(a, pre=False):
    if FUSED:
        SIGN[0]+=1
        if pre:
            a.raw(f"    v_readfirstlane_b32 s3, v3\n    v_mov_b32 v{TMP+7}, 0\n    s_nop 3\n    s_cmp_lg_u32 s3, 0\n    s_cbranch_scc1 K1_NC{SIGN[0]}_OK")
        get_nonce(a, f"K1_NC{SIGN[0]}")
        a.raw("    s_mov_b64 exec, 1")
        a.raw(f"    v_mov_b32 v{TMP+6}, s3\n    s_lshl_b32 s63, s2, 2\n    s_add_u32 s63, s63, {L.FLG+2048}\n    s_nop 1")
        a.raw(f"    buffer_store_dword v{TMP+6}, v{TMP+7}, s[48:51], s63 offen sc0 sc1")
        a.raw(f"    v_mov_b32 v{TMP+7}, {CNT}\n    s_nop 0\n    ds_write_b32 v{TMP+7}, v{TMP+6} offset:4")
        a.raw("    s_mov_b64 exec, -1")
        return
    a.raw("    s_mov_b64 exec, 1")
    a.raw(f"    v_mov_b32 v{TMP+6}, 1\n    v_mov_b32 v{TMP+7}, 0\n    s_nop 1")
    a.raw(f"    buffer_store_byte v{TMP+6}, v{TMP+7}, s[72:75], s2 offen sc0 sc1")
    a.raw("    s_mov_b64 exec, -1")

def aug_w(a, cs, d, t0, t1):
    a(f"v_cvt_pk_bf16_f32 {t0}, {cs}, {cs}"); a(f"v_lshlrev_b32 {t1}, 16, {t0}")
    a(f"v_sub_f32 {cs}, {cs}, {t1}")
    a(f"v_cvt_pk_bf16_f32 v{d}, {cs}, {cs}"); a(f"v_lshlrev_b32 {t1}, 16, v{d}")
    a(f"v_sub_f32 {cs}, {cs}, {t1}")
    a(f"v_and_b32 {t0}, 0xffff, {t0}"); a(f"v_or_b32 v{d}, {t0}, {t1}")
    a(f"v_cvt_pk_bf16_f32 v{d+1}, {cs}, 0")
    a(f"v_mov_b32 v{d+2}, 0"); a(f"v_mov_b32 v{d+3}, 0")
def aug_x(a, negm, d):
    a(f"v_cndmask_b32 v{d}, 0, {negm}, vcc")
    a(f"v_and_b32 v{d+1}, 0xffff, v{d}")
    a(f"v_mov_b32 v{d+2}, 0"); a(f"v_mov_b32 v{d+3}, 0")

OOL={}
Asm.ool=OOL
def k1():
    a=Asm()
    a.raw(f".globl {KNAME}\n.p2align 8\n.type {KNAME},@function\n{KNAME}:")
    a("s_cmp_ge_u32 s2, 256"); a("s_cbranch_scc1 "+("K2_END" if FUSED else "K1_END"))
    stamp(a,0); stamp(a,8,True)
    a("s_load_dwordx16 s[16:31], s[0:1], 0")
    a("s_load_dwordx2 s[32:33], s[0:1], 64")
    a("s_load_dwordx4 s[12:15], s[0:1], 80")
    a("v_lshrrev_b32 v1, 6, v0"); a("v_readfirstlane_b32 s52, v1"); a("v_and_b32 v0, 63, v0")
    a("s_and_b32 s53, s52, 3"); a("s_lshr_b32 s54, s52, 2")
    a("s_and_b32 s63, s2, 7"); a("s_lshr_b32 s67, s2, 3")
    a("s_lshr_b32 s77, s67, 2"); a("s_and_b32 s68, s67, 3")
    a("s_lshr_b32 s69, s63, 1")
    a("s_mul_i32 s56, s69, 6"); a("s_add_u32 s56, s56, s77"); a("s_sub_u32 s56, s56, 2")
    a("s_lshl_b32 s70, s69, 1"); a("s_add_u32 s70, s70, s77"); a("s_add_u32 s70, s70, 24")
    a("s_cmp_lt_u32 s77, 2"); a("s_cselect_b32 s56, s70, s56")
    a("s_and_b32 s55, s63, 1"); a("s_lshl_b32 s55, s55, 2"); a("s_add_u32 s55, s55, s68")
    a(f"s_mov_b32 s76, {L.STG}")
    a("s_mov_b32 s71, 0")
    a("s_mov_b32 s66, 0x3f803f80")
    a("s_lshl_b32 s64, s52, 12")
    a("v_lshlrev_b32 v16, 4, v0")
    for r in range(17,23): a(f"v_mov_b32 v{r}, 0")
    a("s_waitcnt lgkmcnt(0)")
    srd(a,48,14,L.WS_END)
    srd(a,36,16,2048*1280)
    srd(a,72,12,256)
    a("s_mov_b32 s57, 0")
    if FUSED:
        a("s_or_b32 s63, s2, s52"); a("s_cmp_lg_u32 s63, 0"); a("s_cbranch_scc1 K1_NONONCE")
        a.raw("""    s_memrealtime s[4:5]
    s_waitcnt lgkmcnt(0)
    s_or_b32 s4, s4, 1
    s_mov_b64 exec, 1
    v_mov_b32 v1, s4
    v_mov_b32 v2, 0
    s_nop 1
    buffer_store_dword v1, v2, s[72:75], 0 offen sc0 sc1
    s_mov_b64 exec, -1""")
        a.label("K1_NONONCE")
        a("s_cmp_lg_u32 s52, 0"); a("s_cbranch_scc1 K1_NOZC")
        a.raw(f"    v_mov_b32 v1, {CNT}\n    v_mov_b32 v2, 0\n    s_nop 0\n    ds_write_b32 v1, v2\n    s_waitcnt lgkmcnt(0)")
        a.label("K1_NOZC")
        a("s_lshl_b32 s26, s55, 7"); a("s_lshl_b32 s63, s56, 2"); a("s_add_u32 s26, s26, s63")
        a("s_lshl_b32 s63, s55, 2"); a("s_add_u32 s63, s63, 1024"); a("s_cmp_eq_u32 s56, 29"); a("s_cselect_b32 s26, s63, s26")
        a("s_sub_u32 s67, s56, 30"); a("s_lshl_b32 s67, s67, 5"); a("s_add_u32 s63, s63, s67"); a("s_add_u32 s63, s63, 32")
        a("s_cmp_ge_u32 s56, 30"); a("s_cselect_b32 s26, s63, s26"); a(f"s_add_u32 s26, s26, {L.FLG}")
    a("s_cmp_lt_u32 s56, 29"); a("s_cbranch_scc1 K1_REG")
    if FUSED:
        a("s_cmp_lt_u32 s52, 8"); a("s_cbranch_scc1 K1_NR8")
        a("s_barrier")
        a("s_cmp_ge_u32 s56, 30"); a("s_cbranch_scc1 PB_G")
        a("s_barrier"); a("s_barrier")
        a("s_branch PB_G")
        a.label("K1_NR8")
    else:
        a("s_cmp_ge_u32 s52, 8"); a("s_cbranch_scc1 K1_END")
    a("s_cmp_ge_u32 s56, 30"); a("s_cbranch_scc1 K1_RELAY")
    x_dma_setup(a)
    a("s_branch K1_KV")
    a.label("K1_REG")
    a("s_cmp_ge_u32 s56, 24"); a("s_cbranch_scc1 K1_QSET")
    srd(a,40,28,640*3072); srd(a,44,30,640*3072)
    a("s_mov_b32 s69, 3072"); a("s_lshl_b32 s70, s56, 7")
    a("s_branch K1_SETDONE")
    a.label("K1_QSET")
    srd(a,40,18,640*1280); srd(a,44,18,640*1280-128,add=128)
    a("s_mov_b32 s69, 1280"); a("s_sub_u32 s70, s56, 24"); a("s_lshl_b32 s70, s70, 8")
    a.label("K1_SETDONE")
    a.settle()
    a("s_lshl_b32 s59, s69, 6")
    a("s_cmp_ge_u32 s52, 8"); a("s_cbranch_scc1 K1_LOADER")
    share_issue(a)
    a("s_bitcmp1_b32 s52, 0")
    a("s_cselect_b32 s8, s44, s40"); a("s_cselect_b32 s9, s45, s41"); a("s_cselect_b32 s10, s46, s42"); a("s_mov_b32 s11, 0x00020000")
    a("s_mul_i32 s63, s55, 80"); a("s_lshr_b32 s67, s52, 1"); a("s_mul_i32 s67, s67, 20"); a("s_add_u32 s63, s63, s67"); a("s_mul_i32 s63, s63, s69"); a("s_add_u32 s63, s63, s70")
    a("v_lshrrev_b32 v24, 3, v0"); a("v_mul_lo_u32 v24, v24, s69"); a("v_and_b32 v25, 7, v0"); a("v_lshl_add_u32 v24, v25, 4, v24")
    a("s_lshl_b32 s67, s69, 3")
    a("v_cmp_gt_u32 vcc, 32, v0"); a("v_mov_b32 v26, 0x7f000000"); a("v_cndmask_b32 v26, v26, v24, vcc")
    a(f"buffer_load_dwordx4 v[{SL+8}:{SL+11}], v24, s[8:11], s63 offen","cl"); a("s_add_u32 s63, s63, s67")
    a(f"buffer_load_dwordx4 v[{SL+12}:{SL+15}], v24, s[8:11], s63 offen","cl"); a("s_add_u32 s63, s63, s67")
    a(f"buffer_load_dwordx4 v[{SL+16}:{SL+19}], v26, s[8:11], s63 offen","cl")
    if not NOPF:
        a("s_cmp_ge_u32 s52, 3"); a("s_cbranch_scc1 K1_PFW")
        a("v_and_b32 v4, 31, v0"); a("s_lshl_b32 s63, s55, 8"); a("s_lshl_b32 s67, s77, 5"); a("s_add_u32 s63, s63, s67")
        a("v_add_u32 v4, s63, v4"); a("v_mul_u32_u24 v4, 1280, v4")
        a(f"v_lshrrev_b32 v3, 5, v0"); a(f"v_lshl_add_u32 v4, v3, 7, v4")
        a("s_mov_b32 s8, s36"); a("s_mov_b32 s9, s37"); a("s_mov_b32 s10, s38")
        a("s_lshl_b32 s4, s52, 8"); a("s_add_u32 s28, s4, 768"); a("s_cmp_eq_u32 s52, 2"); a("s_cselect_b32 s28, 0x7f000000, s28")
        a("s_branch K1_PFD")
        a.label("K1_PFW")
        a("s_bitcmp1_b32 s52, 0")
        a("s_cselect_b32 s8, s40, s44"); a("s_cselect_b32 s9, s41, s45"); a("s_mov_b32 s10, s46")
        a("v_lshrrev_b32 v4, 4, v0"); a("v_lshlrev_b32 v4, 6, v4"); a("v_and_b32 v3, 15, v0"); a("v_add_u32 v4, v4, v3")
        a("s_lshl_b32 s63, s68, 4"); a("v_add_u32 v4, s63, v4"); a("v_mul_lo_u32 v4, v4, s69")
        a("s_mul_i32 s63, s59, 6"); a("s_add_u32 s28, s70, s63"); a("s_mov_b32 s4, s70")
        a("s_cmp_lt_u32 s52, 5"); a("s_cbranch_scc1 K1_PFD")
        a("s_lshl_b32 s63, s59, 2"); a("s_add_u32 s4, s70, s63"); a("s_mov_b32 s28, 0x7f000000")
        a("s_cmp_eq_u32 s52, 7"); a("s_cselect_b32 s4, 0x7f000000, s4")
        a("v_cmp_gt_u32 vcc, 32, v0"); a("v_mov_b32 v3, 0x7f000000"); a("v_cndmask_b32 v4, v3, v4, vcc")
        a.label("K1_PFD")
        a("s_mov_b32 s11, 0x00020000")
        a.settle()
        a(f"buffer_load_dword v3, v4, s[8:11], s4 offen {NT}","pfa")
    a("s_lshl_b32 s63, s53, 6"); a("s_lshl_b32 s67, s54, 5"); a("s_add_u32 s63, s63, s67")
    xread_setup(a, "s63")
    a("s_lshl_b32 s67, s54, 13"); a("s_sub_u32 s80, 4096, s67") if False else None
    a("s_lshl_b32 s67, s54, 13"); a("s_sub_u32 s7, 4096, s67")
    a("v_lshrrev_b32 v11, 5, v0")
    a("v_and_b32 v12, 15, v0"); a("v_lshrrev_b32 v13, 2, v12")
    a("v_and_b32 v12, 3, v12")
    a("v_lshl_add_u32 v14, v11, 3, v13")
    a("v_lshlrev_b32 v14, 7, v14")
    a("v_lshrrev_b32 v15, 4, v0"); a("v_and_b32 v15, 1, v15"); a("v_lshlrev_b32 v15, 1, v15")
    a("v_lshrrev_b32 v11, 1, v12"); a("v_add_u32 v15, v15, v11")
    a("s_lshl_b32 s67, s54, 2"); a("v_add_u32 v15, s67, v15")
    a("v_lshrrev_b32 v13, 1, v13"); a("v_lshlrev_b32 v13, 2, v13"); a("v_xor_b32 v15, v15, v13")
    a("v_lshl_add_u32 v14, v15, 4, v14")
    a("v_and_b32 v12, 1, v12"); a("v_lshl_add_u32 v14, v12, 3, v14")
    a("v_add_u32 v10, 32768, v14")
    a("v_lshlrev_b32 v2, 2, v0"); a(f"s_mov_b32 s27, {L.FLG+2048}")
    a("s_cmp_eq_u32 s52, 0"); a("s_cselect_b32 s6, 4, 99"); a("s_cselect_b32 s5, 1, 99")
    a("s_lshl_b32 s58, s54, 1"); a("s_add_u32 s58, s58, s53"); a("s_and_b32 s58, s58, 3")
    def set_read_addrs(a):
        for ks in range(4):
            a(f"v_add_u32 v{11+ks}, s61, v{6+ks}")
            a(f"v_add_u32 v{56+ks}, s7, v{11+ks}")
        a("v_add_u32 v15, s61, v10")
        a(f"s_add_u32 s61, s61, {SLOT}"); a(f"s_cmp_eq_u32 s61, {3*SLOT}"); a("s_cselect_b32 s61, 0, s61")
    def reads(ks):
        st=ks&1
        R=[(f"ds_read_b128 {xf(st,0)}, v{11+ks}", f"f{st}")]
        for m in range(2):
            b=WF+st*8+m*4
            for jj in range(2):
                R.append((f"ds_read_b64_tr_b16 v[{b+2*jj}:{b+2*jj+1}], v15 offset:{m*8192+(16*ks+4*jj)*128}", f"f{st}"))
        R.insert(3,(f"ds_read_b128 {xf(st,1)}, v{56+ks}", f"f{st}"))
        return R
    a("s_mov_b32 s61, 0")
    a("s_barrier")
    stamp(a,2)
    CL=SL+8; CA=SL+20
    def cs_part(t):
        for i in range(4):
            t(f"v_lshlrev_b32 v{CA+2*i}, 16, v{CL+i}"); t(f"v_and_b32 v{CA+2*i+1}, 0xffff0000, v{CL+i}")
        for r in (1,2):
            for i in range(4):
                A=TMP+4+2*(i&1)
                t(f"v_lshlrev_b32 v{A}, 16, v{CL+4*r+i}"); t(f"v_and_b32 v{A+1}, 0xffff0000, v{CL+4*r+i}")
                t(f"v_add_f32 v{CA+2*i}, v{CA+2*i}, v{A}"); t(f"v_add_f32 v{CA+2*i+1}, v{CA+2*i+1}, v{A+1}")
        for i in range(8): t(f"v_add_f32_dpp v{CA+i}, v{CA+i}, v{CA+i} row_ror:8 row_mask:0xf bank_mask:0xf")
        for op in ("v_permlane16_swap_b32","v_permlane32_swap_b32"):
            for i in range(8): t(f"v_mov_b32 v{CL+i}, v{CA+i}")
            for i in range(8): t(f"{op} v{CA+i}, v{CL+i}")
            for i in range(8): t(f"v_add_f32 v{CA+i}, v{CA+i}, v{CL+i}")
        t("s_and_b32 s63, s52, 1"); t("s_lshl_b32 s63, s63, 10"); t("s_lshr_b32 s67, s52, 1"); t("s_lshl_b32 s67, s67, 2"); t("s_add_u32 s63, s63, s67"); t(f"s_add_u32 s63, s63, {CSP}")
        t("v_and_b32 v5, 7, v0"); t("v_lshlrev_b32 v5, 7, v5"); t("v_add_u32 v5, s63, v5")
        for e in range(8): t(f"ds_write_b32 v5, v{CA+e} offset:{16*e}")
    def cs_pub(a):
        a("s_cmp_ge_u32 s52, 2"); a("s_cbranch_scc1 K1_CSPUB")
        a("s_lshl_b32 s63, s52, 10"); a(f"s_add_u32 s63, s63, {CSP}"); a("v_add_u32 v5, s63, v16")
        a.raw(f"    ds_read_b128 v[{CA}:{CA+3}], v5")
        a("s_lshl_b32 s63, s56, 12"); a("s_lshl_b32 s67, s52, 11"); a("s_add_u32 s63, s63, s67"); a("s_lshl_b32 s67, s55, 2"); a("s_add_u32 s63, s63, s67"); a(f"s_add_u32 s63, s63, {L.CSG}")
        a("v_lshlrev_b32 v5, 5, v0")
        a.raw("    s_waitcnt lgkmcnt(0)")
        a(f"v_add_f32 v{CA}, v{CA}, v{CA+1}"); a(f"v_add_f32 v{CA+2}, v{CA+2}, v{CA+3}"); a(f"v_add_f32 v{CA}, v{CA}, v{CA+2}")
        a.raw(f"    buffer_store_dword v{CA}, v5, s[48:51], s63 offen sc0 sc1")
        if FUSED: a.raw("    v_mov_b32 v4, 0\n    s_nop 0\n    buffer_load_dword v3, v4, s[72:75], 0 offen sc1")
        a.label("K1_CSPUB")
        a.settle()
    set_read_addrs(a)
    for t,tag in reads(0): a(t,tag)
    uid=[0]
    def cswrite(t):
        t(f"v_and_b32 v{TMP}, 31, v0")
        t(f"v_lshlrev_b32 v{TMP+2}, 6, v{TMP}"); t("s_lshl_b32 s63, s54, 12"); t(f"s_add_u32 s63, s63, {CSP}"); t(f"v_add_u32 v{TMP+2}, s63, v{TMP+2}")
    def staddr(t):
        t(f"v_and_b32 v{TMP}, 31, v0")
        t("s_lshl_b32 s63, s55, 8"); t("s_lshl_b32 s67, s53, 6"); t("s_add_u32 s63, s63, s67"); t("s_lshl_b32 s67, s54, 5"); t("s_add_u32 s63, s63, s67")
        t(f"v_add_u32 v{TMP}, s63, v{TMP}"); t(f"v_lshlrev_b32 v{TMP}, 3, v{TMP}"); t(f"v_xor_b32 v{TMP+1}, 256, v{TMP}")
    AX=(8,12); AW=(SL+4,SL+20)
    def aug_xpart(t):
        aug_x(t,"v60",AX[0]); aug_x(t,"v62",AX[1])
    def aug_wpart(t):
        for m in range(2):
            b=SL+16*m
            for st_ in (1,2,4):
                for i in range(0,8,2*st_): t(f"v_add_f32 v{b+i}, v{b+i}, v{b+i+st_}")
            aug_w(t, f"v{b}", AW[m], f"v{b+1}", f"v{b+2}")
    def stage(a, first, dma_tag, wait_tag, nxt, mode=0, fill=None, sig=False, post=None):
        for ks in range(4):
            st=ks&1
            if ks==3:
                a.wait_lg0()
                if mode==2 and FUSED: a("s_barrier")
                if nxt:
                    if wait_tag: a.wait_vm(wait_tag)
                    if mode==1:
                        a("s_cmp_lg_u32 s52, 0"); a("s_cbranch_scc1 K1_POLLOK")
                        a.label("K1_POLL")
                        if FUSED:
                            a.raw("""    s_waitcnt vmcnt(0)
    v_xor_b32 v160, s3, v160
    v_xor_b32 v161, s3, v161
    v_xor_b32 v162, s3, v162
    v_xor_b32 v163, s3, v163
    v_or3_b32 v160, v160, v161, v162
    v_or_b32 v160, v160, v163
    v_cmp_eq_u32 vcc, 0, v160
    s_nop 3
    s_cmp_eq_u64 vcc, exec
    s_cbranch_scc1 K1_POLLOK""")
                            a.raw(f"    s_sleep 2\n    buffer_load_dwordx4 v[160:163], v16, s[48:51], s27 offen sc1\n    s_branch K1_POLL")
                        else:
                            a.raw("    s_waitcnt vmcnt(0)\n    v_cmp_eq_u32 vcc, 0x01010101, v1\n    s_nop 3\n    s_cmp_eq_u64 vcc, exec\n    s_cbranch_scc1 K1_POLLOK")
                            a.raw(f"    s_sleep 2\n    buffer_load_dword v1, v2, s[72:75], 0 offen sc1\n    s_branch K1_POLL")
                        a.label("K1_POLLOK")
                    a("s_barrier")
                    if post: post(a)
                    if sig:
                        uid[0]+=1
                        a("s_cmp_eq_u32 s62, s6")
                        a.cond_block(f"s_cbranch_scc0 K1_SG{uid[0]}", f"K1_SG{uid[0]}", signal_pre)
                        a("s_cmp_eq_u32 s62, s5")
                        def pl(t): t.raw("    buffer_load_dwordx4 v[160:163], v16, s[48:51], s27 offen sc1" if FUSED else "    buffer_load_dword v1, v2, s[72:75], 0 offen sc1")
                        a.cond_block(f"s_cbranch_scc0 K1_PL{uid[0]}", f"K1_PL{uid[0]}", pl)
                    set_read_addrs(a)
                if mode==1:
                    for o in ops_of(staddr): a(o)
                    a(f"buffer_load_dwordx2 v[60:61], v{TMP}, s[48:51], s76 offen sc1","st")
                    a(f"buffer_load_dwordx2 v[62:63], v{TMP+1}, s[48:51], s76 offen sc1","st")
                    a(f"v_and_b32 v{TMP}, 31, v0"); a(f"v_lshlrev_b32 v{TMP}, 5, v{TMP}")
                    a("s_lshl_b32 s63, s56, 12"); a("s_lshl_b32 s67, s54, 10"); a("s_add_u32 s63, s63, s67"); a(f"s_add_u32 s63, s63, {L.CSG}")
                    for m in range(2):
                        for i in range(2): a(f"buffer_load_dwordx4 v[{SL+16*m+4*i}:{SL+16*m+4*i+3}], v{TMP}, s[48:51], s63 offen offset:{2048*m+16*i} sc1","st")
                R = reads(0) if nxt else []
            else:
                a.wait_lg(f"f{st}")
                R = reads(ks+1)
            F=[]
            if mode==2:
                if ks==0:
                    a.wait_vm0(); AUGW=ops_of(aug_wpart)
                if ks<3:
                    n=(len(AUGW)+2-ks)//(3-ks); F=AUGW[:n]; AUGW=AUGW[n:]
                if ks==3: F=ops_of(aug_xpart)
            elif fill is not None:
                n=(len(fill)+3-ks)//(4-ks) if ks<3 else len(fill)
                F=fill[:n]; del fill[:n]
            nr=(len(R)+2)//3; nf=(len(F)+3)//4
            k=0
            for ts,m in ((0,0),(0,1),(1,0),(1,1)):
                c = "0" if (first and ks==0) else acc(ts,m)
                if not NOMF: a(f"v_mfma_f32_32x32x16_bf16 {acc(ts,m)}, {wf(st,m)}, {xf(st,ts)}, {c}")
                for t,tag in ([] if NOREAD else R[nr*k:nr*k+nr]): a(t,tag)
                if mode==2 and ks==3 and k==0: a.wait_vm0(); a("v_cmp_gt_u32 vcc, 32, v0")
                for d in F[nf*k:nf*k+nf]:
                    for dd in d.split('\n'): a(dd, "ss" if dd.startswith("buffer_store") else None)
                k+=1
    a.wait_vm("cl")
    class Fill:
        def __init__(s,parts): s.p=parts; s.i=0
        def __len__(s): return len(s.p[s.i])*(4-s.i) if s.i<3 else len(s.p[s.i])
        def __getitem__(s,sl): return list(s.p[s.i])
        def __delitem__(s,sl): s.i+=1
    FA=ops_of(cs_part); FB=stat_ops(range(SL,SL+8))+ops_of(share_finish)
    n=(len(FA)+6)//7
    stage(a, True, None, None, True, fill=Fill([FA[0:n],FA[n:2*n],FA[2*n:3*n],FA[3*n:4*n]]))
    stamp(a,1)
    stage(a, False, None, None, True, fill=Fill([FA[4*n:5*n],FA[5*n:6*n],FA[6*n:],[]]), post=cs_pub)
    stage(a, False, None, None, True, fill=FB)
    a("s_mov_b32 s62, 4")
    a.vm=["ss"]
    def body(t):
        stage(t, False, None, "ss", True, 0, sig=True)
        t.vm=["ss"]
    def tail(t):
        t("s_sub_u32 s62, s62, 1"); t("s_cmp_lg_u32 s62, 0"); t("s_cbranch_scc1 K1_LOOP")
    a.loop("K1_LOOP", body, tail)
    stamp(a,4)
    stage(a, False, None, None, True, 1)
    stamp(a,3); stampb(a,6)
    stage(a, False, None, None, True)
    stamp(a,6)
    stage(a, False, None, None, False, 2)
    stamp(a,5)
    for ts in range(2):
        for m in range(2):
            a(f"v_mfma_f32_32x32x16_bf16 {acc(ts,m)}, v[{AW[m]}:{AW[m]+3}], v[{AX[ts]}:{AX[ts]+3}], {acc(ts,m)}")
    a("s_lshl_b32 s4, s55, 3"); a("s_lshl_b32 s63, s53, 1"); a("s_add_u32 s4, s4, s63"); a("s_add_u32 s4, s4, s54")
    a("s_xor_b32 s5, s4, 1")
    a("s_cmp_ge_u32 s56, 24"); a("s_cbranch_scc1 K1_QEPI")
    hz=a.hz_get()
    a("s_lshl_b32 s63, s56, 1"); a("s_add_u32 s63, s63, s54"); a("s_lshl_b32 s63, s63, 11")
    a(f"s_add_u32 s63, s63, {L.HF}")
    for ts in range(2):
        a(f"s_mul_i32 s{8+ts}, s{4+ts}, {96*1024}"); a(f"s_add_u32 s{8+ts}, s{8+ts}, s63")
    for ts in range(2):
        rv = "v61" if ts==0 else "v63"
        a(f"v_mul_f32 v24, 0x{f2u(-LOG2E):08x}, {rv}"); a(f"v_mul_f32 v25, {rv}, {rv}")
        G=ACC+ts*32; U=G+16
        for half in range(2):
            idx=range(8*half,8*half+8)
            for i in idx: a(f"v_mul_f32 v{28+i%8}, v24, v{G+i}")
            for i in idx: a(f"v_exp_f32 v{28+i%8}, v{28+i%8}")
            for i in idx: a(f"v_mul_f32 v{G+i}, v{G+i}, v{U+i}")
            for i in idx: a(f"v_add_f32 v{28+i%8}, 1.0, v{28+i%8}")
            for i in idx: a(f"v_rcp_f32 v{28+i%8}, v{28+i%8}")
            for i in idx: a(f"v_mul_f32 v{G+i}, v25, v{G+i}")
            for i in idx: a(f"v_mul_f32 v{G+i}, v{G+i}, v{28+i%8}")
            d=36+4*((2*ts+half)&3)
            for i in range(4): a(f"v_cvt_pk_bf16_f32 v{d+i}, v{G+8*half+2*i}, v{G+8*half+2*i+1}")
            a(f"buffer_store_dwordx4 v[{d}:{d+3}], v16, s[48:51], s{8+ts} offen offset:{1024*half}")
    a("s_branch K1_END")
    a.label("K1_QEPI")
    a.hz_set(hz)
    a("s_sub_u32 s63, s56, 24"); a("s_lshl_b32 s63, s63, 2"); a("s_add_u32 s63, s63, s54"); a("s_lshl_b32 s63, s63, 11")
    for ts in range(2):
        a(f"s_mul_i32 s{8+ts}, s{4+ts}, {40*1024}"); a(f"s_add_u32 s{8+ts}, s{8+ts}, s63")
        a(f"s_add_u32 s{10+ts}, s{8+ts}, 4096")
    qs=(20**-0.5)*LOG2E
    n=0
    for ts in range(2):
        rv = "v61" if ts==0 else "v63"
        a(f"v_mul_f32 v24, 0x{f2u(qs):08x}, {rv}")
        for m in range(2):
            B=ACC+(ts*2+m)*16
            for half in range(2):
                for i in range(8): a(f"v_mul_f32 v{B+8*half+i}, v24, v{B+8*half+i}")
                d=28+4*(n&7); n+=1
                for i in range(4): a(f"v_cvt_pk_bf16_f32 v{d+i}, v{B+8*half+2*i}, v{B+8*half+2*i+1}")
                a(f"buffer_store_dwordx4 v[{d}:{d+3}], v16, s[48:51], s{8+2*m+ts} offen offset:{1024*half}")
    a("s_branch K1_END")

    live=set(l.split()[-1] for l in a.lines if 's_cbranch_scc1 K1_CS' in l)
    for lab,lines in OOL.items():
        if lab in live:
            a.label(lab); a.lines+=lines
    a.label("K1_LOADER")
    a.ev={}; a.vm=[]; a.lg=[]
    if os.environ.get('LPRIO','0')!='0': a("s_setprio "+os.environ['LPRIO'])
    a("s_sub_u32 s53, s52, 8")
    a("s_and_b32 s54, s53, 1"); a("s_lshr_b32 s4, s53, 1")
    a("v_lshrrev_b32 v1, 3, v0"); a("v_mul_u32_u24 v1, 1280, v1")
    a("v_and_b32 v2, 7, v0"); a("v_lshrrev_b32 v3, 4, v0"); a("v_xor_b32 v2, v2, v3"); a("v_xor_b32 v4, 4, v2")
    a("v_lshl_add_u32 v5, v2, 4, v1"); a("v_lshl_add_u32 v6, v4, 4, v1")
    a("v_mov_b32 v1, v5"); a(f"v_add_u32 v2, {9216}, v6"); a(f"v_add_u32 v3, {2*9216}, v5"); a(f"v_add_u32 v4, {3*9216}, v6")
    a("s_lshl_b32 s57, s55, 8"); a("s_lshl_b32 s63, s53, 6"); a("s_add_u32 s57, s57, s63"); a("s_mul_i32 s57, s57, 1280")
    a("v_lshrrev_b32 v5, 3, v0"); a("v_mul_lo_u32 v5, v5, s69")
    a("v_lshrrev_b32 v10, 4, v0"); a("v_and_b32 v10, 1, v10"); a("v_lshlrev_b32 v10, 2, v10")
    a("v_and_b32 v11, 7, v0"); a("v_xor_b32 v10, v10, v11"); a("v_lshl_add_u32 v5, v10, 4, v5")
    a("s_lshl_b32 s63, s69, 3"); a("s_sub_u32 s63, s63, 1024")
    a("v_add_u32 v6, s63, v5"); a("v_add_u32 v7, s63, v6"); a("v_add_u32 v8, s63, v7")
    a("s_cmp_eq_u32 s54, 0")
    a("s_cselect_b32 s8, s40, s44"); a("s_cselect_b32 s9, s41, s45"); a("s_cselect_b32 s10, s42, s46"); a("s_mov_b32 s11, 0x00020000")
    a("s_lshl_b32 s63, s69, 5"); a("s_mul_i32 s63, s63, s4"); a("s_add_u32 s58, s70, s63")
    a("s_lshl_b32 s64, s53, 13")
    a("s_lshl_b32 s66, s54, 13"); a("s_lshl_b32 s63, s4, 12"); a("s_add_u32 s66, s66, s63"); a("s_add_u32 s66, s66, 32768")
    a("v_and_b32 v9, 7, v0"); a("s_lshl_b32 s63, s68, 4"); a("s_lshl_b32 s67, s4, 3"); a("s_add_u32 s63, s63, s67"); a("v_add_u32 v9, s63, v9"); a("v_mul_lo_u32 v9, v9, s69")
    a("v_cmp_gt_u32 vcc, 8, v0")
    a("s_lshl_b32 s5, s59, 1"); a("s_add_u32 s5, s5, s70"); a("s_mov_b32 s6, s59")
    a("v_mov_b32 v11, 0x7fffff00"); a("v_cndmask_b32 v9, v11, v9, vcc")
    for r in range(24,32): a(f"v_mov_b32 v{r}, 0")
    a("v_lshrrev_b32 v15, 2, v10"); a("v_lshlrev_b32 v15, 12, v15"); a("v_and_b32 v14, 3, v10"); a("v_lshl_add_u32 v15, v14, 9, v15")
    a("v_lshrrev_b32 v14, 3, v0"); a("v_lshl_add_u32 v15, v14, 2, v15")
    a("s_lshl_b32 s63, s54, 11"); a("s_lshl_b32 s67, s4, 5"); a("s_add_u32 s63, s63, s67"); a(f"s_add_u32 s63, s63, {CSP}"); a("v_add_u32 v15, s63, v15")
    a("s_mov_b32 s60, 0"); a("s_mov_b32 s61, 0")
    PF2=os.environ.get('PF2','0')=='1'
    if PF2:
        a("v_and_b32 v14, 7, v0"); a("s_lshl_b32 s63, s55, 8"); a("s_lshl_b32 s67, s77, 5"); a("s_add_u32 s63, s63, s67"); a("s_lshl_b32 s67, s53, 3"); a("s_add_u32 s63, s63, s67")
        a("v_add_u32 v14, s63, v14"); a("v_lshrrev_b32 v13, 3, v0"); a("v_lshlrev_b32 v13, 6, v13"); a("v_sub_u32 v14, v14, v13"); a("v_mul_u32_u24 v14, 1280, v14")
        a("s_and_b32 s63, s77, 6"); a("s_cmp_eq_u32 s63, 2"); a("s_cselect_b32 s63, 16, 8")
        a("v_cmp_gt_u32 vcc, s63, v0"); a("v_cndmask_b32 v14, v11, v14, vcc")
        a(f"s_mov_b32 s7, {128*int(os.environ.get('PFD','2'))}")
        a(f"s_mul_i32 s5, s59, {int(os.environ.get('PFD','2'))}"); a("s_add_u32 s5, s5, s70")
    def pf(a, tag):
        if not PF2: return
        a(f"buffer_load_dword v12, v9, s[8:11], s5 offen", tag); a("s_add_u32 s5, s5, s6")
        a(f"buffer_load_dword v12, v14, s[36:39], s7 offen", tag); a("s_add_u32 s7, s7, 128")
    def ldma(a, tag):
        a("s_add_u32 m0, s60, s66")
        a("s_nop 0")
        for e in range(4): a(f"buffer_load_dwordx4 v{5+e}, s[8:11], s58 offen offset:{1024*e} {NT} lds", tag)
        for gq in range(2):
            a(f"s_add_u32 s63, s64, {4096*gq}"); a("s_add_u32 m0, s60, s63")
            a(f"s_add_u32 s67, s57, {40960*gq}")
            for e in range(4): a(f"buffer_load_dwordx4 v{1+e}, s[36:39], s67 offen offset:{1024*e} {NT} lds", tag)
        a("s_add_u32 s57, s57, 128"); a("s_add_u32 s58, s58, s59")
        a(f"s_add_u32 s60, s60, {SLOT}"); a(f"s_cmp_eq_u32 s60, {3*SLOT}"); a("s_cselect_b32 s60, 0, s60")
        pf(a, tag)
    def csread(a):
        a("s_add_u32 s63, s61, s66"); a("v_add_u32 v13, s63, v16")
        for e in range(4): a(f"ds_read_b128 v[{32+4*e}:{35+4*e}], v13 offset:{1024*e}")
        a(f"s_add_u32 s61, s61, {SLOT}"); a(f"s_cmp_eq_u32 s61, {3*SLOT}"); a("s_cselect_b32 s61, 0, s61")
    def csadd(a):
        a.wait_lg0()
        if NOCS: return
        for e in range(4):
            for i in range(4):
                r=32+4*e+i; A=48+2*(i&1)
                a(f"v_lshlrev_b32 v{A}, 16, v{r}"); a(f"v_and_b32 v{A+1}, 0xffff0000, v{r}")
                a(f"v_add_f32 v{24+2*i}, v{24+2*i}, v{A}"); a(f"v_add_f32 v{25+2*i}, v{25+2*i}, v{A+1}")
    def ldma2(a, tag):
        n=len(a.vm); ldma(a, tag)
        for i in range(4): a.vm[n+i]=tag+"w"
    ldma2(a,"d0"); ldma2(a,"A")
    a.wait_vm("d0"); a("s_barrier")
    ldma2(a,"B")
    a("s_mov_b32 s62, 7")
    ren={"B":"A","C":"B","Bw":"Aw","Cw":"Bw","Aw":"Aw"}
    def lbody(t):
        t.wait_vm("A"); t("s_barrier")
        ldma2(t,"C")
        t.vm=[ren[x] for x in t.vm]
    def ltail(t):
        t("s_sub_u32 s62, s62, 1"); t("s_cmp_lg_u32 s62, 0"); t("s_cbranch_scc1 K1_LLOOP")
    a.loop("K1_LLOOP", lbody, ltail)
    if FUSED:
        a("v_and_b32 v3, 7, v0"); a("v_lshlrev_b32 v3, 2, v3"); a(f"s_mov_b32 s27, {L.FLG+1024}"); a("v_mov_b32 v5, 0")
        a("buffer_load_dword v6, v5, s[72:75], 0 offen sc1"); a("buffer_load_dword v4, v3, s[48:51], s27 offen sc1")
    a.wait_vm("A"); a("s_barrier")
    if FUSED:
        a.wait_vm0()
        a("v_readfirstlane_b32 s3, v6")
    a.wait_vm("B")
    a("s_barrier")
    if FUSED:
        a("s_cmp_lg_u32 s3, 0"); a("s_cbranch_scc1 PB_G2"); a("s_branch PB_G")
    else: a("s_endpgm")

    def share_now(a, lab):
        share_issue(a)
        a.wait_vm0()
        for i in range(8):
            a(f"v_dot2_f32_bf16 v{17+(i&1)}, v{SL+i}, s66, v{17+(i&1)}")
            a(f"v_dot2_f32_bf16 v{19+(i&1)}, v{SL+i}, v{SL+i}, v{19+(i&1)}")
        share_finish(a)
        a.wait_vm0(); a("s_barrier")
        a("s_cmp_eq_u32 s52, 0")
        a.cond_block(f"s_cbranch_scc0 {lab}", lab, signal)
        for r in range(17,21): a(f"v_mov_b32 v{r}, 0")

    a.label("K1_KV")
    a.ev={}; a.vm=[]; a.lg=[]
    srd(a,40,20,25600); srd(a,44,22,25600)
    a("s_lshl_b32 s63, s52, 10")
    for m in range(4):
        if m==3:
            a("s_cmp_ge_u32 s52, 4"); a("s_cbranch_scc1 K1_KV_W3")
        a(f"s_add_u32 s67, s63, {8192*m}")
        a(f"s_add_u32 m0, s67, {KV_WK}")
        a("s_nop 0")
        a(f"buffer_load_dwordx4 v16, s[40:43], s67 offen {NT} lds", "w")
        a(f"s_add_u32 m0, s67, {KV_WV}")
        a("s_nop 0")
        a(f"buffer_load_dwordx4 v16, s[44:47], s67 offen {NT} lds", "w")
    a.label("K1_KV_W3")
    def dmak(a, tag):
        x_dma(a, tag, "s60")
        a("s_add_u32 s57, s57, 128")
        a("s_add_u32 s60, s60, 32768"); a(f"s_cmp_eq_u32 s60, {3*32768}"); a("s_cselect_b32 s60, 0, s60")
    a("s_mov_b32 s60, 0")
    for s in range(3): dmak(a, f"d{s}")
    share_now(a,"K1_KVSG")
    a("s_lshl_b32 s63, s52, 5")
    xread_setup(a, "s63")
    a("v_lshrrev_b32 v11, 5, v0"); a("v_and_b32 v12, 15, v0"); a("v_lshrrev_b32 v13, 2, v12"); a("v_and_b32 v12, 3, v12")
    a("v_lshl_add_u32 v14, v11, 3, v13"); a("v_mul_u32_u24 v14, 40, v14")
    a("v_lshrrev_b32 v15, 4, v0"); a("v_and_b32 v15, 1, v15"); a("v_lshl_add_u32 v14, v15, 5, v14")
    a("v_lshl_add_u32 v14, v12, 3, v14"); a(f"v_add_u32 v15, {KV_WK}, v14")
    for r in range(64,96): a(f"v_mov_b32 v{r}, 0")
    a("s_mov_b32 s61, 0")
    def set_ra(a):
        for ks in range(4): a(f"v_add_u32 v{11+ks}, s61, v{6+ks}")
        a("s_add_u32 s61, s61, 32768"); a(f"s_cmp_eq_u32 s61, {3*32768}"); a("s_cselect_b32 s61, 0, s61")
    def kreads(ks):
        st=ks&1; R=[(f"ds_read_b128 {xf(st,0)}, v{11+ks}", f"f{st}")]
        for m in range(2):
            b=WF+st*8+m*4
            for jj in range(2):
                R.append((f"ds_read_b64_tr_b16 v[{b+2*jj}:{b+2*jj+1}], v15 offset:{m*(KV_WV-KV_WK)+(16*ks+4*jj)*40}", f"f{st}"))
        return R
    set_ra(a)
    for t,tag in kreads(0): a(t,tag)
    def kstage(a, dma_tag, wait_tag, nxt):
        for ks in range(4):
            st=ks&1
            if ks==3:
                a.wait_lg0()
                if nxt:
                    a.wait_vm(wait_tag)
                    if dma_tag: dmak(a, dma_tag)
                    set_ra(a)
                    a("v_add_u32 v15, 2560, v15")
                R = kreads(0) if nxt else []
            else:
                a.wait_lg(f"f{st}"); R=kreads(ks+1)
            xb=XF+st*8
            a(f"v_mfma_f32_32x32x16_bf16 v[64:79], {wf(st,0)}, {xf(st,0)}, v[64:79]")
            for t,tag in R[:3]: a(t,tag)
            a(f"v_mfma_f32_32x32x16_bf16 v[80:95], {xf(st,0)}, {wf(st,1)}, v[80:95]")
            for t,tag in R[3:]: a(t,tag)
            if not FUSED:
                for o in stat_ops(range(xb,xb+4)): a(o)
            uid[0]+=1
            lab=f"K1_KCS{uid[0]}"
            def cs(a):
                for o in cs_ops([(WF+st*8+m*4+i,21+m) for i in range(4) for m in range(2)]): a(o)
            a(f"s_cmp_eq_u32 s5, {ks}")
            a.cond_block(f"s_cbranch_scc0 {lab}", lab, cs)
        a("s_xor_b32 s5, s5, s6")
    a("s_xor_b32 s6, s53, 0xff"); a("s_cmp_eq_u32 s54, 0"); a("s_cselect_b32 s5, s53, 0xff")
    a.vm=["A"]*4+["B"]*4
    def kbody(t):
        kstage(t,"C","A",True); t.vm=[{"B":"A","C":"B"}[x] for x in t.vm]
    def ktail(t):
        t("s_sub_u32 s62, s62, 1"); t("s_cmp_lg_u32 s62, 0"); t("s_cbranch_scc1 K1_KVLOOP")
    a("s_mov_b32 s62, 7")
    a.loop("K1_KVLOOP", kbody, ktail)
    kstage(a,None,"A",True); kstage(a,None,"B",True); kstage(a,None,None,False)
    if FUSED:
        a("v_and_b32 v24, 31, v0")
        a("v_lshlrev_b32 v26, 6, v24"); a("v_lshrrev_b32 v27, 5, v0"); a("s_lshl_b32 s67, s52, 1"); a("v_add_u32 v27, s67, v27")
        a("v_lshl_add_u32 v27, v27, 2, v26")
        a(f"s_mov_b32 s27, {L.FLG+2048}")
        a("s_cmp_lg_u32 s52, 0"); a("s_cbranch_scc1 K1_KVPOK")
        a.raw("""K1_KVP:
    buffer_load_dwordx4 v[160:163], v16, s[48:51], s27 offen sc1
    s_waitcnt vmcnt(0)
    v_xor_b32 v160, s3, v160
    v_xor_b32 v161, s3, v161
    v_xor_b32 v162, s3, v162
    v_xor_b32 v163, s3, v163
    v_or3_b32 v160, v160, v161, v162
    v_or_b32 v160, v160, v163
    v_cmp_eq_u32 vcc, 0, v160
    s_nop 3
    s_cmp_eq_u64 vcc, exec
    s_cbranch_scc1 K1_KVPOK
    s_sleep 2
    s_branch K1_KVP""")
        a.label("K1_KVPOK")
        a.settle()
        a.wait_lg0(); a("s_barrier")
        a("s_lshl_b32 s63, s55, 8"); a("s_lshl_b32 s67, s52, 5"); a("s_add_u32 s63, s63, s67"); a("v_add_u32 v25, s63, v24"); a("v_lshlrev_b32 v25, 3, v25")
        a("buffer_load_dwordx2 v[60:61], v25, s[48:51], s76 offen sc1","kst")
        a("s_lshl_b32 s63, s52, 7"); a(f"s_add_u32 s63, s63, {KV_ST}"); a("v_lshlrev_b32 v25, 2, v24"); a("v_add_u32 v25, s63, v25")
    else:
        a("v_add_f32 v17, v17, v18"); a("v_add_f32 v19, v19, v20")
        a("v_mov_b32 v24, v17"); a("v_mov_b32 v25, v19")
        a("v_permlane32_swap_b32 v17, v24"); a("v_permlane32_swap_b32 v19, v25")
        a("v_add_f32 v17, v17, v24"); a("v_add_f32 v19, v19, v25")
        stats_math(a,"v17","v19","v60","v61")
        a("v_and_b32 v24, 31, v0"); a("s_lshl_b32 s63, s52, 7"); a(f"s_add_u32 s63, s63, {KV_ST}"); a("v_lshlrev_b32 v25, 2, v24"); a("v_add_u32 v25, s63, v25")
        a(f"ds_write_b32 v25, v61")
        a("v_lshlrev_b32 v26, 6, v24"); a("v_lshrrev_b32 v27, 5, v0"); a("s_lshl_b32 s67, s52, 1"); a("v_add_u32 v27, s67, v27")
        a("v_lshl_add_u32 v27, v27, 2, v26")
        a.wait_lg0(); a("s_barrier")
    a("ds_write_b32 v27, v21"); a("ds_write_b32 v27, v22 offset:2048")
    a.wait_lg0(); a("s_barrier")
    for m in range(2):
        for i in range(4): a(f"ds_read_b128 v[{112+16*m+4*i}:{115+16*m+4*i}], v26 offset:{2048*m+16*i}")
    a.wait_lg0()
    for m in range(2):
        b=112+16*m
        for st_ in (1,2,4,8):
            for i in range(0,16,2*st_): a(f"v_add_f32 v{b+i}, v{b+i}, v{b+i+st_}")
        a(f"v_mov_b32 v{21+m}, v{b}")
    if FUSED:
        a.wait_vm("kst"); a("ds_write_b32 v25, v61")
    a("v_cmp_gt_u32 vcc, 32, v0")
    aug_x(a,"v60",44)
    aug_w(a,"v21",48,"v26","v27"); aug_w(a,"v22",52,"v26","v27")
    a("v_mfma_f32_32x32x16_bf16 v[64:79], v[48:51], v[44:47], v[64:79]")
    a("v_mfma_f32_32x32x16_bf16 v[80:95], v[44:47], v[52:55], v[80:95]")
    a("v_lshrrev_b32 v26, 5, v0"); a("v_lshlrev_b32 v26, 4, v26"); a("v_add_u32 v26, s63, v26")
    a.wait_lg0()
    for g in range(4): a(f"ds_read_b128 v[{28+4*g}:{31+4*g}], v26 offset:{32*g}")
    a("s_lshl_b32 s4, s55, 3"); a("s_add_u32 s4, s4, s52"); a(f"s_mul_i32 s5, s4, {L.REC}"); a(f"s_add_u32 s5, s5, {L.KV}")
    for i in range(12): a(f"v_mul_f32 v{64+i}, v61, v{64+i}")
    for i in range(6): a(f"v_cvt_pk_bf16_f32 v{96+i}, v{64+2*i}, v{65+2*i}")
    a("buffer_store_dwordx4 v[96:99], v16, s[48:51], s5 offen")
    a("v_cndmask_b32 v100, 0, v100, vcc"); a("v_cndmask_b32 v101, 0, v101, vcc")
    a("v_mov_b32 v102, 0")
    for i in range(6): a(f"v_dot2_f32_bf16 v102, v{96+i}, v{96+i}, v102")
    a("v_lshlrev_b32 v27, 3, v0")
    a("s_and_saveexec_b64 s[78:79], vcc")
    a("buffer_store_dwordx2 v[100:101], v27, s[48:51], s5 offen offset:1024")
    a("s_mov_b64 exec, s[78:79]")
    a("v_mov_b32 v103, v102"); a("v_permlane32_swap_b32 v102, v103"); a("v_add_f32 v102, v102, v103")
    a.wait_lg0()
    for x in (1,2,4,8,16):
        a(f"ds_swizzle_b32 v103, v102 offset:0x{(x<<10)|0x1f:04x}"); a.wait_lg0(); a("v_max_f32 v102, v102, v103")
    a("s_lshl_b32 s6, s4, 2"); a(f"s_add_u32 s6, s6, {L.KN}")
    a("v_mov_b32 v104, 0")
    a("v_cmp_eq_u32 vcc, 0, v0")
    a("s_and_saveexec_b64 s[78:79], vcc")
    a("buffer_store_dword v102, v104, s[48:51], s6 offen")
    a("s_mov_b64 exec, s[78:79]")
    for i in range(16): a(f"v_mul_f32 v{80+i}, v{28+i}, v{80+i}")
    for i in range(8): a(f"v_cvt_pk_bf16_f32 v{104+i}, v{80+2*i}, v{81+2*i}")
    a("v_lshrrev_b32 v26, 5, v0"); a("v_mul_u32_u24 v26, 336, v26"); a("v_lshl_add_u32 v26, v24, 4, v26")
    a("v_cmp_gt_u32 vcc, 32, v0"); a("v_mov_b32 v27, 0x3f803f80"); a("v_cndmask_b32 v27, 0, v27, vcc")
    a("v_cmp_gt_u32 vcc, 20, v24")
    for i in range(8): a(f"v_cndmask_b32 v{104+i}, v27, v{104+i}, vcc")
    a("v_cmp_gt_u32 vcc, 21, v24")
    a("s_and_saveexec_b64 s[78:79], vcc")
    a("buffer_store_dwordx4 v[104:107], v26, s[48:51], s5 offen offset:1280")
    a("buffer_store_dwordx4 v[108:111], v26, s[48:51], s5 offen offset:1952")
    a("s_mov_b64 exec, s[78:79]")
    a("s_branch K1_ENDL")

    a.label("K1_RELAY")
    a.ev={}; a.vm=[]; a.lg=[]
    a("s_sub_u32 s70, s56, 30"); a("s_lshl_b32 s70, s70, 3"); a("s_add_u32 s70, s70, s55")
    a("s_lshl_b32 s70, s70, 1"); a("s_add_u32 s70, s70, s54")
    a("s_mul_i32 s69, s53, 320")
    for i in range(5):
        a(f"v_add_u32 v10, {64*i}, v0"); a("v_mul_u32_u24 v11, 3277, v10"); a("v_lshrrev_b32 v11, 16, v11")
        a("v_mul_u32_u24 v12, 20, v11"); a("v_sub_u32 v12, v10, v12")
        a("v_lshlrev_b32 v12, 4, v12"); a("v_add_u32 v12, s69, v12")
        a("v_mul_u32_u24 v13, 1280, v11"); a(f"v_add_u32 v{60+i}, v13, v12")
        a("v_lshrrev_b32 v13, 3, v11"); a("v_mul_u32_u24 v13, 80, v13")
        a("v_bfe_u32 v14, v11, 2, 1"); a("v_mul_u32_u24 v14, 20, v14"); a("v_and_b32 v15, 3, v11")
        a("v_add3_u32 v13, v13, v14, v15"); a("v_mul_u32_u24 v13, 1280, v13"); a(f"v_add_u32 v{65+i}, v13, v12")
    a("s_mul_i32 s65, s52, 15360")
    a("v_lshrrev_b32 v11, 5, v0"); a("v_and_b32 v12, 15, v0"); a("v_lshrrev_b32 v13, 2, v12"); a("v_and_b32 v12, 3, v12")
    a("v_lshl_add_u32 v14, v11, 2, v13"); a("v_mul_u32_u24 v14, 320, v14")
    a("v_lshrrev_b32 v15, 4, v0"); a("v_and_b32 v15, 1, v15"); a("v_lshl_add_u32 v14, v15, 5, v14")
    a("v_lshl_add_u32 v14, v12, 3, v14"); a("v_add_u32 v30, s65, v14")
    def issue(a, r):
        a(f"s_add_u32 s4, s70, {32*r}")
        a(f"s_add_u32 s6, s65, {5120*(r%3)}")
        a("s_cmp_ge_u32 s4, 96"); a(f"s_cbranch_scc1 K1_RI_WO{r}")
        srd(a,40,32,1536*1280)
        a(f"s_mul_i32 s5, s4, {16*1280}")
        a(f"s_branch K1_RI_REG{r}")
        a.label(f"K1_RI_WO{r}")
        srd(a,40,24,640*1280)
        a("s_sub_u32 s4, s4, 96")
        a(f"s_mul_i32 s5, s4, {20*1280}")
        a("s_cmp_lt_u32 s4, 32"); a(f"s_cbranch_scc1 K1_RI_REG{r}")
        a("s_sub_u32 s4, s4, 32"); a("s_lshr_b32 s5, s4, 1"); a("s_lshl_b32 s5, s5, 3"); a("s_and_b32 s4, s4, 1"); a("s_lshl_b32 s4, s4, 1")
        a("s_add_u32 s5, s5, s4"); a("s_mul_i32 s5, s5, 20"); a("s_add_u32 s5, s5, 16"); a("s_mul_i32 s5, s5, 1280")
        for i in range(5):
            a(f"s_add_u32 m0, s6, {1024*i}"); a("s_nop 0")
            a.raw(f"    buffer_load_dwordx4 v{65+i}, s[40:43], s5 offen {NT} lds")
        a(f"s_branch K1_RI_DONE{r}")
        a.label(f"K1_RI_REG{r}")
        for i in range(5):
            a(f"s_add_u32 m0, s6, {1024*i}"); a("s_nop 0")
            a(f"buffer_load_dwordx4 v{60+i}, s[40:43], s5 offen {NT} lds", f"u{r}")
        a.label(f"K1_RI_DONE{r}")
    def process(a, r):
        a(f"s_add_u32 s4, s70, {32*r}"); a("s_mul_i32 s4, s4, 20480"); a("s_mul_i32 s5, s53, 5120")
        a("s_add_u32 s4, s4, s5"); a(f"s_add_u32 s4, s4, {L.W2F}"); a("s_add_u32 s5, s4, 4096")
        for c in range(5):
            for jj in range(2):
                a(f"ds_read_b64_tr_b16 v[{32+4*c+2*jj}:{33+4*c+2*jj}], v30 offset:{5120*(r%3)+2560*jj+64*c}", f"c{c}")
        for c in range(5):
            a.wait_lg(f"c{c}")
            a(f"buffer_store_dwordx4 v[{32+4*c}:{35+4*c}], v16, s[48:51], {'s4' if c<4 else 's5'} offen offset:{1024*(c&3)}", "st")
    assert L.W2F+96*20480==L.WOF
    if not FUSED:
        a("s_cmp_ge_u32 s70, 2"); a("s_cbranch_scc1 K1_NOZ")
        for i in range(4): a(f"v_mov_b32 v{32+i}, 0")
        a("s_lshl_b32 s4, s52, 10"); a(f"s_add_u32 s4, s4, {L.FLG}")
        a.raw("    buffer_store_dwordx4 v[32:35], v16, s[48:51], s4 offen")
        a.label("K1_NOZ")
        a.settle()
    for r in range(3): issue(a,r)
    a.settle()
    share_now(a,"K1_RLSG")
    process(a,0)
    issue(a,3)
    a.settle()
    process(a,1)
    a("s_cmp_ge_u32 s70, 8"); a("s_cbranch_scc1 K1_RI_NO5")
    issue(a,4)
    a.label("K1_RI_NO5")
    a.settle()
    process(a,2)
    a.wait_vm0()
    process(a,3)
    a("s_cmp_ge_u32 s70, 8"); a("s_cbranch_scc1 K1_ENDL")
    a.settle()
    process(a,4)
    a.label("K1_ENDL")
    if FUSED: a.raw("    s_waitcnt lgkmcnt(0)\n    s_barrier")
    a.label("K1_END")
    if FUSED:
        return a.text(), dict(vgpr=168, sgpr=102, lds=163840, block=768, grid=256)
    if DIAG:
        a.raw("    s_cmp_ge_u32 s2, 256\n    s_cbranch_scc1 K1_END2\n    s_cmp_ge_u32 s52, 8\n    s_cbranch_scc1 K1_END2")
        stamp(a,7); stamp(a,9,True)
        dump(a,0,"s52",vtmp=160)
        a.label("K1_END2")
    a("s_endpgm")
    return a.text(), dict(vgpr=168, sgpr=102, lds=163840, block=768, grid=256)
```

```python
from asmlib import Asm
import layout as L
from diag import stamp as stamp_, dump, DIAG
import os as _o
def stamp(a,i,real=False):
    if _o.environ.get('FST','0')=='1' and i not in (7,9): return
    stamp_(a,i,real)
from k1 import srd, f2u, FUSED, get_nonce, CNT
import os
NOKV=os.environ.get('NOKV','0')=='1'
NOGEMM=os.environ.get('NOGEMM','0')=='1'
NOEXEC=os.environ.get('NOEXEC','0')=='1'
NOPRIO=os.environ.get('NOPRIO','0')=='1'
PTOG=os.environ.get('PTOG','0')=='1'
THR=48.0
BMASK=(1<<4)|(1<<5)
R=L.REC
WL=81920
OL=122880

Q1,Q2=4,8
def K1b(p): return f"v[{12+8*p}:{15+8*p}]"
def K2b(p): return f"v[{16+8*p}:{19+8*p}]"
def K2lo(p): return f"v[{16+8*p}:{17+8*p}]"
def Vb(p,x): b=28+8*p+4*x; return f"v[{b}:{b+3}]"
PP=(44,52)
SS=(60,76)
OO=92
CC=108
T0=124
def r16(b): return f"v[{b}:{b+15}]"
def r4(b): return f"v[{b}:{b+3}]"

def wg_decode(a):
    a("s_and_b32 s63, s2, 7"); a("s_lshr_b32 s67, s2, 3")
    a("s_lshl_b32 s55, s63, 3"); a("s_lshr_b32 s68, s67, 2"); a("s_add_u32 s55, s55, s68")
    a("s_and_b32 s56, s67, 3")

def k2():
    a=Asm()
    t=lambda i: f"v{T0+i}"
    def P1():
        a("v_lshlrev_b32 v1, 4, v0")
        a(f"v_and_b32 {t(2)}, 7, v0"); a("s_lshl_b32 s63, s56, 3"); a(f"v_add_u32 {t(2)}, s63, {t(2)}")
        a(f"v_bfe_u32 {t(3)}, v0, 3, 2")
        a(f"v_lshrrev_b32 {t(4)}, 5, v0")
        a("s_lshl_b32 s63, s52, 2"); a(f"v_add_u32 {t(5)}, s63, {t(3)}")
        a(f"v_mul_u32_u24 {t(5)}, 5, {t(5)}")
        a(f"s_mul_i32 s61, s55, {40*1024}")
        a(f"v_and_b32 {t(0)}, 31, v0")
        a(f"v_lshlrev_b32 v2, 3, {t(0)}"); a("v_add_u32 v2, 1024, v2")
        a("v_cmp_gt_u32 vcc, 32, v0"); a(f"v_mov_b32 {t(8)}, {1280+336+320}"); a(f"v_cndmask_b32 v2, {t(8)}, v2, vcc")
        a(f"v_mul_u32_u24 v3, 336, {t(4)}"); a(f"v_lshl_add_u32 v3, {t(0)}, 4, v3"); a("v_add_u32 v3, 1280, v3")
        a(f"v_cmp_gt_u32 vcc, 20, {t(0)}"); a(f"v_cndmask_b32 v3, {t(8)}, v3, vcc")
        a(f"v_and_b32 {t(9)}, 27, {t(0)}"); a(f"v_cmp_eq_u32 vcc, 24, {t(9)}"); a(f"v_mov_b32 {t(8)}, {1280+320}"); a(f"v_cndmask_b32 v3, v3, {t(8)}, vcc")
        def qaddr(dst, p):
            a(f"v_lshrrev_b32 {t(6)}, 2, {p}"); a(f"v_lshlrev_b32 {t(6)}, 10, {t(6)}")
            a(f"v_and_b32 {t(7)}, 1, {p}"); a(f"v_lshl_add_u32 {t(7)}, {t(7)}, 5, {t(2)}"); a(f"v_lshl_add_u32 {t(6)}, {t(7)}, 4, {t(6)}")
            a(f"v_bfe_u32 {t(7)}, {p}, 1, 1"); a(f"v_lshl_add_u32 {dst}, {t(7)}, 3, {t(6)}")
        a(f"v_add_u32 {t(8)}, {t(5)}, {t(4)}"); qaddr(t(9),t(8))
        a(f"v_add_u32 {t(8)}, 2, {t(8)}"); qaddr(t(10),t(8))
        a(f"v_add_u32 {t(8)}, 4, {t(5)}"); qaddr(t(11),t(8))
        a(f"v_lshlrev_b32 {t(0)}, 2, v0"); a(f"s_mov_b32 s60, {L.KN}")
        a(f"s_mov_b32 s64, {L.KV}"); a(f"s_add_u32 s65, s64, {R}")
        for r in range(36,44): a(f"v_mov_b32 v{r}, 0")
        for r in range(PP[1],PP[1]+8): a(f"v_mov_b32 v{r}, 0")
        for r in range(OO,OO+16): a(f"v_mov_b32 v{r}, 0")
    def Pq():
        a(f"buffer_load_dwordx2 v[{Q1}:{Q1+1}], {t(9)}, s[48:51], s61 offen","q")
        a(f"buffer_load_dwordx2 v[{Q1+2}:{Q1+3}], {t(10)}, s[48:51], s61 offen","q")
        a(f"buffer_load_dwordx2 v[{Q2}:{Q2+1}], {t(11)}, s[48:51], s61 offen","q")
    def Pkv():
        for tt_ in range(2):
            a(f"buffer_load_dwordx4 {K1b(tt_)}, v1, s[48:51], s64 offen offset:{R*tt_}",f"k{tt_}")
            a(f"buffer_load_dwordx2 {K2lo(tt_)}, v2, s[48:51], s64 offen offset:{R*tt_}",f"k{tt_}")
        a("s_lshl_b32 s62, s52, 10"); a(f"s_add_u32 s63, s62, {L.KV+2*R}")
        for m in range(0 if FUSED else 3):
            a("s_mov_b32 m0, s62")
            a("s_add_u32 s62, s62, 8192")
            a("buffer_load_dwordx4 v1, s[48:51], s63 offen lds", "c0")
            a("s_add_u32 s63, s63, 8192")
        for tt_ in range(2):
            for x in range(2): a(f"buffer_load_dwordx4 {Vb(tt_,x)}, v3, s[48:51], s{64+tt_} offen offset:{672*x}",f"v{tt_}")
    def Pkn():
        a.wait_vm("kn")
        for r_ in (8,4,2,1): a(f"v_max_f32_dpp {t(1)}, {t(1)}, {t(1)} row_ror:{r_} row_mask:0xf bank_mask:0xf")
        for op in ("v_permlane16_swap_b32","v_permlane32_swap_b32"):
            a(f"v_mov_b32 {t(8)}, {t(1)}"); a(f"{op} {t(1)}, {t(8)}"); a(f"v_max_f32 {t(1)}, {t(1)}, {t(8)}")
    if FUSED:
        stamp(a,1)
        a("s_and_b32 s63, s2, 7"); a("s_lshl_b32 s63, s63, 7"); a("s_add_u32 s63, s63, 96")
        a("v_lshlrev_b32 v165, 2, v0"); a("v_add_u32 v166, s63, v165"); a(f"v_add_u32 v165, {1024-20}, v165")
        a("v_cmp_gt_u32 vcc, 5, v0"); a("v_cndmask_b32 v165, v165, v166, vcc")
        a("v_mov_b32 v166, 1024"); a("v_cmp_gt_u32 vcc, 13, v0"); a("v_cndmask_b32 v165, v166, v165, vcc")
        a(f"s_mov_b32 s27, {L.FLG}")
        a("s_cmp_lg_u32 s52, 0"); a("s_cbranch_scc1 PA_NP")
        a.raw("    buffer_load_dword v164, v165, s[48:51], s27 offen sc1")
        a.label("PA_NP")
        a.settle()
        a("s_load_dwordx2 s[16:17], s[0:1], 0")
        a("s_load_dwordx2 s[18:19], s[0:1], 72")
        wg_decode(a)
        a("s_nop 4")
        P1()
        a.raw(f"""    s_waitcnt vmcnt(0) lgkmcnt(0)
    s_mov_b64 exec, 1
    v_mov_b32 v166, {CNT}
    v_mov_b32 v167, 1
    s_nop 0
    ds_add_rtn_u32 v167, v166, v167
    ds_read_b32 v166, v166 offset:4
    s_waitcnt lgkmcnt(0)
    v_readfirstlane_b32 s63, v167
    v_mov_b32 v167, 0
    s_nop 3
    s_cmp_lg_u32 s63, 7
    s_cbranch_scc1 PA_NOFLAG
    buffer_store_dword v166, v167, s[48:51], s26 offen sc0 sc1
PA_NOFLAG:
    s_mov_b64 exec, -1""")
        a("s_cmp_lg_u32 s52, 0"); a("s_cbranch_scc1 PA_OK1")
        a.raw("""PA_POLL1:
    v_cmp_eq_u32 vcc, s3, v164
    s_nop 3
    s_or_b32 vcc_lo, vcc_lo, 31
    s_cmp_eq_u64 vcc, exec
    s_cbranch_scc1 PA_OK1
    s_sleep 1
    buffer_load_dword v164, v165, s[48:51], s27 offen sc1
    s_waitcnt vmcnt(0)
    s_branch PA_POLL1""")
        a.label("PA_OK1")
        a.settle()
        a("s_barrier")
        a("s_setprio 2")
        a(f"buffer_load_dword {t(1)}, {t(0)}, s[48:51], s60 offen","kn")
        Pkv()
        a("s_cmp_lg_u32 s52, 0"); a("s_cbranch_scc1 PA_OK2")
        a.raw("""PA_POLL2:
    v_cmp_eq_u32 vcc, s3, v164
    s_nop 3
    s_cmp_eq_u64 vcc, exec
    s_cbranch_scc1 PA_OK2
    buffer_load_dword v164, v165, s[48:51], s27 offen sc1
    s_waitcnt vmcnt(0)
    s_branch PA_POLL2""")
        a.label("PA_OK2")
        a.settle()
        a("s_barrier")
        stamp(a,2)
        Pq()
        Pkn()
    else:
        a.raw(".globl k2_kernel\n.p2align 8\n.type k2_kernel,@function\nk2_kernel:")
        a("s_cmp_ge_u32 s2, 256"); a("s_cbranch_scc1 K2_END")
        stamp(a,0); stamp(a,8,True)
        a("s_load_dwordx2 s[16:17], s[0:1], 0")
        a("s_load_dwordx2 s[18:19], s[0:1], 72")
        a("s_load_dwordx4 s[32:35], s[0:1], 80")
        a("v_lshrrev_b32 v1, 6, v0"); a("v_readfirstlane_b32 s52, v1"); a("v_and_b32 v0, 63, v0")
        wg_decode(a)
        a("s_waitcnt lgkmcnt(0)")
        srd(a,48,34,L.WS_END)
        a("s_cmp_ge_u32 s52, 8"); a("s_cbranch_scc1 K2_GEMM")
        a("s_setprio 2")
        P1()
        a(f"buffer_load_dword {t(1)}, {t(0)}, s[48:51], s60 offen","kn")
        Pq(); Pkv(); Pkn()
    a.wait_vm("q")
    a("v_cmp_gt_u32 vcc, 32, v0")
    a(f"v_cndmask_b32 v{Q2}, 0, v{Q2}, vcc"); a(f"v_cndmask_b32 v{Q2+1}, 0, v{Q2+1}, vcc")
    a(f"v_mov_b32 v{Q2+2}, 0"); a(f"v_mov_b32 v{Q2+3}, 0")
    a(f"v_mov_b32 {t(6)}, 0")
    for i in range(6): a(f"v_dot2_f32_bf16 {t(6)}, v{Q1+i}, v{Q1+i}, {t(6)}")
    a(f"v_mov_b32 {t(7)}, {t(6)}"); a(f"v_permlane32_swap_b32 {t(6)}, {t(7)}")
    a(f"v_add_f32 {t(6)}, {t(6)}, {t(7)}"); a(f"v_mul_f32 {t(6)}, {t(6)}, {t(1)}")
    a(f"v_sqrt_f32 {t(6)}, {t(6)}"); a(f"v_mul_f32 {t(6)}, 0x{f2u(1.01):08x}, {t(6)}")
    a(f"v_cmp_ge_f32 vcc, 0x{f2u(THR):08x}, {t(6)}")
    a("s_mov_b32 s74, 1")
    a("s_cmp_eq_u64 vcc, exec"); a("s_cbranch_scc1 K2_FAST")
    vm_fast=list(a.vm)
    a.wait_vm0(); a("s_barrier")
    a("s_barrier"); a("s_barrier")
    a("s_mov_b32 s74, 0")
    a(f"v_mov_b32 {t(6)}, 0xff800000")
    for p in range(2):
        a(f"v_mfma_f32_32x32x16_bf16 {r16(SS[0])}, {K1b(p)}, {r4(Q1)}, 0")
        a(f"v_mfma_f32_32x32x8_bf16 {r16(SS[0])}, {K2lo(p)}, v[{Q2}:{Q2+1}], {r16(SS[0])}")
        for i in range(0,16,2): a(f"v_max3_f32 {t(6)}, v{SS[0]+i}, v{SS[0]+i+1}, {t(6)}")
    a(f"v_mov_b32 {t(10)}, v1"); a(f"v_mov_b32 {t(11)}, v2"); a("s_mov_b32 s73, 62")
    a(f"v_mov_b32 v{SS[1]+6}, 0"); a(f"v_mov_b32 v{SS[1]+7}, 0")
    a.settle()
    a.label("K2_PRE")
    a(f"ds_read_b128 {r4(SS[1])}, {t(10)}"); a(f"ds_read_b64 v[{SS[1]+4}:{SS[1]+5}], {t(11)}")
    a(f"v_add_u32 {t(10)}, {R}, {t(10)}"); a(f"v_add_u32 {t(11)}, {R}, {t(11)}")
    a.wait_lg0()
    a(f"v_mfma_f32_32x32x16_bf16 {r16(SS[0])}, {r4(SS[1])}, {r4(Q1)}, 0")
    a(f"v_mfma_f32_32x32x8_bf16 {r16(SS[0])}, v[{SS[1]+4}:{SS[1]+5}], v[{Q2}:{Q2+1}], {r16(SS[0])}")
    for i in range(0,16,2): a(f"v_max3_f32 {t(6)}, v{SS[0]+i}, v{SS[0]+i+1}, {t(6)}")
    a("s_sub_u32 s73, s73, 1"); a("s_cmp_lg_u32 s73, 0")
    a.settle()
    a("s_cbranch_scc1 K2_PRE")
    a(f"v_mov_b32 {t(7)}, {t(6)}"); a(f"v_permlane32_swap_b32 {t(6)}, {t(7)}"); a(f"v_max_f32 {t(6)}, {t(6)}, {t(7)}")
    a.settle()
    a.label("K2_FAST")
    a.vm=vm_fast
    for i in range(16): a(f"v_sub_f32 v{CC+i}, 0, {t(6)}")
    a.wait_vm("k0")
    a(f"v_mfma_f32_32x32x16_bf16 {r16(SS[0])}, {K1b(0)}, {r4(Q1)}, {r16(CC)}")
    a(f"v_mfma_f32_32x32x8_bf16 {r16(SS[0])}, {K2lo(0)}, v[{Q2}:{Q2+1}], {r16(SS[0])}")
    def tile(tt, j, base, nov=False, late=False):
        p=j&1; S=SS[p]; P=PP[p]
        tt.wait_lg0()
        mf=[f"v_mfma_f32_32x32x16_bf16 {r16(SS[1-p])}, {K1b(1-p)}, {r4(Q1)}, {r16(CC)}",
            f"v_mfma_f32_32x32x16_bf16 {r16(OO)}, {Vb(1-p,0)}, {r4(PP[1-p])}, {r16(OO)}",
            f"v_mfma_f32_32x32x8_bf16 {r16(SS[1-p])}, {K2lo(1-p)}, v[{Q2}:{Q2+1}], {r16(SS[1-p])}",
            f"v_mfma_f32_32x32x16_bf16 {r16(OO)}, {Vb(1-p,1)}, {r4(PP[1-p]+4)}, {r16(OO)}"]
        ex=[f"ds_read_b128 {K1b(p)}, v1 offset:{R*(j+base)}", f"ds_read_b64 {K2lo(p)}, v2 offset:{R*(j+base)}"]
        if not nov:
            ex+=[f"ds_read_b128 {Vb(p,0)}, v3 offset:{R*(j+base-2)}", f"ds_read_b128 {Vb(p,1)}, v3 offset:{R*(j+base-2)+672}"]
        E=[f"v_exp_f32 v{S+i}, v{S+i}" for i in range(16)]
        C=[f"v_cvt_pk_bf16_f32 v{P+i}, v{S+2*i}, v{S+2*i+1}" for i in range(8)]
        groups=[E[0:4], [E[4],C[0],E[5],C[1],E[6],E[7]], [E[8],C[2],E[9],C[3],E[10],E[11]], [E[12],C[4],E[13],C[5],E[14],E[15],C[6],C[7]]]
        def rd():
            for x in ex:
                if NOKV: tt.lg.append(None); continue
                tt(x)
        if not late: rd()
        for k in range(4):
            tt(mf[k])
            for x in groups[k]: tt(x)
        if late:
            tt.wait_vm("c0")
            tt("s_cmp_eq_u32 s74, 1")
            def bar1(t2): t2.raw("    s_barrier")
            tt.cond_block("s_cbranch_scc0 K2_NOB1","K2_NOB1",bar1)
            rd()
    stamp(a,3)
    for j in range(8):
        if j==0: a.wait_vm("k1")
        if j==1: a.wait_vm("v0")
        if j==2: a.wait_vm("v1")
        tile(a,j,0,nov=(j<2),late=(j==0))
    a("s_cmp_eq_u32 s74, 1")
    def bar2(t2): t2.raw("    s_barrier")
    a.cond_block("s_cbranch_scc0 K2_NOB2","K2_NOB2",bar2)
    a("s_min_u32 s63, s52, 4"); a("s_sub_u32 s62, s52, s63"); a("s_mul_i32 s62, s62, 160"); a("s_add_u32 s62, s62, s63")
    a("s_mul_i32 s63, s56, 5"); a("s_add_u32 s62, s62, s63"); a("s_add_u32 s62, s62, 160"); a("s_lshl_b32 s62, s62, 10"); a(f"s_add_u32 s62, s62, {L.WOF}")
    for i in range(8):
        a(f"buffer_load_dwordx4 {r4(136+4*i)}, v1, s[48:51], s62 offen","wo"); a("s_add_u32 s62, s62, 20480")
    a("s_mov_b32 s73, 0"); a(f"s_or_b32 s72, s74, {BMASK}")
    def body(tt):
        for j in range(8): tile(tt,j,8)
    def tail(tt):
        for r in (1,2,3): tt(f"v_add_u32 v{r}, {8*R}, v{r}")
        if False:
            tt("s_xor_b32 s75, s75, 1"); tt("s_cmp_eq_u32 s75, 0")
            tt("s_setprio 2")
            def hi(t2): t2.raw("    s_setprio 3")
            tt.cond_block("s_cbranch_scc1 K2_NOHI","K2_NOHI",hi)
        tt("s_bitcmp1_b32 s72, s73")
        def bar(t2):
            t2.raw("    s_barrier")
        tt.cond_block("s_cbranch_scc0 K2_NOBAR","K2_NOBAR",bar)
        tt("s_add_u32 s73, s73, 1"); tt("s_cmp_lg_u32 s73, 7"); tt("s_cbranch_scc1 K2_LOOP")
    a.loop("K2_LOOP", body, tail)
    stamp(a,4)
    a.wait_lg0()
    a(f"v_mfma_f32_32x32x16_bf16 {r16(OO)}, {Vb(1,0)}, {r4(PP[1])}, {r16(OO)}")
    a(f"v_mfma_f32_32x32x16_bf16 {r16(OO)}, {Vb(1,1)}, {r4(PP[1]+4)}, {r16(OO)}")
    a(f"v_lshlrev_b32 {t(5)}, 10, {t(3)}"); a(f"v_lshl_add_u32 {t(5)}, {t(4)}, 9, {t(5)}"); a(f"v_lshl_add_u32 {t(5)}, {t(2)}, 4, {t(5)}")
    a(f"s_mul_i32 s61, s55, {40*1024}"); a(f"s_add_u32 s61, s61, {L.OF}")
    a("s_lshl_b32 s63, s52, 12"); a("s_add_u32 s62, s61, s63")
    a(f"v_lshrrev_b32 {t(10)}, 1, {t(3)}"); a(f"v_lshlrev_b32 {t(10)}, 10, {t(10)}"); a(f"v_and_b32 {t(11)}, 1, {t(3)}")
    a(f"v_lshl_add_u32 {t(10)}, {t(11)}, 9, {t(10)}"); a(f"v_lshl_add_u32 {t(10)}, {t(2)}, 4, {t(10)}")
    a("s_lshr_b32 s64, s52, 1"); a("s_lshl_b32 s64, s64, 11"); a("s_add_u32 s64, s64, s61"); a("s_add_u32 s64, s64, 32768")
    a("s_and_b32 s63, s52, 1"); a("s_lshl_b32 s63, s63, 3"); a("s_add_u32 s64, s64, s63")
    a(f"v_rcp_f32 {t(6)}, v{OO+12}")
    for i in range(12): a(f"v_mul_f32 v{OO+i}, {t(6)}, v{OO+i}")
    for i in range(6): a(f"v_cvt_pk_bf16_f32 v{SS[0]+i}, v{OO+2*i}, v{OO+2*i+1}")
    a(f"buffer_store_dwordx4 {r4(SS[0])}, {t(5)}, s[48:51], s62 offen sc0 sc1")
    a("v_cmp_gt_u32 vcc, 32, v0")
    a("s_and_saveexec_b64 s[78:79], vcc")
    a(f"buffer_store_dwordx2 v[{SS[0]+4}:{SS[0]+5}], {t(10)}, s[48:51], s64 offen sc0 sc1")
    a("s_mov_b64 exec, -1")
    a("v_lshlrev_b32 v1, 4, v0")
    a.wait_vm0()
    if not FUSED: stamp(a,1)
    a("s_barrier")
    if not FUSED: stamp(a,2)
    a("s_cmp_lg_u32 s52, 0"); a("s_cbranch_scc1 K2_FLAGOK")
    if FUSED:
        a("s_lshl_b32 s63, s55, 7"); a(f"s_add_u32 s63, s63, {L.FLG+4096}"); a("s_lshl_b32 s62, s56, 2"); a("s_add_u32 s62, s62, s63")
        a.raw(f"""    v_and_b32 v3, 3, v0
    v_lshlrev_b32 v3, 2, v3
    s_mov_b64 exec, 1
    v_mov_b32 v2, s3
    s_nop 1
    buffer_store_dword v2, v3, s[48:51], s62 offen sc0 sc1
    s_mov_b64 exec, -1
K2_POLL:
    buffer_load_dword v2, v3, s[48:51], s63 offen sc1
    s_waitcnt vmcnt(0)
    v_cmp_eq_u32 vcc, s3, v2
    s_nop 3
    s_cmp_eq_u64 vcc, exec
    s_cbranch_scc1 K2_FLAGOK
    s_sleep 1
    s_branch K2_POLL""")
    else:
        a("s_lshl_b32 s63, s55, 7"); a(f"s_add_u32 s63, s63, {L.FLG}"); a("s_add_u32 s62, s63, s56")
        a.raw(f"""    s_mov_b64 exec, 1
    v_mov_b32 v2, 1
    v_mov_b32 v3, 0
    s_nop 1
    buffer_store_byte v2, v3, s[48:51], s62 offen sc0 sc1
K2_POLL:
    buffer_load_dword v2, v3, s[48:51], s63 offen sc1
    s_waitcnt vmcnt(0)
    v_readfirstlane_b32 s62, v2
    s_nop 3
    s_cmp_eq_u32 s62, 0x01010101
    s_cbranch_scc1 K2_POLLOK
    s_sleep 1
    s_branch K2_POLL
K2_POLLOK:
    s_mov_b64 exec, -1""")
    a.label("K2_FLAGOK")
    a.settle()
    a("s_barrier")
    stamp(a,5)
    a("s_lshl_b32 s62, s52, 10"); a("s_add_u32 s63, s62, s61"); a(f"s_add_u32 s62, s62, {OL}")
    for m in range(5):
        a("s_mov_b32 m0, s62"); a("s_add_u32 s62, s62, 8192")
        a("buffer_load_dwordx4 v1, s[48:51], s63 offen sc1 lds"); a("s_add_u32 s63, s63, 8192")
    a(f"v_add_u32 v2, {OL}, v1")
    a("s_min_u32 s63, s52, 4"); a("s_sub_u32 s62, s52, s63")
    a("s_mul_i32 s64, s62, 10240"); a("s_lshl_b32 s63, s63, 10"); a("s_add_u32 s64, s64, s63"); a(f"s_add_u32 s64, s64, {WL}")
    a("v_add_u32 v3, s64, v1")
    a.wait_vm0(); a("s_barrier")
    stamp(a,6)
    AC=SS[0]
    a("s_cmp_ge_u32 s52, 4"); a("s_cbranch_scc1 K2_P2B")
    hz=a.hz_get()
    for k in range(8): a(f"ds_read_b128 {r4(12+4*k)}, v2 offset:{1024*(8+k)}", f"b{k}")
    for k in range(4):
        a(f"ds_read_b128 {r4(44+4*k)}, v3 offset:{5120*k}", f"l{k}"); a(f"ds_read_b128 {r4(76+4*k)}, v2 offset:{1024*k}", f"l{k}")
    for k in range(8):
        a.wait_lg(f"b{k}")
        a(f"v_mfma_f32_32x32x16_bf16 {r16(AC)}, {r4(136+4*k)}, {r4(12+4*k)}, {'0' if k==0 else r16(AC)}")
        if k>=4:
            kk=k
            a(f"ds_read_b128 {r4(92+4*(kk-4))}, v3 offset:{5120*kk}", f"l{kk}"); a(f"ds_read_b128 {r4(108+4*(kk-4))}, v2 offset:{1024*kk}", f"l{kk}")
    for k in range(8):
        a.wait_lg(f"l{k}")
        A,B=(44+4*k,76+4*k) if k<4 else (92+4*(k-4),108+4*(k-4))
        a(f"v_mfma_f32_32x32x16_bf16 {r16(AC)}, {r4(A)}, {r4(B)}, {r16(AC)}")
    a("s_lshl_b32 s63, s52, 13")
    a("s_branch K2_P2W")
    a.label("K2_P2B")
    a.hz_set(hz); a.lg=[]
    a("s_lshl_b32 s63, s62, 13"); a("v_add_u32 v4, s63, v2")
    a("s_lshl_b32 s63, s62, 11"); a("v_add_u32 v5, s63, v2")
    for k in range(8): a(f"ds_read_b128 {r4(12+4*k)}, v4 offset:{1024*(8+k)}", f"b{k}")
    for k in range(2):
        a(f"ds_read_b128 {r4(44+4*k)}, v3 offset:{5120*k}", f"l{k}"); a(f"ds_read_b128 {r4(76+4*k)}, v5 offset:{1024*k}", f"l{k}")
    for k in range(8):
        a.wait_lg(f"b{k}")
        a(f"v_mfma_f32_32x32x16_bf16 {r16(AC)}, {r4(136+4*k)}, {r4(12+4*k)}, {'0' if k==0 else r16(AC)}")
    for k in range(2):
        a.wait_lg(f"l{k}")
        a(f"v_mfma_f32_32x32x16_bf16 {r16(AC)}, {r4(44+4*k)}, {r4(76+4*k)}, {r16(AC)}")
    a("s_lshl_b32 s63, s62, 12"); a("s_add_u32 s63, s63, 32768")
    a.label("K2_P2W")
    a.settle()
    a("v_add_u32 v2, s63, v1")
    for g in range(4): a(f"ds_write_b128 v2, {r4(AC+4*g)} offset:{1024*g}")
    a.wait_lg0(); a("s_barrier")
    a("s_branch K2_END")

    a.label("PB_G" if FUSED else "K2_GEMM")
    a.ev={}; a.vm=[]; a.lg=[]
    if FUSED:
        get_nonce(a,"PB_NC",4)
        a("v_and_b32 v3, 7, v0"); a("v_lshlrev_b32 v3, 2, v3"); a(f"s_mov_b32 s27, {L.FLG+1024}")
        a.raw("""    buffer_load_dword v4, v3, s[48:51], s27 offen sc1
    s_waitcnt vmcnt(0)""")
        a.label("PB_G2")
        a.settle()
        a("s_load_dwordx2 s[16:17], s[0:1], 0")
        a("s_load_dwordx2 s[18:19], s[0:1], 72")
        wg_decode(a)
        a.raw("""    v_cmp_eq_u32 vcc, s3, v4
    s_nop 3
    s_cmp_eq_u64 vcc, exec
    s_cselect_b32 s74, 1, 0
    s_waitcnt lgkmcnt(0)""")
    srd(a,36,16,2048*1280)
    a("s_sub_u32 s53, s52, 8")
    a("v_lshlrev_b32 v1, 4, v0"); a("v_add_u32 v2, 4096, v1")
    a(f"s_mul_i32 s60, s55, {96*1024}"); a(f"s_mul_i32 s63, s53, {24*1024}"); a("s_add_u32 s60, s60, s63"); a(f"s_add_u32 s60, s60, {L.HF}")
    a(f"s_mul_i32 s61, s53, {24*20480}"); a(f"s_mul_i32 s63, s56, 5120"); a("s_add_u32 s61, s61, s63"); a(f"s_add_u32 s61, s61, {L.W2F}")
    def ld(t, s):
        b=84+24*s
        t(f"buffer_load_dwordx4 {r4(b)}, v1, s[48:51], s60 offen", f"s{s}")
        for c in range(4): t(f"buffer_load_dwordx4 {r4(b+4+4*c)}, v1, s[48:51], s61 offen offset:{1024*c}", f"s{s}")
        t(f"buffer_load_dwordx4 {r4(b+20)}, v2, s[48:51], s61 offen", f"s{s}")
        t("s_add_u32 s60, s60, 1024"); t("s_add_u32 s61, s61, 20480")
    def kvd(t, tag):
        t("s_mov_b32 m0, s62"); t("s_add_u32 s62, s62, 4096")
        t("buffer_load_dwordx4 v1, s[48:51], s63 offen lds", tag); t("s_add_u32 s63, s63, 4096")
    if FUSED:
        a("s_lshl_b32 s62, s53, 10"); a(f"s_add_u32 s63, s62, {L.KV+2*R}")
        a("s_barrier")
        a("s_cmp_eq_u32 s74, 0"); a("s_cbranch_scc1 PB_NR1")
        t=Asm()
        for m in range(16): kvd(t,None)
        a.lines+=t.lines
        a.label("PB_NR1")
        a("s_barrier")
        a("s_cmp_eq_u32 s74, 1"); a("s_cbranch_scc1 PB_R2")
        a.lines+=t.lines
        a.label("PB_R2")
        a.settle()
        a("s_barrier")
        a.vm=["c0"]*6+["kva"]*10
        a.wait_vm("c0"); a("s_barrier")
        for m in range(23): kvd(a,"kv")
        a(f"s_min_u32 s62, s62, {158*1024}"); a(f"s_add_u32 s63, s62, {L.KV+2*R}")
        kvd(a,"kv")
        for r in range(4,84): a(f"v_mov_b32 v{r}, 0")
        a.wait_vm("kva")
        a("s_barrier")
        a("s_and_b32 s63, s2, 7"); a("s_lshl_b32 s63, s63, 7")
        a("v_lshlrev_b32 v3, 2, v0"); a("v_add_u32 v84, s63, v3"); a(f"v_add_u32 v3, {1024+32-96}, v3")
        a("v_cmp_gt_u32 vcc, 24, v0"); a("v_cndmask_b32 v3, v3, v84, vcc")
        a("v_mov_b32 v84, s63"); a("v_cmp_gt_u32 vcc, 40, v0"); a("v_cndmask_b32 v3, v84, v3, vcc")
        a(f"s_mov_b32 s27, {L.FLG}")
        a.wait_vm0()
        a.raw("    buffer_load_dword v84, v3, s[48:51], s27 offen sc1")
        a("s_barrier")
        a.raw("""PB_HP:
    s_waitcnt vmcnt(0)
    v_cmp_eq_u32 vcc, s3, v84
    s_nop 3
    s_cmp_eq_u64 vcc, exec
    s_cbranch_scc1 PB_HOK
    s_sleep 1
    buffer_load_dword v84, v3, s[48:51], s27 offen sc1
    s_branch PB_HP
PB_HOK:""")
        a.settle()
        for s in range(3): ld(a,s)
    else:
        a("s_barrier")
        a("s_lshl_b32 s62, s53, 10"); a("s_add_u32 s62, s62, 24576"); a(f"s_add_u32 s63, s62, {L.KV+2*R}")
        for m in range(34): kvd(a, "kva" if m<10 else "kv")
        for r in range(4,84): a(f"v_mov_b32 v{r}, 0")
        a.wait_vm("kva")
        a("s_barrier")
        for s in range(3): ld(a,s)
        a.wait_vm("kv")
        a("s_barrier")
    stamp(a,2)
    def mm(t, s):
        b=84+24*s
        t.wait_vm(f"s{s}")
        for c in range(5): t(f"v_mfma_f32_32x32x16_bf16 {r16(4+16*c)}, {r4(b+4+4*c)}, {r4(b)}, {r16(4+16*c)}")
    def gbody(t):
        for s in range(3): mm(t,s); ld(t,s)
    def gtail(t):
        t("s_sub_u32 s73, s73, 1"); t("s_cmp_lg_u32 s73, 0"); t("s_cbranch_scc1 K2_GLOOP")
    a("s_mov_b32 s73, 7")
    if not NOGEMM: a.loop("K2_GLOOP", gbody, gtail)
    for s in range(3): mm(a,s)
    stamp(a,3)
    a("v_and_b32 v3, 31, v0"); a("s_lshl_b32 s63, s55, 5"); a("v_add_u32 v3, s63, v3"); a("v_mul_u32_u24 v3, 1280, v3")
    a("v_lshrrev_b32 v162, 5, v0"); a("v_lshl_add_u32 v3, v162, 3, v3")
    a("s_mul_i32 s62, s56, 320"); a("s_lshl_b32 s63, s53, 4"); a("s_add_u32 s62, s62, s63")
    for c in range(5): a(f"buffer_load_dwordx2 v[{152+2*c}:{153+2*c}], v3, s[36:39], s62 offen offset:{64*c}","x")
    a("s_mov_b32 s64, s62")
    a("s_mul_i32 s63, s53, 20480"); a("v_add_u32 v162, s63, v1")
    a("s_lshl_b32 s63, s53, 10"); a("v_add_u32 v163, s63, v1"); a("v_add_u32 v164, 40960, v163")
    a("s_mul_i32 s65, s56, 5120"); a(f"s_add_u32 s65, s65, {L.WOF}")
    a("s_barrier")
    stamp(a,4)
    for c in range(5):
        for g in range(4): a(f"ds_write_b128 v162, {r4(4+16*c+4*g)} offset:{(c*4+g)*1024}")
    def wodma(m):
        a(f"s_add_u32 s62, s53, {4*m}"); a("s_mul_i32 s63, s62, 52"); a("s_lshr_b32 s63, s63, 8"); a("s_mul_i32 s63, s63, 15360")
        a("s_lshl_b32 s62, s62, 10"); a("s_add_u32 s63, s63, s62"); a("s_add_u32 s63, s63, s65"); a(f"s_add_u32 m0, s62, {WL}")
        a("buffer_load_dwordx4 v1, s[48:51], s63 offen lds","wd")
    for m in range(9): wodma(m)
    a.wait_lg0()
    a("s_lshl_b32 s62, s53, 10"); a("s_add_u32 s62, s62, s65"); a(f"s_add_u32 s62, s62, {16*20480}")
    for i in range(24):
        a(f"buffer_load_dwordx4 {r4(4+4*i)}, v1, s[48:51], s62 offen","wr"); a("s_add_u32 s62, s62, 20480")
    a("s_barrier")
    stamp(a,5)
    wodma(9)
    a.wait_vm("x")
    for c in range(5):
        tb=120+16*(c&1)
        if c==0:
            for cc in range(2):
                for s_ in range(4): a(f"ds_read_b128 {r4(120+16*cc+4*s_)}, v{163+(s_>>1)} offset:{(s_&1)*20480+cc*4096}", f"r{cc}")
        a.wait_lg(f"r{c}")
        y=100+4*c
        a(f"v_lshlrev_b32 v{y}, 16, v{152+2*c}"); a(f"v_and_b32 v{y+1}, 0xffff0000, v{152+2*c}")
        a(f"v_lshlrev_b32 v{y+2}, 16, v{153+2*c}"); a(f"v_and_b32 v{y+3}, 0xffff0000, v{153+2*c}")
        for i in range(4):
            a(f"v_add_f32 v{tb+i}, v{tb+i}, v{tb+4+i}"); a(f"v_add_f32 v{tb+8+i}, v{tb+8+i}, v{tb+12+i}")
        for i in range(4): a(f"v_add_f32 v{tb+i}, v{tb+i}, v{tb+8+i}")
        for i in range(4): a(f"v_add_f32 v{y+i}, v{y+i}, v{tb+i}")
        if c+2<5:
            for s_ in range(4): a(f"ds_read_b128 {r4(tb+4*s_)}, v{163+(s_>>1)} offset:{(s_&1)*20480+(c+2)*4096}", f"r{c+2}")
    srd(a,36,18,2048*1280)
    a(f"v_add_u32 v2, {OL+16384}, v1")
    a.wait_vm0()
    a("s_barrier")
    a("s_barrier")
    a("s_barrier")
    NB=6
    for k in range(NB): a(f"ds_read_b128 {r4(136+4*k)}, v2 offset:{1024*k}", f"b{k}")
    for k in range(24):
        a.wait_lg(f"b{k}")
        a(f"v_mfma_f32_32x32x16_bf16 {r16(120)}, {r4(4+4*k)}, {r4(136+4*(k%NB))}, {'0' if k==0 else r16(120)}")
        if k>=1 and k-1+NB<24: a(f"ds_read_b128 {r4(136+4*((k-1)%NB))}, v2 offset:{1024*(k-1+NB)}", f"b{k-1+NB}")
    a("s_lshl_b32 s63, s53, 13"); a("s_add_u32 s63, s63, 4096"); a("v_add_u32 v2, s63, v1")
    for g in range(4): a(f"ds_write_b128 v2, {r4(120+4*g)} offset:{1024*g}")
    a.wait_lg0(); a("s_barrier")
    for sl in range(12): a(f"ds_read_b128 {r4(4+4*sl)}, v163 offset:{4096*sl}", f"f{sl}")
    for c in range(5):
        y=100+4*c
        srcs=[2*c,2*c+1] if c<4 else [8,9,10,11]
        a.wait_lg(f"f{srcs[-1]}")
        for sl in srcs:
            for i in range(4): a(f"v_add_f32 v{y+i}, v{y+i}, v{4+4*sl+i}")
        a(f"v_cvt_pk_bf16_f32 v{y}, v{y}, v{y+1}"); a(f"v_cvt_pk_bf16_f32 v{y+1}, v{y+2}, v{y+3}")
        a(f"buffer_store_dwordx2 v[{y}:{y+1}], v3, s[36:39], s64 offen offset:{64*c}")
    a.label("K2_END")
    if DIAG:
        a.raw("    s_cmp_ge_u32 s2, 256\n    s_cbranch_scc1 K2_END2")
        stamp(a,7); stamp(a,9,True)
        dump(a,1,"s52",vtmp=165,wmul=4)
        a.label("K2_END2")
    a("s_endpgm")
    return a.text(), dict(vgpr=168, sgpr=102, lds=163840, block=768, grid=256)

def k3():
    a=Asm()
    a.raw(".globl k3_kernel\n.p2align 8\n.type k3_kernel,@function\nk3_kernel:")
    a("s_cmp_ge_u32 s2, 256"); a("s_cbranch_scc1 K3_END")
    stamp(a,0); stamp(a,8,True)
    a("s_load_dwordx2 s[16:17], s[0:1], 72")
    a("s_load_dwordx2 s[34:35], s[0:1], 88")
    a("v_lshrrev_b32 v1, 6, v0"); a("v_readfirstlane_b32 s53, v1"); a("v_and_b32 v0, 63, v0")
    wg_decode(a)
    a("v_lshlrev_b32 v1, 4, v0"); a("v_add_u32 v2, 4096, v1")
    a(f"s_mul_i32 s60, s55, {40*1024}"); a(f"s_mul_i32 s63, s53, {10*1024}"); a("s_add_u32 s60, s60, s63"); a(f"s_add_u32 s60, s60, {L.OF}")
    a(f"s_mul_i32 s61, s53, {10*20480}"); a(f"s_mul_i32 s63, s56, 5120"); a("s_add_u32 s61, s61, s63"); a(f"s_add_u32 s61, s61, {L.WOF}")
    a("s_waitcnt lgkmcnt(0)")
    srd(a,48,34,L.WS_END); srd(a,36,16,2048*1280)
    for s in range(10):
        b=8+24*s
        a(f"buffer_load_dwordx4 {r4(b)}, v1, s[48:51], s60 offen", f"s{s}")
        for c in range(4): a(f"buffer_load_dwordx4 {r4(b+4+4*c)}, v1, s[48:51], s61 offen offset:{1024*c}", f"s{s}")
        a(f"buffer_load_dwordx4 {r4(b+20)}, v2, s[48:51], s61 offen", f"s{s}")
        a("s_add_u32 s60, s60, 1024"); a("s_add_u32 s61, s61, 20480")
    a("s_mul_i32 s62, s2, 20480"); a("s_lshl_b32 s63, s53, 10"); a("s_add_u32 s62, s62, s63"); a(f"s_add_u32 s62, s62, {L.Y0}")
    a("s_mul_i32 s63, s53, 20480"); a("v_add_u32 v4, s63, v1")
    a("s_lshl_b32 s63, s53, 10"); a("v_add_u32 v5, s63, v1"); a("v_add_u32 v6, 40960, v5")
    a("v_and_b32 v3, 31, v0"); a("s_lshl_b32 s63, s55, 5"); a("v_add_u32 v3, s63, v3"); a("v_mul_u32_u24 v3, 1280, v3")
    a("v_lshrrev_b32 v7, 5, v0"); a("v_lshl_add_u32 v3, v7, 3, v3")
    a("s_mul_i32 s64, s56, 320"); a("s_lshl_b32 s63, s53, 4"); a("s_add_u32 s64, s64, s63")
    stamp(a,1)
    for s in range(10):
        b=8+24*s
        a.wait_vm(f"s{s}")
        if s==0: stamp(a,2)
        for c in range(5):
            C="0" if s==0 else f"a[{16*c}:{16*c+15}]"
            a(f"v_mfma_f32_32x32x16_bf16 a[{16*c}:{16*c+15}], {r4(b+4+4*c)}, {r4(b)}, {C}")
        if s==1:
            for c in range(5):
                a(f"buffer_load_dwordx4 {r4(8+4*c)}, v1, s[48:51], s62 offen", "y")
                a("s_add_u32 s62, s62, 4096")
    stamp(a,3)
    for c in range(5):
        for g in range(4): a(f"ds_write_b128 v4, a[{16*c+4*g}:{16*c+4*g+3}] offset:{(c*4+g)*1024}")
    a.wait_lg0(); a("s_barrier")
    for c in range(5):
        for s in range(4): a(f"ds_read_b128 {r4(88+16*c+4*s)}, v{5+(s>>1)} offset:{(s&1)*20480+c*4096}", f"r{c}")
    stamp(a,4)
    a.wait_vm("y")
    for c in range(5):
        a.wait_lg(f"r{c}")
        b=88+16*c
        for i in range(4):
            a(f"v_add_f32 v{b+i}, v{b+i}, v{b+4+i}"); a(f"v_add_f32 v{b+8+i}, v{b+8+i}, v{b+12+i}")
        for i in range(4): a(f"v_add_f32 v{b+i}, v{b+i}, v{b+8+i}")
        for i in range(4): a(f"v_add_f32 v{b+i}, v{b+i}, v{8+4*c+i}")
        a(f"v_cvt_pk_bf16_f32 v{b}, v{b}, v{b+1}"); a(f"v_cvt_pk_bf16_f32 v{b+1}, v{b+2}, v{b+3}")
        a(f"buffer_store_dwordx2 v[{b}:{b+1}], v3, s[36:39], s64 offen offset:{64*c}")
    a.label("K3_END")
    if DIAG:
        a.raw("    s_cmp_ge_u32 s2, 256\n    s_cbranch_scc1 K3_END2")
        stamp(a,7); stamp(a,9,True)
        dump(a,2,"s53",vtmp=250)
        a.label("K3_END2")
    a("s_endpgm")
    return a.text(), dict(vgpr=256+80, accum=256, sgpr=102, lds=81920, block=256, grid=256)
```
